```python
import torch

def _softmax(x, axis=-1):
    return torch.softmax(x, dim=axis)
def _gelu(x):
    return torch.nn.functional.gelu(x, approximate="tanh")
def _silu(x):
    return torch.nn.functional.silu(x)
def _sigmoid(x):
    return torch.sigmoid(x)
def _layernorm(x, axis=-1, eps=1e-5):
    m = x.mean(dim=axis, keepdim=True)
    v = x.var(dim=axis, keepdim=True, unbiased=False)
    return (x - m) / torch.sqrt(v + eps)
def _scatter_add(tgt, idx, src, axis=0):
    return tgt.clone().index_add_(axis, idx, src)
def _segment_sum(src, seg, n):
    out = torch.zeros((n,) + src.shape[1:], dtype=src.dtype)
    return out.index_add_(0, seg, src)
def _pad(x, pw):
    flat = tuple(v for pair in reversed(pw) for v in pair)
    return torch.nn.functional.pad(x, flat)

kernel_name = 'standalone__attention_interact_autoint__recsys'

def setup_inputs():

    _w = (lambda a: (lambda t: t.to(torch.bfloat16) if t.is_floating_point() else t)(torch.as_tensor(a)))
    B, F = 4096, 100
    D = max(2, (128 // 2) * 2)
    H = 2
    Dh = D // H
    return {
        "e": _w((lambda *s: torch.randn(*s, dtype=torch.bfloat16) * 0.05)(B, F, D).to(float)),
        "wq": _w((lambda *s: torch.randn(*s, dtype=torch.bfloat16) * 1.6)(H, D, Dh).to(float)),
        "wk": _w((lambda *s: torch.randn(*s, dtype=torch.bfloat16) * 1.6)(H, D, Dh).to(float)),
        "wv": _w((lambda *s: torch.randn(*s, dtype=torch.bfloat16) * 0.05)(H, D, Dh).to(float)),
        "wres": _w((lambda *s: torch.randn(*s, dtype=torch.bfloat16) * 0.05)(D, D).to(float)),
    }

def reference(e, wq, wk, wv, wres):
    H, D, Dh = wq.shape[0], wq.shape[1], wq.shape[2]
    B, F = e.shape[0], e.shape[1]
    q = torch.einsum('bfd,hdk->bhfk', e, wq)
    k = torch.einsum('bfd,hdk->bhfk', e, wk)
    v = torch.einsum('bfd,hdk->bhfk', e, wv)
    scale = float(Dh) ** -0.5
    scores = torch.einsum('bhfk,bhgk->bhfg', q, k) * scale
    attn = _softmax(scores, axis=-1)
    attn = (lambda x, dt: x.to(dt))(attn, v.dtype)
    ctx = torch.einsum('bhfg,bhgk->bhfk', attn, v)
    ctx = (lambda x, *d: x.permute(*d))(ctx, 0, 2, 1, 3).reshape(B, F, H * Dh)
    res = torch.einsum('bfd,de->bfe', e, wres)
    out = ctx + res
    mask = (lambda x, dt: x.to(dt))(out > 0, out.dtype)
    return out * mask
```

```python
import sys, math, struct, collections
from sched import Op, Item, schedule2, schedule_loop, schedule_block, alloc_loop, fix_items, verify

NAME = "standalone__attention_interact_autoint__recsys"
CFG = dict(lsp=145, tE1=5700, tE2=6100, u0s=8, ts=2, ga=4, ga2=0, gb=4, lp=2, lpk=2, lp2=1, eh=8, cw=20, bp=0, cutm=8, noise=10, seed=1041, annotate=0, stamps=0, nostore=0, nodma=0, ldnt=1, stpol=1, adj=1, burst=5, truemax=0, fallback=1, pf=1, thr=40, dmagap=34)
for a_ in sys.argv[2:]:
    k_, v_ = a_.split("="); CFG[k_] = int(v_)
import sched
sched.CRIT_WIN = CFG.get('cw', 12); sched.BACKPACK = bool(CFG.get('bp', 0)); sched.DS_LAT = CFG.get('dl', 84)
sched.NOISE[:] = [CFG.get('noise', 0), CFG.get('seed', 0)]
STPOL = ["", " nt", " sc1", " sc0 sc1", " sc0 nt", " sc1 nt", " sc0 sc1 nt"][CFG["stpol"]]; LDPOL = ["", " nt", " sc1 nt", " sc0 sc1 nt", " sc1", " sc0 nt"][CFG["ldnt"]]
BBATCH = 25600; NB = 4096
UB = 512 * BBATCH
BLK = 1056; RG = 2 * BLK; TILE = 2 * RG; BUFSZ = 12 * RG; KSTEP = 256
TAB0 = 4 * BUFSZ; TABSZ = 12288
ZERO = TAB0 + 4 * TABSZ; ZEROSZ = 4096 + 256
DUMMY = ZERO + ZEROSZ
FLAG = DUMMY + 4096 + 256
LDS_TOTAL = 163840
assert DUMMY + 8192 + 128 <= LDS_TOTAL and FLAG + 16 <= LDS_TOTAL and DUMMY % 128 == 0 and TAB0 % 128 == 0
WST = 2 * BUFSZ
assert WST + 3 * 32768 <= ZERO
K0 = 0; KR = 48; V0 = 56; VR = 104; QF = 112; PBUF = (120, 136); RES = (152, 168); POOL0 = 184; NPOOL = 13
aE, aDMA, aDMAr, aST, aKr, aVr, aQ0, aQ1, aQ2, aQ3, aCw, aBp, L0, L1, T0, INV0, INV1, CHK, MX0, MX1 = range(236, 256)
aQ = (aQ0, aQ1, aQ2, aQ3); LL = (L0, L1); INV = (INV0, INV1)
WQ, WK, WV, WR = 0, 64, 128, 192
sE, sO, sWQ, sWK, sWV, sWR = 16, 20, 24, 28, 32, 36
sC, sW, sP, sH, sB0, sCnt, sStC, sStP, sSo, sLn, sEn, sStr, sT0, sT1, sT2, sT3, sTog, sM = range(40, 58)
sBits = 3; sWb = 58; sRb = 4; sRd = 5
POOL = [POOL0 + 4 * i for i in range(NPOOL)]
PPOOL = [K0 + 0]
CFG_BURST = {0: [70, 150, 260], 1: [12 + 34 * i for i in range(12)], 2: [12, 70, 130], 3: [12], 4: [12, 60], 5: [12 + 20 * i for i in range(12)], 6: [12, 50, 90, 130, 170, 210], 7: [12 + 10 * i for i in range(12)], 8: [12, 36, 60, 84, 108, 132], 9: [12 + 27 * i for i in range(12)], 10: [12 + 15 * i for i in range(12)]}[CFG.get("burst", 0)]
FT = [5, 0, 4, 1, 2, 3]

SRDTXT = f"""s_waitcnt lgkmcnt(0)
s_mov_b32 s{sE}, s4
s_mov_b32 s{sE+1}, s5
s_mov_b32 s{sWQ}, s6
s_mov_b32 s{sWQ+1}, s7
s_mov_b32 s{sWK}, s8
s_mov_b32 s{sWK+1}, s9
s_mov_b32 s{sWV}, s10
s_mov_b32 s{sWV+1}, s11
s_mov_b32 s{sWR}, s12
s_mov_b32 s{sWR+1}, s13
s_mov_b32 s{sO}, s14
s_mov_b32 s{sO+1}, s15"""

def v(i, n=1): return f"v{i}" if n == 1 else f"v[{i}:{i+n-1}]"
def a(i, n=1): return f"a{i}" if n == 1 else f"a[{i}:{i+n-1}]"
def vs(i, n=1): return [f"v{j}" for j in range(i, i + n)]
def as_(i, n=1): return [f"a{j}" for j in range(i, i + n)]
def srd(i): return f"s[{i}:{i+3}]"
def f32(x): return "0x%08x" % struct.unpack("<I", struct.pack("<f", x))[0]

class Prog:
    def __init__(self, truemax):
        self.ops = []; self.free = collections.deque(POOL0 + 4 * i for i in range(NPOOL)); self.truemax = truemax
        self.lastm = None; self.nm = 0; self.pending = []; self.hook = None; self.pvd = {}
    vq = 1000
    ring = None; stpol = STPOL
    def alloc(self):
        if self.ring is not None:
            self.ring.rotate(-1); return self.ring[0]
        self.free.popleft(); Prog.vq += 4; return Prog.vq
    def release(self, q): self.free.append(0)
    def add(self, *o, **k):
        op = Op(*o, **k); self.ops.append(op); return op
    def mfma(self, d, A, B, first=False, cin=None, k16=False, note=""):
        na = 2 if k16 else 4
        def t(x): return (v if x[0] == "v" else a)(x[1], na)
        def r(x): return (vs if x[0] == "v" else as_)(x[1], na)
        if first: ct, c = "0", []
        elif cin is not None: ct, c = v(cin, 4), vs(cin, 4)
        else: ct, c = v(d, 4), vs(d, 4)
        op = self.add(f"v_mfma_f32_16x16x{16 if k16 else 32}_bf16 {v(d, 4)}, {t(A)}, {t(B)}, {ct}", "M16", r=r(A) + r(B), w=vs(d, 4), c=c, note=note)
        op.mf = (d, A, B, ct)
        self.lastm = op; self.nm += 1
        if self.hook: self.hook(self)
        return op
    def share(self, wrap=False):
        import itertools
        ms = [o for o in self.ops if o.kind == "M16"]
        chains = []
        for o in ms:
            if chains and chains[-1][-1].mf[0] == o.mf[0] and o.mf[3] != "0": chains[-1].append(o)
            else: chains.append([o])
        def opts(c):
            st = [(o.mf[1], o.mf[2]) for o in c]
            if len(st) == 1: return [(0, 0, st)]
            r = []
            for i, j in itertools.permutations(range(len(st)), 2):
                r.append((i, j, [st[i]] + [x for k, x in enumerate(st) if k not in (i, j)] + [st[j]]))
            return r
        def gain(x, y): return int(x[0] == y[0]) + int(x[1] == y[1])
        allo = [opts(c) for c in chains]
        best = [[0.0 - 1e-3 * (i != 0) for (i, j, q) in allo[0]]]; back = [[None] * len(allo[0])]
        for n in range(1, len(chains)):
            b = []; k_ = []
            for (i, j, q) in allo[n]:
                sc = [best[-1][m] + gain(pq[-1], q[0]) for m, (_, _, pq) in enumerate(allo[n - 1])]
                m = max(range(len(sc)), key=lambda m: sc[m]); b.append(sc[m] - 1e-3 * (i != 0) - 1e-3 * (j != len(q) - 1)); k_.append(m)
            best.append(b); back.append(k_)
        m = max(range(len(best[-1])), key=lambda m: best[-1][m]); tot = best[-1][m]
        for n in range(len(chains) - 1, -1, -1):
            for o, (A, B) in zip(chains[n], allo[n][m][2]):
                d, _, _, ct = o.mf
                t = lambda x: (v if x[0] == "v" else a)(x[1], 4)
                r = lambda x: (vs if x[0] == "v" else as_)(x[1], 4)
                o.text = f"v_mfma_f32_16x16x32_bf16 {v(d, 4)}, {t(A)}, {t(B)}, {ct}"; o.r = r(A) + r(B); o.mf = (d, A, B, ct)
            m = back[n][m]
        return round(tot), len(chains)
    def dsr(self, dst, n, addr, off, pseudo=(), note="", ins=None):
        ins = ins or {4: "ds_read_b128", 2: "ds_read_b64", 1: "ds_read_b32"}[n]
        assert 0 <= off < 65536
        return self.add(f"{ins} {v(dst, n)}, {v(addr)} offset:{off}", "DR", r=[v(addr)] + list(pseudo), w=vs(dst, n), note=note)
    def dsw(self, addr, src, n, off, pw=(), pr=(), note="", ins=None):
        ins = ins or {4: "ds_write_b128", 2: "ds_write_b64", 1: "ds_write_b32"}[n]
        return self.add(f"{ins} {v(addr)}, {v(src, n)} offset:{off}", "DW", r=[v(addr)] + vs(src, n) + list(pr), w=list(pw), note=note, cost={4: 28, 2: 12, 1: 4}[n])
    def valu(self, text, r, w, kind="V", **k): return self.add(text, kind, r=r, w=w, **k)
    def op2(self, ins, d, x, y, note="", kind="V"):
        return self.valu(f"{ins} {v(d)}, {v(x)}, {v(y)}", [v(x), v(y)], [v(d)], kind=kind, note=note)
    def cvt(self, d, x, y, note=""): return self.op2("v_cvt_pk_bf16_f32", d, x, y, note)
    def exp(self, x, note=""): return self.valu(f"v_exp_f32 {v(x)}, {v(x)}", [v(x)], [v(x)], kind="T", note=note)
    def mov(self, d, val, note=""): return self.valu(f"v_mov_b32 {v(d)}, {val}", [], [v(d)], note=note)
    def salu(self, text, r=(), w=(), **k): return self.add(text, "S", r=list(r), w=list(w), **k)

class ESet:
    def __init__(self, P, t, pseudo, note, lazy, fixed=None, tag=None):
        self.P = P; self.args = (t, pseudo, note); self.fr = None; self.fixed = fixed; self.tag = tag
        if not lazy: self.load()
    def load(self):
        t, pseudo, note = self.args; self.fr = []
        for ks in range(4):
            q = self.P.alloc() if self.fixed is None else self.fixed[ks]
            o = self.P.dsr(q, 4, aE, t * TILE + ks * KSTEP, pseudo, note); self.fr.append(q)
            o.tag = (self.tag, ks)
            ms = [x for x in self.P.ops if x.kind == "M16"]
            k = CFG.get("eh", 4)
            if len(ms) > k: o.after = [ms[-1 - k]]
    def __getitem__(self, ks):
        if self.fr is None: self.load()
        return self.fr[ks]
def eload(P, t, pseudo, note, fixed=None, tag=None): return ESet(P, t, pseudo, note, P.truemax, fixed, tag)
def efree(P, e):
    if e.fixed is None:
        for q in e.fr: P.release(q)

def chain(P, W, mt, fr, e_is_A, d, note, cin_keep=False):
    order = [3, 2, 1, 0] if (mt & 1 and CFG.get("bous", 2)) else [0, 1, 2, 3]
    for n_, ks in enumerate(order):
        w = ("a", W + (mt * 4 + ks) * 4)
        A, B = (("v", fr[ks]), w) if e_is_A else (w, ("v", fr[ks]))
        P.mfma(d, A, B, first=(n_ == 0 and not cin_keep), note=note)

def pchain(P, W, mt, fr, e_is_A, dst, note):
    d = P.alloc(); chain(P, W, mt, fr, e_is_A, d, note)
    P.cvt(dst, d, d + 1, note + "c"); P.cvt(dst + 1, d + 2, d + 3, note + "c"); P.release(d)

def kch(P, t, mt, fr): pchain(P, WK, mt, fr, False, K0 + 8 * t + 2 * mt, f"K{t}")
def qch(P, mt, fr, tau): pchain(P, WQ, mt, fr, False, QF + 2 * mt, f"Q{tau}")
def vch(P, t, mt, fr): pchain(P, WV, mt, fr, True, V0 + 16 * (t >> 1) + 4 * mt + 2 * (t & 1), f"V{t}")
def rch(P, mt, fr, tau): chain(P, WR, mt, fr, False, RES[tau & 1] + 4 * mt, f"R{tau}")

def xlane(P, op, x, t, note):
    P.add(f"ds_swizzle_b32 {v(t)}, {v(x)} offset:0x401F", "DR", r=[v(x)], w=[v(t)], note=note)
    P.op2(op, x, x, t, note)
    P.add(f"ds_bpermute_b32 {v(t)}, {v(aBp)}, {v(x)}", "DR", r=[v(x), v(aBp)], w=[v(t)], note=note, cost=8)
    P.op2(op, x, x, t, note)

class Tile:
    def __init__(self, P, tau): self.P = P; self.tau = tau; self.n = 0; self.held = []; self.started = False
    def post(self, g, d):
        P = self.P; n = f"X{self.tau}"; l = LL[self.tau & 1]; pb = PBUF[self.tau & 1]
        regs = [d + i for i in range(4)] if g < 6 else [d]
        for x in regs:
            if P.truemax: P.op2("v_sub_f32", x, x, MX0, n)
            P.exp(x, n)
        rr = list(regs)
        if not self.started:
            P.op2("v_add_f32", l, rr[0], rr[1], n); rr = rr[2:]; self.started = True
        for x in rr: P.op2("v_add_f32", l, l, x, n)
        if g < 6:
            dst = pb + 4 * (g >> 1) + 2 * (g & 1)
            P.cvt(dst, d, d + 1, n); P.cvt(dst + 1, d + 2, d + 3, n)
        else:
            P.valu(f"v_cvt_pk_bf16_f32 {v(pb + 12)}, {v(d)}, 0", [v(d)], [v(pb + 12)], note=n)
        P.release(d)
    def s(self, g):
        if self.P.truemax:
            if self.n == 0 and len(self.P.free) >= 7:
                for g_ in range(7): self.s1(g_)
            assert g < 6 or self.n == 7
        else: self.s1(g)
    def s1(self, g):
        P = self.P; d = P.alloc(); kb = K0 + 8 * g if g < 6 else KR
        for ks in range(2): P.mfma(d, ("v", kb + 4 * ks), ("v", QF + 4 * ks), first=(ks == 0), note=f"S{self.tau}")
        self.n += 1
        if not P.truemax: self.post(g, d)
        else: self.held.append((g, d))
        if self.n == 7: self.finish()
    def finish(self):
        P = self.P; n = f"X{self.tau}"; l = LL[self.tau & 1]; inv = INV[self.tau & 1]
        if P.truemax:
            vals = []
            for (g, d) in self.held: vals += [d + i for i in range(4)] if g < 6 else [d]
            P.valu(f"v_max3_f32 {v(MX0)}, {v(vals[0])}, {v(vals[1])}, {v(vals[2])}", [v(x) for x in vals[:3]], [v(MX0)], note=n)
            for i in range(3, 25, 2):
                P.valu(f"v_max3_f32 {v(MX0)}, {v(MX0)}, {v(vals[i])}, {v(vals[i+1])}", [v(MX0), v(vals[i]), v(vals[i + 1])], [v(MX0)], note=n)
            xlane(P, "v_max_f32", MX0, MX1, n)
            for (g, d) in self.held: self.post(g, d)
        xlane(P, "v_add_f32", l, T0, n)
        P.valu(f"v_rcp_f32 {v(inv)}, {v(l)}", [v(l)], [v(inv)], kind="T", note=n, early=CFG.get("fe", 300))
        if not P.truemax:
            P.valu(f"v_max3_f32 {v(CHK)}, {v(CHK)}, {v(l)}, {v(inv)}", [v(CHK), v(l), v(inv)], [v(CHK)], note=n)

def store2(P, base, sreg, vaddr, half, note):
    for i in range(2):
        pass

def HSTEP(vaddr): return 2048 if CFG.get("fake128") and vaddr == aST else 64

def finish_half(P, r, half, sreg, vaddr, note):
    b = r + 8 * half
    for k in range(4): P.cvt(b + k, b + 2 * k, b + 2 * k + 1, note)
    for k in range(4): P.valu(f"v_pk_max_i16 {v(b+k)}, {v(b+k)}, 0", [v(b + k)], [v(b + k)], note=note)
    P.add(f"buffer_store_dwordx4 {v(b, 4)}, {v(vaddr)}, {srd(sO)}, s{sreg} offen offset:{half * HSTEP(vaddr)}{P.stpol}", "VS", r=vs(b, 4) + [v(vaddr), f"s{sreg}"], note=note, cost=4)

def pvpre(P, tau, mt): pass

def pvch(P, tau, mt, sbase):
    pb = PBUF[tau & 1]; r = RES[tau & 1]; inv = INV[tau & 1]; n = f"PV{tau}"
    d = P.alloc()
    steps = [(V0 + 16 * kp + 4 * mt, pb + 4 * kp) for kp in range(3)] + [(VR + 2 * mt, pb + 12)]
    if CFG.get("bous", 2) == 2: steps = [steps[0], steps[3], steps[1], steps[2]][::(-1 if mt & 1 else 1)]
    for n_, (A, B) in enumerate(steps): P.mfma(d, ("v", A), ("v", B), first=(n_ == 0), note=n)
    for i in range(4):
        x = r + 4 * mt + i
        P.valu(f"v_fmac_f32 {v(x)}, {v(d+i)}, {v(inv)}", [v(x), v(d + i), v(inv)], [v(x)], note=f"D{tau}")
    P.release(d)
    st = (sT0, sT1)[tau & 1]
    if mt == 0: P.salu(f"s_add_u32 s{st}, s{sbase}, {FT[tau] * 4096}", r=[f"s{sbase}"], w=[f"s{st}"])
    if mt & 1:
        finish_half(P, r, mt >> 1, st, aST, f"D{tau}")
        if CFG.get("adj"):
            if mt == 1: P.st0 = P.ops[-1]
            else:
                P.ops.remove(P.st0); P.ops.insert(len(P.ops) - 1, P.st0); P.st0.after = list(P.ops[-6:-2]); P.ops[-1].after = [P.st0]; P.ops[-1].urgent = True
                if CFG["adj"] == 2: P.ops[-1].gapafter = True

class Rem:
    def __init__(self, P, fixDa=None): self.P = P; self.b = {}; self.fixDa = fixDa
    def ld(self, x):
        P = self.P; b = self.b[x] = [P.alloc(), P.alloc()]
        for ks in range(2): P.dsr(b[ks], 4, aQ[x], ks * 64, ["L:Qtab"], "Srem")
    def s(self, x):
        P = self.P
        if x == 0:
            self.Da = P.alloc() if self.fixDa is None else self.fixDa
            self.Db = P.alloc()
        if x not in self.b: self.ld(x)
        b = self.b[x]
        for ks in range(2): P.mfma(self.Da, ("v", K0 + 8 * x + 4 * ks), ("v", b[ks]), first=(x == 0 and ks == 0), note="Srem").tag = ("Da", 0)
        if x < 3:
            kb = K0 + 8 * (4 + x) if x < 2 else KR
            for ks in range(2): P.mfma(self.Db, ("v", kb + 4 * ks), ("v", b[ks]), first=(x == 0 and ks == 0), note="Srem")
        for q in b: P.release(q)
    def xquad(self, op, x, t):
        P = self.P
        for rot in (8, 4):
            P.valu(f"{op}_dpp {v(x)}, {v(x)}, {v(x)} row_ror:{rot} row_mask:0xf bank_mask:0xf", [v(x)], [v(x)], kind="DPP", note="Xrem")
        xlane(P, op, x, t, "Xrem")
    def soft(self):
        P = self.P; n = "Xrem"
        D = [self.Da + i for i in range(4)] + [self.Db + i for i in range(4)]
        if P.truemax: tq = P.alloc(); l, t, m = tq, tq + 1, tq + 3
        else: l = MX1
        bm = [0xf] * 4 + [0x7, 0x3, 0x3, 0x3]
        if P.truemax:
            P.mov(t, "0xff800000")
            for x, b in zip(D[4:], bm[4:]):
                P.valu(f"v_mov_b32_dpp {v(x)}, {v(t)} quad_perm:[0,1,2,3] row_mask:0xf bank_mask:0x{15 - b:x}", [v(t), v(x)], [v(x)], kind="DPP", note=n)
            bm = [0xf] * 8
            P.valu(f"v_max3_f32 {v(m)}, {v(D[0])}, {v(D[1])}, {v(D[2])}", [v(x) for x in D[:3]], [v(m)], note=n)
            P.valu(f"v_max3_f32 {v(m)}, {v(m)}, {v(D[3])}, {v(D[4])}", [v(m), v(D[3]), v(D[4])], [v(m)], note=n)
            P.valu(f"v_max3_f32 {v(m)}, {v(m)}, {v(D[5])}, {v(D[6])}", [v(m), v(D[5]), v(D[6])], [v(m)], note=n)
            P.op2("v_max_f32", m, m, D[7], n)
            self.xquad("v_max_f32", m, t)
            for x in D: P.op2("v_sub_f32", x, x, m, n)
        for x, b in zip(D, bm):
            if b == 0xf: P.exp(x, n)
            else: P.valu(f"v_exp_f32_dpp {v(x)}, {v(x)} quad_perm:[0,1,2,3] row_mask:0xf bank_mask:0x{b:x}", [v(x)], [v(x)], kind="T", note=n)
        P.op2("v_add_f32", l, D[0], D[1], n)
        for x in D[2:]: P.op2("v_add_f32", l, l, x, n)
        for rot in (8, 4):
            P.valu(f"v_add_f32_dpp {v(l)}, {v(l)}, {v(l)} row_ror:{rot} row_mask:0xf bank_mask:0xf", [v(l)], [v(l)], kind="DPP", note=n)
        P.dsw(aCw, l, 1, 4096, pw=["L:Vtab"], note=n)
        Da, Db = self.Da, self.Db
        P.cvt(Da, Da, Da + 1, n); P.cvt(Da + 1, Da + 2, Da + 3, n); P.cvt(Da + 2, Db, Db + 1, n); P.cvt(Da + 3, Db + 2, Db + 3, n)
        P.release(Db)
        if P.truemax: P.release(tq)
    def spread(self):
        P = self.P; n = "Xrem"; Da = self.Da
        b1, b2 = P.alloc(), P.alloc()
        def sh(d, s, k): P.valu(f"v_mov_b32_dpp {v(d)}, {v(s)} row_ror:{16 - k} row_mask:0xf bank_mask:0xf", [v(s)], [v(d)], kind="DPP", note=n)
        for i in range(2):
            sh(b2 + 2 + i, Da + 2 + i, 4)
            P.valu(f"v_mov_b32 {v(b2 + i)}, {v(Da + 2 + i)}", [v(Da + 2 + i)], [v(b2 + i)], note=n)
        for i in range(2):
            sh(b1 + i, Da + i, 8); sh(b1 + 2 + i, Da + i, 12); sh(Da + 2 + i, Da + i, 4)
        self.B = [Da, b1, b2]
    def pre(self, mt):
        if mt == 0:
            P = self.P; d = PBUF[0] + 12; s_ = self.B[2]
            P.valu(f"v_mov_b32_dpp {v(d)}, {v(s_)} row_ror:8 row_mask:0xf bank_mask:0xf", [v(s_)], [v(d)], kind="DPP", note="Xrem")
    def pv(self, mt, last=None):
        P = self.P; n = "PVrem"
        d = P.alloc()
        for kp in range(3): P.mfma(d, ("v", V0 + 16 * kp + 4 * mt), ("v", self.B[kp]), first=(kp == 0), note=n)
        P.mfma(d, ("v", VR + 2 * mt), ("v", PBUF[0] + 12), note=n)
        P.cvt(d, d, d + 1, n); P.cvt(d + 1, d + 2, d + 3, n)
        P.dsw(aCw, d, 2, mt * 8, pw=["L:Qtab"], note=n)
        P.release(d)
        if (mt == 3 if last is None else last):
            for q in self.B: P.release(q)

def dma(P, voff, ldsoff, first, pr, pw, after=()):
    P.salu(f"s_add_u32 m0, s{sLn}, {ldsoff}", r=[f"s{sLn}"] + list(pr), w=["m0"], after=after)
    if first: P.salu(f"s_mov_b32 s{sSo}, s{sEn}", r=[f"s{sEn}"] + list(pr), w=[f"s{sSo}"], after=after)
    else: P.salu(f"s_add_u32 s{sSo}, s{sSo}, s{sStr}", r=[f"s{sSo}", f"s{sStr}"] + list(pr), w=[f"s{sSo}"], after=after)
    return P.add(f"buffer_load_dwordx4 {v(voff)}, {srd(sE)}, s{sSo} offen{LDPOL} lds", "VL", r=[v(voff), "m0", f"s{sSo}"] + list(pr), w=list(pw), note="dma", after=after)

def tail(P, kproj):
    X = Tile(P, 5)
    e = None
    if kproj: e = eload(P, 0, ["B"], "e")
    if not kproj:
        X.s(0); pvpre(P, 4, 0); X.s(1); pvch(P, 4, 0, sStP); X.s(2); pvch(P, 4, 1, sStP)
        X.s(3); pvch(P, 4, 2, sStP); X.s(4); pvch(P, 4, 3, sStP); X.s(5); X.s(6)
        return None
    if not CFG.get("grp", 1):
        X.s(0); X.s(1)
        sched_ = {(0, 1): "s2", (0, 3): "p40", (1, 1): "p41", (1, 2): "s3", (1, 3): "p42", (2, 1): "p43", (2, 2): "s4", (3, 0): "s5", (3, 2): "s6",
                  (4, 3): "p50", (5, 0): "p51", (5, 2): "p52", (5, 3): "p53"}
    else:
        X.s(0); X.s(1)
        if CFG.get("ts", 0) < 4: X.s(2)
        sched_ = [{(0, 3): "p40 p41 p42 p43", (2, 3): "s3 s4 s5 s6", (4, 3): "p50 p51 p52 p53"},
                  {(0, 3): "p40 p41 p42 p43", (1, 3): "s3 s4 s5 s6", (4, 3): "p50 p51 p52 p53"},
                  {(0, 3): "p40 p41 p42 p43 s3 s4", (2, 3): "s5 s6", (4, 3): "p50 p51 p52 p53"},
                  {(1, 3): "p40 p41 p42 p43 s3 s4 s5 s6", (4, 3): "p50 p51 p52 p53"},
                  {(0, 3): "p40 p41 p42 p43 s2 s3", (2, 3): "s4 s5 s6", (4, 3): "p50 p51 p52 p53"},
                  {(0, 3): "p40 p41 p42 p43", (1, 3): "s2 s3", (2, 3): "s4 s5 s6", (4, 3): "p50 p51 p52 p53"},
                  {(0, 3): "s2 s3", (1, 3): "p40 p41 p42 p43", (2, 3): "s4 s5 s6", (4, 3): "p50 p51 p52 p53"}][CFG.get("ts", 0)]
    for t in range(6):
        for n_, mt in enumerate(MTO(t)):
            kch(P, t, mt, e)
            if n_ == CFG.get("lpk", 1) and t < 5: en = eload(P, t + 1, ["B"], "e")
            for w in sched_.get((t, n_), "").split():
                if w[0] == "s": X.s(int(w[1]))
                else: pvch(P, int(w[1]), int(w[2]), sStP)
        if t < 5:
            efree(P, e); e = en
    return e

def MTO(k): return [3, 2, 1, 0] if (k & 1 and CFG.get("grp", 1)) else [0, 1, 2, 3]

def main_grouped(P, e5):
    GA = CFG.get("ga", 4); GA2 = max(GA, CFG.get("ga2", 0)); GB = CFG.get("gb", 4); LP = CFG.get("lp", 1)
    def S(X, gs):
        for g in gs: X.s(g)
    for mt in range(4): qch(P, mt, e5, 0)
    for mt in range(4): rch(P, mt, e5, 0)
    X0 = Tile(P, 0); S(X0, range(GA))
    for n_, mt in enumerate(MTO(0)):
        vch(P, 5, mt, e5)
        if n_ == LP: e1 = eload(P, 1, ["B"], "e")
    efree(P, e5)
    S(X0, range(GA, GA2))
    for n_, mt in enumerate(MTO(1)):
        vch(P, 1, mt, e1)
        if n_ == 1: e0 = eload(P, 0, ["B"], "e")
    efree(P, e1)
    S(X0, range(GA2, 7))
    R = Rem(P)
    for mt in range(4):
        vch(P, 0, mt, e0)
        if mt >= 1 and not P.truemax: R.ld(mt - 1)
    for x in range(4):
        R.s(x)
        if x == 0: R.ld(3)
    R.soft()
    for mt in range(4): qch(P, mt, e0, 1)
    for mt in range(4):
        rch(P, mt, e0, 1)
        if mt == CFG.get("lp2", 2): e2 = eload(P, 2, ["B"], "e")
    efree(P, e0)
    X1 = Tile(P, 1); S(X1, range(GA))
    for n_, mt in enumerate(MTO(0)):
        vch(P, 2, mt, e2)
        if n_ == LP: e3 = eload(P, 3, ["B"], "e")
    efree(P, e2)
    S(X1, range(GA, GA2))
    for n_, mt in enumerate(MTO(1)):
        vch(P, 3, mt, e3)
        if n_ == 1: e = eload(P, 4, ["B"], "e", tag="e4")
    efree(P, e3)
    S(X1, range(GA2, 7))
    for mt in range(4): vch(P, 4, mt, e)
    P.cut = len(P.ops)
    for mt in range(4): qch(P, mt, e, 2)
    for mt in range(4):
        pvch(P, 0, mt, sStC)
        if mt == 0: R.spread()
    R.pre(0)
    for mt in (3, 2, 1, 0): R.pv(mt, mt == 0)
    for tau in range(2, 5):
        X = Tile(P, tau)
        if tau == 2: S(X, range(GB))
        for mt in range(4): rch(P, mt, e, tau)
        efree(P, e)
        if tau > 2: S(X, range(GB))
        for mt in range(4):
            pvch(P, tau - 1, mt, sStC)
            if mt == 1: e = eload(P, FT[tau + 1], ["B"], "e")
        S(X, range(GB, 7))
        for mt in range(4): qch(P, mt, e, tau + 1)
    for mt in range(4): rch(P, mt, e, 5)
    efree(P, e)

def body(P):
    bar = P.add("s_barrier", "BAR", r=["dma"], w=["B"])
    cnt = [0]
    spots = []
    for b_ in CFG_BURST: spots += [b_ + i for i in range(12 // len(CFG_BURST))]
    def hook(P_):
        if P_.nm in spots:
            j = cnt[0]; cnt[0] += 1
            P_.hook = None
            o = dma(P_, aDMA, j * RG, j == 0, ["B"], ["dma"], after=[P_.lastm]); o.early = 20000
            P_.hook = hook
    P.hook = hook
    if CFG.get("otouch") and not P.truemax:
        o = P.add(f"buffer_load_dword {v(MX0)}, off, {srd(sO)}, s{sStC} nt", "VG", r=[f"s{sStC}", "B"], w=[], note="touch"); o.early = 20000
    e5 = tail(P, True)
    for ks in range(2): P.dsr(KR + 4 * ks, 4, aKr, ks * 64, ["L:Ktab"], "KR")
    for mt in range(4): P.dsr(VR + 2 * mt, 1, aVr, mt * 128, ["L:Vtab"], "VR", ins="ds_read_u16")
    if CFG.get("grp", 1): main_grouped(P, e5)
    else:
        for mt in range(4): qch(P, mt, e5, 0)
        X0 = Tile(P, 0)
        for mt in range(4):
            rch(P, mt, e5, 0)
            if mt & 1: X0.s(mt >> 1)
        for mt in range(4):
            vch(P, 5, mt, e5)
            if mt == 0: e1 = eload(P, 1, ["B"], "e")
            if mt & 1: X0.s(2 + (mt >> 1))
        efree(P, e5)
        for mt in range(4):
            vch(P, 1, mt, e1)
            if mt == 0: e0 = eload(P, 0, ["B"], "e")
            if mt & 1: X0.s(4 + (mt >> 1))
        efree(P, e1)
        R = Rem(P)
        for mt in range(4):
            vch(P, 0, mt, e0)
            if mt == 0: X0.s(6)
            if mt >= 2: R.s(mt - 2)
        for mt in range(4):
            qch(P, mt, e0, 1)
            if mt < 2: R.s(2 + mt)
        R.soft()
        X1 = Tile(P, 1)
        for mt in range(4):
            rch(P, mt, e0, 1)
            if mt == 0: e2 = eload(P, 2, ["B"], "e")
            if mt & 1: X1.s(mt >> 1)
        efree(P, e0)
        for mt in range(4):
            vch(P, 2, mt, e2)
            if mt == 0: e3 = eload(P, 3, ["B"], "e")
            if mt == 2: X1.s(2)
        efree(P, e2)
        for mt in range(4):
            vch(P, 3, mt, e3)
            if mt == 0: e4 = eload(P, 4, ["B"], "e")
            if mt == 0 or mt == 2: X1.s(3 + (mt >> 1))
        efree(P, e3)
        for mt in range(4):
            vch(P, 4, mt, e4)
            if mt == 0 or mt == 2: X1.s(5 + (mt >> 1))
        e = e4
        for mt in range(4):
            qch(P, mt, e, 2)
            if mt == 2: pvpre(P, 0, 0)
        X = Tile(P, 2)
        for mt in range(4):
            pvch(P, 0, mt, sStC)
            if mt == 1: R.spread()
        R.pre(0)
        for mt in range(4):
            if mt < 3 and not P.truemax: X.s(mt)
            R.pv(mt)
        for tau in range(2, 5):
            if tau > 2: X = Tile(P, tau)
            for mt in range(4):
                rch(P, mt, e, tau)
                if tau > 2 and mt < 3: X.s(mt)
                if mt == 2: pvpre(P, tau - 1, 0)
            efree(P, e); e = eload(P, FT[tau + 1], ["B"], "e")
            for mt in range(4):
                pvch(P, tau - 1, mt, sStC); X.s(3 + mt)
            for mt in range(4): qch(P, mt, e, tau + 1)
        for mt in range(4): rch(P, mt, e, 5)
        efree(P, e)
    P.hook = None
    assert cnt[0] == 12, cnt
    n0 = len(P.ops)
    P.valu(f"v_add_u32 {v(aE)}, s{sTog}, {v(aE)}", [v(aE), f"s{sTog}"], [v(aE)])
    P.salu(f"s_sub_u32 s{sLn}, s{sLn}, s{sTog}", r=[f"s{sLn}", f"s{sTog}"], w=[f"s{sLn}"])
    P.salu(f"s_sub_u32 s{sTog}, 0, s{sTog}", r=[f"s{sTog}"], w=[f"s{sTog}"])
    for x in (aKr, aVr, aCw) + aQ:
        P.valu(f"v_add_u32 {v(x)}, 0x200, {v(x)}", [v(x)], [v(x)])
    P.salu(f"s_mov_b32 s{sStP}, s{sStC}", r=[f"s{sStC}"], w=[f"s{sStP}"])
    P.salu(f"s_add_u32 s{sStC}, s{sStC}, {UB}", r=[f"s{sStC}"], w=[f"s{sStC}"])
    P.salu(f"s_sub_u32 s{sCnt}, s{sCnt}, 1", r=[f"s{sCnt}"], w=[f"s{sCnt}"])
    P.salu(f"s_add_u32 s{sEn}, s{sEn}, {UB}", r=[f"s{sEn}"], w=[f"s{sEn}"])
    P.salu(f"s_bfe_i32 s{sM}, s{sBits}, 0x10000", r=[f"s{sBits}"], w=[f"s{sM}"])
    P.salu(f"s_lshr_b32 s{sBits}, s{sBits}, 1", r=[f"s{sBits}"], w=[f"s{sBits}"])
    P.salu(f"s_and_b32 s{sStr}, s{sM}, {2 * UB - 2048}", r=[f"s{sM}"], w=[f"s{sStr}"])
    P.salu(f"s_add_u32 s{sStr}, s{sStr}, 2048", r=[f"s{sStr}"], w=[f"s{sStr}"])
    P.salu(f"s_and_b32 s{sT2}, s{sM}, s{sRd}", r=[f"s{sM}", f"s{sRd}"], w=[f"s{sT2}"])
    P.salu(f"s_sub_u32 s{sEn}, s{sEn}, s{sT2}", r=[f"s{sEn}", f"s{sT2}"], w=[f"s{sEn}"])
    return n0

def lane_expr(P, dst, L, t, terms, const=0, sconst=None, note="addr"):
    if sconst is not None:
        P.valu(f"v_mov_b32 {v(dst)}, s{sconst}", [f"s{sconst}"], [v(dst)], note=note)
        if const: P.valu(f"v_add_u32 {v(dst)}, {const}, {v(dst)}", [v(dst)], [v(dst)], note=note)
    else:
        P.valu(f"v_mov_b32 {v(dst)}, {const}", [], [v(dst)], note=note)
    for (off, w, mult) in terms:
        P.valu(f"v_bfe_u32 {v(t)}, {v(L)}, {off}, {w}", [v(L)], [v(t)], note=note)
        if mult & (mult - 1) == 0:
            P.valu(f"v_lshl_add_u32 {v(dst)}, {v(t)}, {int(math.log2(mult))}, {v(dst)}", [v(t), v(dst)], [v(dst)], note=note)
        else:
            assert mult < (1 << 24)
            P.valu(f"v_mul_u32_u24 {v(t)}, {mult}, {v(t)}", [v(t)], [v(t)], note=note)
            P.valu(f"v_add_u32 {v(dst)}, {v(t)}, {v(dst)}", [v(t), v(dst)], [v(dst)], note=note)

def add_xor16(P, dst, L, t, off):
    if off < 4: P.valu(f"v_lshlrev_b32 {v(t)}, {4 - off}, {v(L)}", [v(L)], [v(t)])
    P.valu(f"v_xor_b32 {v(t)}, {v(t)}, {v(L)}", [v(t), v(L)], [v(t)])
    P.valu(f"v_and_b32 {v(t)}, 48, {v(t)}", [v(t)], [v(t)])
    P.valu(f"v_add_u32 {v(dst)}, {v(t)}, {v(dst)}", [v(t), v(dst)], [v(dst)])

def lane_id(P, L):
    P.valu(f"v_mbcnt_lo_u32_b32 {v(L)}, -1, 0", [], [v(L)])
    P.valu(f"v_mbcnt_hi_u32_b32 {v(L)}, -1, {v(L)}", [v(L)], [v(L)])

def select(P, dst, src, other, fn):
    m = 0
    for l in range(64):
        if fn(l): m |= 1 << l
    P.salu(f"s_mov_b32 vcc_lo, 0x{m & 0xffffffff:x}\ns_mov_b32 vcc_hi, 0x{m >> 32:x}", w=["vcc"])
    P.valu(f"v_cndmask_b32 {v(dst)}, {v(other)}, {v(src)}, vcc", [v(src), v(other), "vcc"], [v(dst)])

def stamp_op(P, k, after):
    if CFG["stamps"]:
        P.add(f"s_memtime s[{60+4*k}:{61+4*k}]\ns_memrealtime s[{62+4*k}:{63+4*k}]", "S", r=[after], early=100000)
NQ = 10
def stamp_q():
    if not CFG["stamps"]: return []
    t = ["s_memtime s[92:93]", "s_memrealtime s[94:95]", "s_waitcnt lgkmcnt(0)"]
    for i in range(NQ - 1): t.append(f"s_mov_b64 s[{72+2*i}:{73+2*i}], s[{74+2*i}:{75+2*i}]")
    t += ["s_mov_b32 s90, s92", "s_mov_b32 s91, s94"]
    if CFG["stamps"] == 3: t += ["s_sub_u32 s91, s66, s64"]
    return [Item(raw=x) for x in t]
def stamp_dump():
    if not CFG["stamps"]: return []
    regs = [(60 + 4 * k, 62 + 4 * k) for k in range(3)] + [(72 + 2 * i, 73 + 2 * i) for i in range(NQ)]
    if CFG["stamps"] == 2:
        t = [f"s_cmp_lg_u32 s{sW}, 0", "s_cbranch_scc1 L_nodbg", "s_load_dwordx2 s[92:93], s[0:1], 48", "s_waitcnt lgkmcnt(0)", "s_mov_b32 s94, 256", "s_mov_b32 s95, 0x20000", "v_mov_b32 v2, 0", "s_mov_b64 exec, 1"]
        k = [0]
        def amax(off):
            k[0] += 1
            return [f"v_mov_b32 v{3+k[0]}, s3", f"buffer_atomic_umax v{3+k[0]}, v2, s[92:95], 0 offen offset:{off*4}"]
        t += ["s_mov_b32 s3, s91"] + amax(0) + ["s_not_b32 s3, s62"] + amax(1)
        prev = 60
        for n, (x, y) in enumerate(regs[3:]):
            t += [f"s_sub_u32 s3, s{x}, s{prev}"] + amax(2 + n); prev = x
        t += ["s_sub_u32 s64, s90, s60", "s_not_b32 s3, s64"] + amax(12) + ["s_lshl_b32 s3, s64, 8", "s_or_b32 s3, s3, s2"] + amax(13)
        t += ["s_sub_u32 s64, s91, s62", "s_lshl_b32 s3, s64, 8", "s_or_b32 s3, s3, s2"] + amax(14) + ["s_not_b32 s3, s64"] + amax(15)
        t += ["L_nodbg:", "s_mov_b64 exec, -1"]
        return [Item(raw=x) for x in t]
    t = ["s_load_dwordx2 s[92:93], s[0:1], 56", "s_waitcnt lgkmcnt(0)", "s_mov_b32 s94, 0x100000", "s_mov_b32 s95, 0x20000",
         "s_lshl_b32 s3, s2, 2", f"s_add_u32 s3, s3, s{sW}", "s_lshl_b32 s3, s3, 8", "v_mov_b32 v2, 0", "s_mov_b64 exec, 1"]
    for n, (x, y) in enumerate(regs):
        t += [f"v_mov_b32 v{4+2*n}, s{x}", f"v_mov_b32 v{5+2*n}, s{y}", f"buffer_store_dwordx2 v[{4+2*n}:{5+2*n}], v2, s[92:95], s3 offen offset:{8*n}"]
    t += ["s_mov_b64 exec, -1"]
    return [Item(raw=x) for x in t]

def prologue(P, first):
    if first:
        o = P.salu(f"""s_waitcnt lgkmcnt(0)
s_mov_b32 s{sE}, s4
s_mov_b32 s{sE+1}, s5
s_mov_b32 s{sWQ}, s6
s_mov_b32 s{sWQ+1}, s7
s_mov_b32 s{sWK}, s8
s_mov_b32 s{sWK+1}, s9
s_mov_b32 s{sWV}, s10
s_mov_b32 s{sWV+1}, s11
s_mov_b32 s{sWR}, s12
s_mov_b32 s{sWR+1}, s13
s_mov_b32 s{sO}, s14
s_mov_b32 s{sO+1}, s15""", r=["s4", "s5"], w=["srd"]); o.nb = CFG.get("knb", 200); o.urgent = True
    E = 1 << 20
    ER = V0
    KP = V0 + 32; QP = VR
    WQR = RES[0]; WRR = PBUF[0]
    L, t, vK0, vK1, vV, vLin, vWr, vX = range(KR, KR + 8)
    aT = [L0, L1, T0, INV0]; aV = [INV1, CHK]; y0, y1 = MX0, MX1
    sTab, sX = sT0, sT1
    P.marks = []
    nld = [0]
    def timed(o, grp):
        o.r = o.r + ["srd"]
        t0, t1, arr = grp; o.nb = t0 + (t1 - t0) * (nld[0] % 8) // 8; o.arrive = arr; o.urgent = True; o.early = E; nld[0] += 1
        return o
    sp = CFG.get("lsp", 130)
    G = dict(Q=(350, 550, 1000), Ea=(550, 750, 2400), K1=(650, 850, 2400), K2=(750, 950, 2400), R=(1000, 1000 + 8 * sp, 3100), V=(1000 + 4 * sp, 1000 + 12 * sp, 3300),
             Eb1=(1000 + 12 * sp, 1000 + 20 * sp, 4900), O=(1000 + 16 * sp, 1000 + 24 * sp, 4500), Eb2=(0, 0, 5800))
    if CFG.get("olast", 0):
        G["Eb1"] = (1000 + 12 * sp, 1000 + 20 * sp, CFG.get("tE1", 4300)); G["Eb2"] = (0, 0, CFG.get("tE2", 4900)); G["O"] = (CFG.get("tO0", 3700), CFG.get("tO0", 3700) + 8 * sp, CFG.get("tO", 5400))
    elif CFG.get("oe", 1): G["O"] = (1000 + 12 * sp, 1000 + 20 * sp, 4000); G["Eb1"] = (1000 + 20 * sp, 1000 + 28 * sp, 5200)
    def V(text, r, w): return P.valu(text, r, w, early=E)
    lane_id(P, L)
    V(f"v_lshlrev_b32 {v(vLin)}, 4, {v(L)}", [v(L)], [v(vLin)])
    V(f"v_and_b32 {v(t)}, 16, {v(L)}", [v(L)], [v(t)])
    V(f"v_lshlrev_b32 {v(vV)}, 2, {v(t)}", [v(t)], [v(vV)])
    V(f"v_lshlrev_b32 {v(t)}, 1, {v(t)}", [v(t)], [v(t)])
    V(f"v_xor_b32 {v(vK0)}, {v(vLin)}, {v(t)}", [v(vLin), v(t)], [v(vK0)])
    V(f"v_xor_b32 {v(vV)}, {v(vLin)}, {v(vV)}", [v(vLin), v(vV)], [v(vV)])
    V(f"v_xor_b32 {v(vK1)}, 64, {v(vK0)}", [v(vK0)], [v(vK1)])
    P.salu(f"s_lshl_b32 s{sT2}, s{sW}, 13", r=[f"s{sW}"], w=[f"s{sT2}"], early=E)
    P.salu(f"s_add_u32 s{sM}, s{sT2}, 4096", r=[f"s{sT2}"], w=[f"s{sM}"], early=E)
    def wdma(srdn, lds, pw, vo, grp, pr=[], halves=range(2)):
        nld[0] = 0
        for j4 in halves:
            so = (sT2, sM)[j4]
            P.salu(f"s_add_u32 m0, s{so}, {lds}", r=[f"s{so}"] + pr, w=["m0"], early=E).urgent = True
            for j in range(4):
                timed(P.add(f"buffer_load_dwordx4 {v(vo[j & 1])}, {srd(srdn)}, s{so} offen offset:{j*1024} lds", "VL", r=[v(vo[j & 1]), "m0", f"s{so}"] + pr, w=[pw, "ord"], note="wdma"), grp)
    def gl(dst, srdn, grp, pr=[], js=range(8)):
        nld[0] = 0
        for j in js:
            so = (sT2, sM)[j >> 2]
            timed(P.add(f"buffer_load_dwordx4 {v(dst + 4 * j, 4)}, {v(vLin)}, {srd(srdn)}, s{so} offen offset:{(j & 3) * 1024}", "VG", r=[v(vLin), f"s{so}"] + pr, w=vs(dst + 4 * j, 4) + ["ord"], note="gl"), grp)
    def edma(vo, js, src, pw, grp, pr=[], lb=sLn, sb=sT3):
        nld[0] = 0
        for j in js:
            P.salu(f"s_add_u32 m0, s{lb}, {j * RG}", r=[f"s{lb}"] + pr, w=["m0"], early=E).urgent = True
            P.salu(f"s_add_u32 s{sSo}, s{sb}, {src(j)}", r=[f"s{sb}"] + pr, w=[f"s{sSo}"], early=E).urgent = True
            timed(P.add(f"buffer_load_dwordx4 {v(vo)}, {srd(sE)}, s{sSo} offen{LDPOL} lds", "VL", r=[v(vo), "m0", f"s{sSo}"] + pr, w=[pw, "ord"], note="dma"), grp)
    gl(WQR, sWQ, G["Q"])
    lane_expr(P, aDMA, L, t, [(0, 2, 16), (4, 2, 64), (2, 2, 256)])
    P.salu(f"s_lshl_b32 s{sT3}, s{sH}, 10", r=[f"s{sH}"], w=[f"s{sT3}"])
    P.salu(f"s_add_u32 s{sT3}, s{sT3}, s{sB0}", r=[f"s{sT3}", f"s{sB0}"], w=[f"s{sT3}"])
    P.salu(f"s_add_u32 s{sEn}, s{sT3}, {UB}", r=[f"s{sT3}"], w=[f"s{sEn}"])
    P.salu(f"s_mul_i32 s{sLn}, s{sP}, {BUFSZ}\ns_mul_i32 s{sX}, s{sH}, {BLK}\ns_add_u32 s{sLn}, s{sLn}, s{sX}", r=[f"s{sP}", f"s{sH}"], w=[f"s{sLn}", f"s{sX}"])
    P.salu(f"s_mul_i32 s{sRb}, s{sH}, {UB}\ns_add_u32 s{sRb}, s{sRb}, s{sB0}\ns_add_u32 s{sRb}, s{sRb}, {96 * 256}\ns_add_u32 s{sRd}, s{sT3}, {8 * UB}\ns_sub_u32 s{sRd}, s{sRd}, s{sRb}",
           r=[f"s{sH}", f"s{sB0}", f"s{sT3}"], w=[f"s{sRb}", f"s{sRd}"])
    edma(aDMA, range(4), lambda j: j * 2048, "d1", G["Ea"])
    wdma(sWK, WST, "d1", (vK0, vK1), G["K1"], halves=[0])
    wdma(sWK, WST, "d1", (vK0, vK1), G["K2"], halves=[1])
    P.salu(f"s_lshl_b32 s{sX}, s{sH}, 14", r=[f"s{sH}"], w=[f"s{sX}"])
    lane_expr(P, aT[0], L, t, [(4, 2, 1024), (2, 2, 128), (3, 1, 32), (4, 1, 64), (0, 2, 8)], const=WST, sconst=sX)
    assert WST % 128 == 0
    for mt in range(1, 4): P.valu(f"v_xor_b32 {v(aT[mt])}, {mt * 32}, {v(aT[0])}", [v(aT[0])], [v(aT[mt])])
    lane_expr(P, aV[0], L, t, [(4, 2, 1024), (2, 2, 128), (3, 1, 64), (0, 2, 16)], const=WST + 65536, sconst=sX)
    P.valu(f"v_xor_b32 {v(aV[1])}, 64, {v(aV[0])}", [v(aV[0])], [v(aV[1])])
    P.salu(f"s_mul_i32 s{sX}, s{sP}, {BUFSZ}", r=[f"s{sP}"], w=[f"s{sX}"])
    lane_expr(P, aE, L, t, [(2, 2, BLK), (0, 2, 64), (4, 2, 16)], sconst=sX)
    P.salu(f"s_add_u32 s{sX}, s{sT2}, {WST + 32768}", r=[f"s{sT2}"], w=[f"s{sX}"])
    vQ0, vQ1, aEr = QP, QP + 1, QP + 2
    P.valu(f"v_add_u32 {v(vQ0)}, s{sX}, {v(vK0)}", [v(vK0), f"s{sX}"], [v(vQ0)])
    P.valu(f"v_add_u32 {v(vQ1)}, s{sX}, {v(vK1)}", [v(vK1), f"s{sX}"], [v(vQ1)])
    P.salu(f"s_lshl_b32 s{sX}, s{sW}, 12", r=[f"s{sW}"], w=[f"s{sX}"])
    lane_expr(P, vWr, L, t, [(3, 1, 16384), (4, 2, 128), (2, 1, 64), (5, 1, 32), (0, 2, 8)], const=WST, sconst=sX)
    wr = [vWr, vV, vLin, vX]
    P.salu(f"s_lshl_b32 s{sX}, s{sH}, 7", r=[f"s{sH}"], w=[f"s{sX}"])
    lane_expr(P, aST, L, t, [(0, 4, 256), (4, 2, 16)] if not CFG.get("fake128") else [(0, 3, 256), (3, 1, 64), (4, 2, 16)], sconst=sX)
    P.salu(f"s_mul_i32 s{sTab}, s{sW}, {TABSZ}\ns_add_u32 s{sTab}, s{sTab}, {TAB0}", r=[f"s{sW}"], w=[f"s{sTab}"])
    P.ring = collections.deque(RES[0] + 4 * i for i in range(8))
    aTabW, aVw, vZ = vK0, vK1, y0
    lane_expr(P, aVr, L, t, [(4, 2, 2), (0, 4, 8)], const=8192, sconst=sTab)
    lane_expr(P, aKr, L, t, [(2, 2, 128)], sconst=sTab); add_xor16(P, aKr, L, t, 2)
    z4 = K0 + 40
    for i in range(4): P.mov(z4 + i, 0)
    P.salu(f"s_lshl_b32 s{sX}, s{sW}, 10", r=[f"s{sW}"], w=[f"s{sX}"])
    lane_expr(P, vZ, L, t, [(0, 6, 16)], const=ZERO, sconst=sX)
    P.dsw(vZ, z4, 4, 0, pw=["d2w"]); P.dsw(vZ, z4, 4, 256, pw=["d2w"])
    P.mov(vZ, ZERO)
    select(P, aKr, aKr, vZ, lambda l: (l & 3) == 0)
    lane_expr(P, aQ3, L, t, [(0, 2, 128)], const=4096, sconst=sTab); add_xor16(P, aQ3, L, t, 0)
    for x in range(4): select(P, aQ[x], aQ3, vZ, lambda l: ((l >> 2) & 3) == x)
    lane_expr(P, aCw, L, t, [(0, 2, 128)], const=4096, sconst=sTab)
    lane_expr(P, vZ, L, t, [(2, 2, 8)], const=DUMMY)
    select(P, aCw, aCw, vZ, lambda l: ((l >> 2) & 3) == 0)
    add_xor16(P, aCw, L, t, 0); P.valu(f"v_add_u32 {v(aCw)}, {v(t)}, {v(aCw)}", [v(t), v(aCw)], [v(aCw)])
    P.valu(f"v_xor_b32 {v(aBp)}, 32, {v(L)}", [v(L)], [v(aBp)])
    P.valu(f"v_lshlrev_b32 {v(aBp)}, 2, {v(aBp)}", [v(aBp)], [v(aBp)])
    def bar(r, w):
        o = P.add("s_barrier", "BAR", r=r, w=w + ["barorder"], early=E); o.urgent = True; return o
    edma(aDMA, range(8, 12), lambda j: (j - 8) * 2 * UB, "d2", G["R"], sb=sRb)
    P.salu(f"s_mov_b32 s{sStr}, 2048", w=[f"s{sStr}"])
    wdma(sWV, WST + 65536, "d3", (vV, vV), G["V"])
    OL = CFG.get("olast", 0)
    if CFG.get("oe", 1) and not OL: gl(WRR, sWR, G["O"])
    edma(aDMA, range(4, 8), lambda j: j * 2048, "d4", G["Eb1"])
    if not CFG.get("oe", 1) and not OL: gl(WRR, sWR, G["O"])
    for j in range(8):
        for i in range(4):
            x = WQR + 4 * j + i; y = (y0, y1)[i & 1]
            P.valu(f"v_and_b32 {v(y)}, 0xffff0000, {v(x)}", [v(x)], [v(y)])
            P.valu(f"v_lshlrev_b32 {v(x)}, 16, {v(x)}", [v(x)], [v(x)])
            P.valu(f"v_mul_f32 {v(y)}, s{sC}, {v(y)}", [v(y), f"s{sC}"], [v(y)])
            P.valu(f"v_mul_f32 {v(x)}, s{sC}, {v(x)}", [v(x), f"s{sC}"], [v(x)])
            P.cvt(x, x, y)
        P.dsw((vQ0, vQ1)[j & 1], WQR + 4 * j, 4, j * 1024, pw=["d2w"])
    bar(["d1", "d2w"], ["Ba"])
    def trload(W, base, vpat, pseudo, e=0):
        for mt in range(4):
            for ks in range(4):
                for jh in range(2):
                    o = W + (mt * 4 + ks) * 4 + 2 * jh
                    addr = aV[mt >> 1] if vpat else aT[mt]
                    off = base + ks * 4096 + jh * 512 + ((mt & 1) * 8 if vpat else 0)
                    P.add(f"ds_read_b64_tr_b16 {a(o, 2)}, {v(addr)} offset:{off}", "DR", r=[v(addr)] + pseudo, w=as_(o, 2), note="tr", early=e)
    trload(WK, 0, False, ["Ba", "L:a"])
    P.marks.append(len(P.ops))
    trload(WQ, 32768, False, ["Ba", "L:b"])
    lane_expr(P, aTabW, L, t, [(0, 4, 128)], sconst=sTab); add_xor16(P, aTabW, L, t, 0)
    lane_expr(P, aVw, L, t, [(4, 2, 512), (0, 4, 8)], const=8192, sconst=sTab)
    bar(["d2"], ["L:a", "Bb"])
    er = [[ER + 16 * z + 4 * ks for ks in range(4)] for z in range(2)]
    for z in range(2):
        for ks in range(4): P.dsr(er[z][ks], 4, aE, (4 + z) * TILE + ks * KSTEP, ["Bb", "L:r"], "Erem").early = E
    if OL:
        bar([], ["L:r", "Bc"])
        edma(aDMA, range(8, 12), lambda j: j * 2048, "d5", G["Eb2"], ["Bc"])
        P.salu(f"s_add_u32 s{sLn}, s{sLn}, {2*BUFSZ}", r=[f"s{sLn}"], w=[f"s{sLn}"])
        lane_expr(P, vWr, L, t, [(3, 3, 256), (0, 3, 16)])
        P.valu(f"v_and_b32 {v(t)}, 16, {v(L)}", [v(L)], [v(t)])
        P.valu(f"v_lshlrev_b32 {v(t)}, 2, {v(t)}", [v(t)], [v(t)])
        P.valu(f"v_xor_b32 {v(vWr)}, {v(vWr)}, {v(t)}", [v(vWr), v(t)], [v(vWr)])
        P.salu(f"s_lshl_b32 s{sM}, s{sH}, 14\ns_lshl_b32 s{sX}, s{sP}, 7\ns_add_u32 s{sM}, s{sM}, s{sX}", r=[f"s{sH}", f"s{sP}"], w=[f"s{sM}", f"s{sX}"])
        nld[0] = 0
        for j in range(8):
            P.salu(f"s_add_u32 m0, s{sT2}, {WST + j * 1024}", r=[f"s{sT2}", "Bc"], w=["m0"], early=E).urgent = True
            P.salu(f"s_add_u32 s{sSo}, s{sM}, {j * 2048}", r=[f"s{sM}", "Bc"], w=[f"s{sSo}"], early=E).urgent = True
            timed(P.add(f"buffer_load_dwordx4 {v(vWr)}, {srd(sWR)}, s{sSo} offen lds", "VL", r=[v(vWr), "m0", f"s{sSo}", "Bc"], w=["d6", "ord"], note="wdma"), G["O"])
        for z in range(2):
            for mt in range(4): pchain(P, WK, mt, er[z], False, KP + 8 * z + 2 * mt, "Krem")
        bar(["d3"], ["Bv"])
        trload(WV, 0, True, ["Bv", "L:b"])
        for k in range(2): P.valu(f"v_subrev_u32 {v(aV[k])}, 65536, {v(aV[k])}", [v(aV[k])], [v(aV[k])])
        for z in range(2):
            for mt in range(4): pchain(P, WQ, mt, er[z], False, QP + 8 * z + 2 * mt, "Qrem")
        bar(["d4"], ["L:b", "Bd", "Be"])
        for z in range(2):
            for ks in range(2): P.dsw(aTabW, KP + 8 * z + 4 * ks, 4, z * 2048 + ks * 64, pw=["L:Ktab"], pr=["Bd"])
            for ks in range(2): P.dsw(aTabW, QP + 8 * z + 4 * ks, 4, 4096 + z * 2048 + ks * 64, pw=["L:Qtab"], pr=["Bd"])
        for z in range(2):
            for mt in range(4):
                d = P.alloc(); chain(P, WV, mt, er[z], True, d, "Vrem")
                P.cvt(d, d, d + 1); P.cvt(d + 1, d + 2, d + 3)
                P.dsw(aVw, d, 2, z * 2048 + mt * 128, pw=["L:Vtab"], pr=["Bd"])
        P.marks.append(len(P.ops))
        bar(["d6"], ["Bf"])
        trload(WR, 0, True, ["Bf", "L:c"], E)
        P.marks.append(len(P.ops))
        bar([], ["L:c", "B"])
    else:
        bar(["d3"], ["L:r", "Bc"])
        edma(aDMA, range(8, 12), lambda j: j * 2048, "d5", G["Eb2"], ["Bc"])
        P.salu(f"s_add_u32 s{sLn}, s{sLn}, {2*BUFSZ}", r=[f"s{sLn}"], w=[f"s{sLn}"])
        wr = [vWr, y0, y1, vX]
        for k in range(1, 4): P.valu(f"v_xor_b32 {v(wr[k])}, {k * 32}, {v(vWr)}", [v(vWr)], [v(wr[k])])
        trload(WV, 0, True, ["Bc", "L:b"])
        for z in range(2):
            for mt in range(4): pchain(P, WK, mt, er[z], False, KP + 8 * z + 2 * mt, "Krem")
        for z in range(2):
            for mt in range(4): pchain(P, WQ, mt, er[z], False, QP + 8 * z + 2 * mt, "Qrem")
        for j in range(8):
            for u in range(2): P.dsw(wr[u + 2 * ((j >> 1) & 1)], WRR + 4 * j + 2 * u, 2, j * 512, pw=["d3w"], pr=["Bb"])
        bar(["d3w"], ["L:b", "Bd"])
        trload(WR, 0, False, ["Bd", "L:c"])
        for z in range(2):
            for ks in range(2): P.dsw(aTabW, KP + 8 * z + 4 * ks, 4, z * 2048 + ks * 64, pw=["L:Ktab"], pr=["Bd"])
            for ks in range(2): P.dsw(aTabW, QP + 8 * z + 4 * ks, 4, 4096 + z * 2048 + ks * 64, pw=["L:Qtab"], pr=["Bd"])
        for z in range(2):
            for mt in range(4):
                d = P.alloc(); chain(P, WV, mt, er[z], True, d, "Vrem")
                P.cvt(d, d, d + 1); P.cvt(d + 1, d + 2, d + 3)
                P.dsw(aVw, d, 2, z * 2048 + mt * 128, pw=["L:Vtab"], pr=["Bd"])
        bar(["d4"], ["Be"])
        P.marks.append(len(P.ops))
        bar(["d5"], ["L:c", "Bf", "B"])
        P.marks.append(len(P.ops))
    for x in [VR + 1, VR + 3, VR + 5, VR + 7, CHK] + [pb + 13 + i for pb in PBUF for i in range(3)]: P.mov(x, 0)
    for x in (L0, L1, INV0, INV1): P.mov(x, "1.0")
    P.salu(f"s_mov_b32 s{sT0}, 0x7ff00000", w=[f"s{sT0}"]); P.salu(f"s_mov_b32 s{sT1}, 0x7ff00000", w=[f"s{sT1}"])

def unit0(P, e4regs, Da, TQ):
    E = 1 << 20
    SV = WST; SQ = TAB0 - 16384; SK = SQ + 32768
    assert SV + 32768 <= SQ and SK + 32768 <= ZERO and SV % 128 == 0 and SQ % 128 == 0
    ER = V0; KP = V0 + 32
    WQR = PBUF[0]; WRR = RES[0]
    L, t, vK0, vK1, vQ0, vQ1, y0, y1 = range(KR, KR + 8)
    aT = [VR, VR + 1, VR + 2, VR + 3]; aV = [VR + 4, VR + 5]; vWr, vLin = VR + 6, VR + 7
    vV, aEr, aTabW, aVw = TQ, TQ + 1, TQ + 2, TQ + 3
    sTab, sX = sT0, sT1
    o = P.salu(SRDTXT, r=["s4", "s5"], w=["srd"]); o.nb = CFG.get("knb", 200); o.urgent = True
    nld = [0]
    sp = CFG.get("lsp", 130)
    KF = CFG.get("kf", 0); OD = CFG.get("od", 0)
    ARR = ([CFG.get("tK", 1900)] * 12 + [CFG.get("tQ", 2000) + 80 * i for i in range(8)] if KF else [1000] * 8 + [2400] * 12) + [CFG.get("tR", 3300)] * 4 + [CFG.get("tV", 3800)] * 8 + ([CFG.get("tO", 5000)] * 8 if not OD else []) + [CFG.get("tE1", 6000)] * 4 + [CFG.get("tE2", 6500)] * 4 + [CFG.get("tO2", 6200)] * 8
    def timed(o):
        n = nld[0]; nld[0] += 1
        o.r = o.r + ["srd"]; o.nb = 350 + 25 * n if n < 20 else CFG.get("nb0", 1000) + sp * (n - 20); o.arrive = ARR[n]; o.urgent = True; o.early = E
        return o
    def V(text, r, w): return P.valu(text, r, w, early=E)
    lane_id(P, L)
    V(f"v_lshlrev_b32 {v(vLin)}, 4, {v(L)}", [v(L)], [v(vLin)])
    V(f"v_and_b32 {v(t)}, 16, {v(L)}", [v(L)], [v(t)])
    V(f"v_lshlrev_b32 {v(vV)}, 2, {v(t)}", [v(t)], [v(vV)])
    V(f"v_lshlrev_b32 {v(t)}, 1, {v(t)}", [v(t)], [v(t)])
    V(f"v_xor_b32 {v(vK0)}, {v(vLin)}, {v(t)}", [v(vLin), v(t)], [v(vK0)])
    V(f"v_xor_b32 {v(vV)}, {v(vLin)}, {v(vV)}", [v(vLin), v(vV)], [v(vV)])
    V(f"v_xor_b32 {v(vK1)}, 64, {v(vK0)}", [v(vK0)], [v(vK1)])
    P.salu(f"s_lshl_b32 s{sT2}, s{sW}, 13", r=[f"s{sW}"], w=[f"s{sT2}"], early=E)
    P.salu(f"s_add_u32 s{sM}, s{sT2}, 4096", r=[f"s{sT2}"], w=[f"s{sM}"], early=E)
    def wdma(srdn, lds, pw, vo):
        for j4 in range(2):
            so = (sT2, sM)[j4]
            P.salu(f"s_add_u32 m0, s{so}, {lds}", r=[f"s{so}"], w=["m0"], early=E).urgent = True
            for j in range(4):
                timed(P.add(f"buffer_load_dwordx4 {v(vo[j & 1])}, {srd(srdn)}, s{so} offen offset:{j*1024} lds", "VL", r=[v(vo[j & 1]), "m0", f"s{so}"], w=[pw, "ord"], note="wdma"))
    def gl(dst, srdn):
        for j in range(8):
            so = (sT2, sM)[j >> 2]
            timed(P.add(f"buffer_load_dwordx4 {v(dst + 4 * j, 4)}, {v(vLin)}, {srd(srdn)}, s{so} offen offset:{(j & 3) * 1024}", "VG", r=[v(vLin), f"s{so}"], w=vs(dst + 4 * j, 4) + ["ord"], note="gl"))
    def edma(js, src, pw, lb=sLn, sb=sT3, pr=[]):
        for j in js:
            P.salu(f"s_add_u32 m0, s{lb}, {j * RG}", r=[f"s{lb}"] + pr, w=["m0"], early=E).urgent = True
            P.salu(f"s_add_u32 s{sSo}, s{sb}, {src(j)}", r=[f"s{sb}"] + pr, w=[f"s{sSo}"], early=E).urgent = True
            timed(P.add(f"buffer_load_dwordx4 {v(aDMA)}, {srd(sE)}, s{sSo} offen{LDPOL} lds", "VL", r=[v(aDMA), "m0", f"s{sSo}"] + pr, w=[pw, "ord"], note="dma"))
    lane_expr(P, aDMA, L, t, [(0, 2, 16), (4, 2, 64), (2, 2, 256)])
    P.salu(f"s_lshl_b32 s{sT3}, s{sH}, 10", r=[f"s{sH}"], w=[f"s{sT3}"])
    P.salu(f"s_add_u32 s{sT3}, s{sT3}, s{sB0}", r=[f"s{sT3}", f"s{sB0}"], w=[f"s{sT3}"])
    P.salu(f"s_add_u32 s{sEn}, s{sT3}, {UB}", r=[f"s{sT3}"], w=[f"s{sEn}"])
    P.salu(f"s_mul_i32 s{sLn}, s{sP}, {BUFSZ}\ns_mul_i32 s{sX}, s{sH}, {BLK}\ns_add_u32 s{sLn}, s{sLn}, s{sX}", r=[f"s{sP}", f"s{sH}"], w=[f"s{sLn}", f"s{sX}"])
    P.salu(f"s_mov_b32 s{sStr}, 2048", w=[f"s{sStr}"])
    P.salu(f"s_mul_i32 s{sRb}, s{sH}, {UB}\ns_add_u32 s{sRb}, s{sRb}, s{sB0}\ns_add_u32 s{sRb}, s{sRb}, {96 * 256}\ns_add_u32 s{sRd}, s{sT3}, {8 * UB}\ns_sub_u32 s{sRd}, s{sRd}, s{sRb}",
           r=[f"s{sH}", f"s{sB0}", f"s{sT3}"], w=[f"s{sRb}", f"s{sRd}"])
    if not KF: gl(WQR, sWQ)
    if KF == 1: wdma(sWK, SK, "dK", (vK0, vK1))
    edma([10, 11, 0, 1], lambda j: j * 2048, "dK")
    if KF != 1: wdma(sWK, SK, "dK", (vK0, vK1))
    if KF: gl(WQR, sWQ)
    edma(range(6, 10), lambda j: (j - 6) * 2 * UB, "dR", sb=sRb)
    wdma(sWV, SV, "dV", (vV, vV))
    if not OD: gl(WRR, sWR)
    edma(range(2, 6), lambda j: j * 2048, "dE1")
    P.salu(f"s_lshl_b32 s{sX}, s{sH}, 14", r=[f"s{sH}"], w=[f"s{sX}"])
    lane_expr(P, aT[0], L, t, [(4, 2, 1024), (2, 2, 128), (3, 1, 32), (4, 1, 64), (0, 2, 8)], const=SQ, sconst=sX)
    for mt in range(1, 4): P.valu(f"v_xor_b32 {v(aT[mt])}, {mt * 32}, {v(aT[0])}", [v(aT[0])], [v(aT[mt])])
    lane_expr(P, aV[0], L, t, [(4, 2, 1024), (2, 2, 128), (3, 1, 64), (0, 2, 16)], const=SV, sconst=sX)
    P.valu(f"v_xor_b32 {v(aV[1])}, 64, {v(aV[0])}", [v(aV[0])], [v(aV[1])])
    P.salu(f"s_mul_i32 s{sX}, s{sP}, {BUFSZ}", r=[f"s{sP}"], w=[f"s{sX}"])
    lane_expr(P, aE, L, t, [(2, 2, BLK), (0, 2, 64), (4, 2, 16)], sconst=sX)
    P.salu(f"s_add_u32 s{sX}, s{sT2}, {SQ}", r=[f"s{sT2}"], w=[f"s{sX}"])
    P.valu(f"v_add_u32 {v(vQ0)}, s{sX}, {v(vK0)}", [v(vK0), f"s{sX}"], [v(vQ0)])
    P.valu(f"v_add_u32 {v(vQ1)}, s{sX}, {v(vK1)}", [v(vK1), f"s{sX}"], [v(vQ1)])
    if OD:
        lane_expr(P, vWr, L, t, [(3, 3, 256), (0, 3, 16)])
        P.valu(f"v_and_b32 {v(t)}, 16, {v(L)}", [v(L)], [v(t)])
        P.valu(f"v_lshlrev_b32 {v(t)}, 2, {v(t)}", [v(t)], [v(t)])
        P.valu(f"v_xor_b32 {v(vWr)}, {v(vWr)}, {v(t)}", [v(vWr), v(t)], [v(vWr)])
    else:
        P.salu(f"s_lshl_b32 s{sX}, s{sW}, 12", r=[f"s{sW}"], w=[f"s{sX}"])
        lane_expr(P, vWr, L, t, [(3, 1, 16384), (4, 2, 128), (2, 1, 64), (5, 1, 32), (0, 2, 8)], const=SV, sconst=sX)
    P.salu(f"s_lshl_b32 s{sX}, s{sH}, 7", r=[f"s{sH}"], w=[f"s{sX}"])
    lane_expr(P, aST, L, t, [(0, 4, 256), (4, 2, 16)], sconst=sX)
    P.salu(f"s_mul_i32 s{sTab}, s{sW}, {TABSZ}\ns_add_u32 s{sTab}, s{sTab}, {TAB0}", r=[f"s{sW}"], w=[f"s{sTab}"])
    vZ = y0
    lane_expr(P, aVr, L, t, [(4, 2, 2), (0, 4, 8)], const=8192, sconst=sTab)
    lane_expr(P, aKr, L, t, [(2, 2, 128)], sconst=sTab); add_xor16(P, aKr, L, t, 2)
    lane_expr(P, aTabW, L, t, [(0, 4, 128)], sconst=sTab); add_xor16(P, aTabW, L, t, 0)
    lane_expr(P, aVw, L, t, [(4, 2, 512), (0, 4, 8)], const=8192, sconst=sTab)
    z4 = K0 + 40
    for i in range(4): P.mov(z4 + i, 0)
    P.salu(f"s_lshl_b32 s{sX}, s{sW}, 10", r=[f"s{sW}"], w=[f"s{sX}"])
    lane_expr(P, vZ, L, t, [(0, 6, 16)], const=ZERO, sconst=sX)
    P.dsw(vZ, z4, 4, 0, pw=["dz"]); P.dsw(vZ, z4, 4, 256, pw=["dz"])
    P.mov(vZ, ZERO)
    select(P, aKr, aKr, vZ, lambda l: (l & 3) == 0)
    lane_expr(P, aQ3, L, t, [(0, 2, 128)], const=4096, sconst=sTab); add_xor16(P, aQ3, L, t, 0)
    for x in range(4): select(P, aQ[x], aQ3, vZ, lambda l: ((l >> 2) & 3) == x)
    lane_expr(P, aCw, L, t, [(0, 2, 128)], const=4096, sconst=sTab)
    lane_expr(P, vZ, L, t, [(2, 2, 8)], const=DUMMY)
    select(P, aCw, aCw, vZ, lambda l: ((l >> 2) & 3) == 0)
    add_xor16(P, aCw, L, t, 0); P.valu(f"v_add_u32 {v(aCw)}, {v(t)}, {v(aCw)}", [v(t), v(aCw)], [v(aCw)])
    P.valu(f"v_xor_b32 {v(aBp)}, 32, {v(L)}", [v(L)], [v(aBp)])
    P.valu(f"v_lshlrev_b32 {v(aBp)}, 2, {v(aBp)}", [v(aBp)], [v(aBp)])
    P.mov(CHK, 0)
    def bar(r, w):
        o = P.add("s_barrier", "BAR", r=r, w=w + ["barorder"], early=E); o.urgent = True; return o
    def trload(W, base, vpat, pseudo, e=0):
        for mt in range(4):
            for ks in range(4):
                for jh in range(2):
                    o = W + (mt * 4 + ks) * 4 + 2 * jh
                    addr = aV[mt >> 1] if vpat else aT[mt]
                    off = base + ks * 4096 + jh * 512 + ((mt & 1) * 8 if vpat else 0)
                    P.add(f"ds_read_b64_tr_b16 {a(o, 2)}, {v(addr)} offset:{off}", "DR", r=[v(addr)] + pseudo, w=as_(o, 2), note="tr", early=e)
    fx = [e4regs]
    def el(t_, pseudo):
        f = fx[0]; fx[0] = None if f is not None else e4regs
        return eload(P, t_, pseudo, "e", fixed=f)
    if KF:
        bar(["dK", "dz"], ["B1"])
        trload(WK, 32768, False, ["B1", "L:k"], E)
        for j in range(8):
            for i in range(4):
                x = WQR + 4 * j + i; y = (y0, y1)[i & 1]
                P.valu(f"v_and_b32 {v(y)}, 0xffff0000, {v(x)}", [v(x)], [v(y)])
                P.valu(f"v_lshlrev_b32 {v(x)}, 16, {v(x)}", [v(x)], [v(x)])
                P.valu(f"v_mul_f32 {v(y)}, s{sC}, {v(y)}", [v(y), f"s{sC}"], [v(y)])
                P.valu(f"v_mul_f32 {v(x)}, s{sC}, {v(x)}", [v(x), f"s{sC}"], [v(x)])
                P.cvt(x, x, y)
            P.dsw((vQ0, vQ1)[j & 1], WQR + 4 * j, 4, j * 1024, pw=["wQ"])
        for x in [pb + 13 + i for pb in PBUF for i in range(3)]: P.mov(x, 0)
        e0 = eload(P, 0, ["B1"], "e"); e5 = eload(P, 5, ["B1"], "e", fixed=e4regs)
        for mt in range(4): kch(P, 0, mt, e0)
        efree(P, e0)
        for mt in MTO(1): kch(P, 5, mt, e5)
        bar(["dR", "wQ"], ["B1q"])
        er = [[ER + 16 * z + 4 * ks for ks in range(4)] for z in range(2)]
        for z in range(2):
            for ks in range(4): P.dsr(er[z][ks], 4, aE, (3 + z) * TILE + ks * KSTEP, ["B1q", "L:r"], "Erem").early = E
        trload(WQ, 0, False, ["B1q", "L:k"])
        for mt in range(4): P.valu(f"v_subrev_u32 {v(aT[mt])}, {SQ - SV}, {v(aT[mt])}", [v(aT[mt])], [v(aT[mt])])
        bar(["dV"], ["L:r", "L:k", "B2", "B3"])
        edma(range(6, 10), lambda j: j * 2048, "dE2", pr=["B3"])
        P.salu(f"s_add_u32 s{sLn}, s{sLn}, {2*BUFSZ}", r=[f"s{sLn}"], w=[f"s{sLn}"])
        trload(WV, 0, True, ["B3", "L:v"])
    else:
        for j in range(8):
            for i in range(4):
                x = WQR + 4 * j + i; y = (y0, y1)[i & 1]
                P.valu(f"v_and_b32 {v(y)}, 0xffff0000, {v(x)}", [v(x)], [v(y)])
                P.valu(f"v_lshlrev_b32 {v(x)}, 16, {v(x)}", [v(x)], [v(x)])
                P.valu(f"v_mul_f32 {v(y)}, s{sC}, {v(y)}", [v(y), f"s{sC}"], [v(y)])
                P.valu(f"v_mul_f32 {v(x)}, s{sC}, {v(x)}", [v(x), f"s{sC}"], [v(x)])
                P.cvt(x, x, y)
            P.dsw((vQ0, vQ1)[j & 1], WQR + 4 * j, 4, j * 1024, pw=["dz"])
        for x in [pb + 13 + i for pb in PBUF for i in range(3)]: P.mov(x, 0)
        bar(["dK", "dz"], ["B1"])
        trload(WK, 32768, False, ["B1", "L:k"], E)
        trload(WQ, 0, False, ["B1", "L:k"])
        for mt in range(4): P.valu(f"v_subrev_u32 {v(aT[mt])}, {SQ - SV}, {v(aT[mt])}", [v(aT[mt])], [v(aT[mt])])
        e0 = eload(P, 0, ["B1"], "e"); e5 = eload(P, 5, ["B1"], "e", fixed=e4regs)
        for mt in range(4): kch(P, 0, mt, e0)
        efree(P, e0)
        for mt in MTO(1): kch(P, 5, mt, e5)
        for mt in range(4): qch(P, mt, e5, 0)
        bar(["dR"], ["L:k", "B2"])
        er = [[ER + 16 * z + 4 * ks for ks in range(4)] for z in range(2)]
        for z in range(2):
            for ks in range(4): P.dsr(er[z][ks], 4, aE, (3 + z) * TILE + ks * KSTEP, ["B2", "L:r"], "Erem").early = E
        bar(["dV"], ["L:r", "B3"])
        edma(range(6, 10), lambda j: j * 2048, "dE2", pr=["B3"])
        P.salu(f"s_add_u32 s{sLn}, s{sLn}, {2*BUFSZ}", r=[f"s{sLn}"], w=[f"s{sLn}"])
        trload(WV, 0, True, ["B3", "L:v"])
    X0 = Tile(P, 0)
    if not KF: X0.s(0); X0.s(5)
    for z in range(2):
        for mt in MTO(z): pchain(P, WK, mt, er[z], False, KP + 8 * z + 2 * mt, "Krem")
        for ks in range(2): P.dsw(aTabW, KP + 8 * z + 4 * ks, 4, z * 2048 + ks * 64, pw=["L:Ktab"], pr=["B2"])
    if KF:
        for mt in range(4): qch(P, mt, e5, 0)
    for ks in range(2): P.dsr(KR + 4 * ks, 4, aKr, ks * 64, ["L:Ktab"], "KR")
    for z in (1, 0):
        for mt in MTO(z + 1): pchain(P, WQ, mt, er[z], False, KP + 8 * z + 2 * mt, "Qrem")
        for ks in range(2): P.dsw(aTabW, KP + 8 * z + 4 * ks, 4, 4096 + z * 2048 + ks * 64, pw=["L:Qtab"], pr=["B2"])
    bar([], ["L:v", "B4"])
    wr = [vWr, aV[0], aV[1], vLin]
    if OD:
        P.salu(f"s_lshl_b32 s{sM}, s{sH}, 14\ns_lshl_b32 s{sX}, s{sP}, 7\ns_add_u32 s{sM}, s{sM}, s{sX}", r=[f"s{sH}", f"s{sP}"], w=[f"s{sM}", f"s{sX}"])
        for j in range(8):
            P.salu(f"s_add_u32 m0, s{sT2}, {SV + j * 1024}", r=[f"s{sT2}", "B4"], w=["m0"], early=E).urgent = True
            P.salu(f"s_add_u32 s{sSo}, s{sM}, {j * 2048}", r=[f"s{sM}", "B4"], w=[f"s{sSo}"], early=E).urgent = True
            o = timed(P.add(f"buffer_load_dwordx4 {v(vWr)}, {srd(sWR)}, s{sSo} offen lds", "VL", r=[v(vWr), "m0", f"s{sSo}", "B4"], w=["dO", "ord"], note="wdma"))
            o.nb = CFG.get("tO0", 4500) + 80 * j
    else:
        for k in range(1, 4): P.valu(f"v_xor_b32 {v(wr[k])}, {k * 32}, {v(vWr)}", [v(vWr)], [v(wr[k])])
    if KF: X0.s(0); X0.s(5)
    X0.s(6)
    for z in range(2):
        for mt in MTO(z):
            d = P.alloc(); chain(P, WV, mt, er[z], True, d, "Vrem")
            P.cvt(d, d, d + 1); P.cvt(d + 1, d + 2, d + 3)
            P.dsw(aVw, d, 2, z * 2048 + mt * 128, pw=["L:Vtab"], pr=["B2"]); P.release(d)
    if OD:
        e0 = eload(P, 0, ["B1"], "e")
        for mt in range(4): vch(P, 5, mt, e5)
        bar(["dE1"], ["B6"])
        e2 = eload(P, 2, ["B6"], "e", fixed=e4regs)
        for mt in MTO(1): vch(P, 0, mt, e0)
        efree(P, e0)
        e1 = eload(P, 1, ["B6"], "e")
        for mt in range(4): kch(P, 2, mt, e2)
        for mt in MTO(1): kch(P, 1, mt, e1)
        efree(P, e1)
        bar(["dO"], ["B5", "B7e"])
        trload(WR, 0, True, ["B5", "L:w"])
        e3 = eload(P, 3, ["B7e"], "e")
        for mt in range(4): vch(P, 2, mt, e2)
        bar([], ["L:w", "B", "B7"])
        for x in (1, 3, 5, 7): P.mov(VR + x, 0)
        for mt in range(4): P.dsr(VR + 2 * mt, 1, aVr, mt * 128, ["L:Vtab"], "VR", ins="ds_read_u16")
    else:
        for j in range(8):
            for u_ in range(2): P.dsw(wr[u_ + 2 * ((j >> 1) & 1)], WRR + 4 * j + 2 * u_, 2, j * 512, pw=["wO"], pr=["B4"])
        bar(["wO"], ["B5"])
        trload(WR, 0, False, ["B5", "L:w"])
        e0 = eload(P, 0, ["B1"], "e")
        for mt in range(4): vch(P, 0, mt, e0)
        efree(P, e0)
        for mt in MTO(1): vch(P, 5, mt, e5)
        for mt in range(4): rch(P, mt, e5, 0)
        bar(["dE1"], ["L:w", "B6", "B"])
        for x in (1, 3, 5, 7): P.mov(VR + x, 0)
        for mt in range(4): P.dsr(VR + 2 * mt, 1, aVr, mt * 128, ["L:Vtab"], "VR", ins="ds_read_u16")
        e1 = eload(P, 1, ["B6"], "e"); e2 = eload(P, 2, ["B6"], "e", fixed=e4regs)
        for mt in range(4): kch(P, 1, mt, e1)
        efree(P, e1)
        bar(["dE2"], ["B7"])
        e3 = eload(P, 3, ["B7"], "e")
        for mt in MTO(1): kch(P, 2, mt, e2)
        for mt in range(4): vch(P, 2, mt, e2)
    cnt = [0]; nm0 = P.nm + CFG.get("u0d", 2)
    def hook(P_):
        if P_.nm >= nm0 and (P_.nm - nm0) % CFG.get("u0s", 11) == 0 and cnt[0] < 12:
            j = cnt[0]; cnt[0] += 1
            P_.hook = None
            o = dma(P_, aDMA, j * RG, j == 0, ["B7"], ["dma"], after=[P_.lastm]); o.early = 20000
            P_.hook = hook
    P.hook = hook
    X0.s(1); X0.s(2)
    e4 = eload(P, 4, ["B7e" if OD else "B7"], "e", fixed=e4regs)
    for mt in range(4): kch(P, 3, mt, e3)
    efree(P, e3)
    for n_, mt in enumerate(MTO(1)):
        kch(P, 4, mt, e4)
        if n_ == 1: e0 = eload(P, 0, ["B7"], "e")
    R = Rem(P, Da)
    for mt in range(4):
        rch(P, mt, e0, 1)
        if mt == 0: X0.s(3); X0.s(4)
    for mt in range(4): qch(P, mt, e0, 1)
    efree(P, e0)
    R.ld(0); R.ld(1)
    X1 = Tile(P, 1)
    for mt in range(4):
        vch(P, 4, mt, e4)
        if mt == 0: X1.s(0); X1.s(1)
        if mt == 1: R.s(0); R.s(1); R.ld(2); R.ld(3)
        if mt == 3: R.s(2); R.s(3)
    R.soft()
    e3 = eload(P, 3, ["B7"], "e")
    X1.s(2); X1.s(3)
    for mt in range(4): vch(P, 3, mt, e3)
    efree(P, e3)
    e1 = eload(P, 1, ["B7"], "e")
    X1.s(4); X1.s(5)
    if not OD: X1.s(6)
    for mt in range(4): vch(P, 1, mt, e1)
    efree(P, e1)
    if OD:
        e5 = eload(P, 5, ["B7"], "e")
        X1.s(6)
        for mt in range(4): rch(P, mt, e5, 0)
        efree(P, e5)
    P.hook = None
    assert cnt[0] == 12, cnt
    P.share()

def epilogue(P):
    if CFG.get("epol") is not None: P.stpol = ["", " nt", " sc1", " sc0 sc1"][CFG["epol"]]
    P.add("s_barrier", "BAR", r=["dma"], w=["B"])
    L, t, aCr, aSr = aQ0, aQ1, aQ2, aQ3
    lane_id(P, L)
    P.salu(f"s_mul_i32 s{sT2}, s{sW}, {TABSZ}\ns_add_u32 s{sT2}, s{sT2}, {TAB0 + 4096}", r=[f"s{sW}"], w=[f"s{sT2}"])
    lane_expr(P, aCr, L, t, [(0, 4, 128)], sconst=sT2)
    add_xor16(P, aCr, L, t, 0); P.valu(f"v_add_u32 {v(aCr)}, {v(t)}, {v(aCr)}", [v(t), v(aCr)], [v(aCr)])
    lane_expr(P, aSr, L, t, [(0, 2, 256), (2, 2, UB), (4, 2, 16)], const=96 * 256)
    def mark(n0, e):
        for o in P.ops[n0:]:
            if o.kind == "VS": o.early = e; o.urgent = True
    def rem_final(z, e, r):
        c = [P.alloc(), P.alloc(), P.alloc()]
        for j in range(2): P.dsr(c[j], 4, aCr, z * 2048 + 16 * j, ["L:Qtab"], "ctx")
        ls = c[2]
        P.dsr(ls, 1, aCr, 4096 + z * 2048, ["L:Vtab"], "lsum")
        xlane(P, "v_add_f32", ls, ls + 1, "lsum")
        P.valu(f"v_rcp_f32 {v(ls + 1)}, {v(ls)}", [v(ls)], [v(ls + 1)], kind="T")
        if not P.truemax: P.valu(f"v_max3_f32 {v(CHK)}, {v(CHK)}, {v(ls)}, {v(ls + 1)}", [v(CHK), v(ls), v(ls + 1)], [v(CHK)])
        for j in range(8):
            x = c[j >> 2] + (j & 3); y = ls + 2 + (j & 1)
            P.valu(f"v_lshlrev_b32 {v(y)}, 16, {v(x)}", [v(x)], [v(y)])
            P.valu(f"v_and_b32 {v(x)}, 0xffff0000, {v(x)}", [v(x)], [v(x)])
            for (d, s_) in ((r + 2 * j, y), (r + 2 * j + 1, x)):
                P.valu(f"v_fmac_f32 {v(d)}, {v(s_)}, {v(ls + 1)}", [v(d), v(s_), v(ls + 1)], [v(d)])
        for q in c: P.release(q)
        st = (sSo, sStr)[z]
        P.salu(f"s_lshl_b32 s{st}, s{sH}, 7\ns_add_u32 s{st}, s{st}, s{sB0}\ns_add_u32 s{st}, s{st}, {z * 4 * UB}", r=[f"s{sH}", f"s{sB0}"], w=[f"s{st}"])
        for half in range(2): finish_half(P, r, half, st, aSr, "Drem")
        P.ops[-10].after = list(P.ops[-5:-1]); o = P.ops.pop(-10); P.ops.insert(len(P.ops) - 1, o); P.ops[-1].after = [o]
    X = Tile(P, 5)
    e0 = ESet(P, 0, ["B"], "Erem", False)
    for g in range(4): X.s(g)
    n0 = len(P.ops)
    for mt in range(4):
        pvch(P, 4, mt, sStP)
        if mt < 3: X.s(4 + mt)
    mark(n0, 1500)
    for mt in range(4): chain(P, WR, mt, e0, False, K0 + 4 * mt, "Rrem")
    efree(P, e0)
    e1 = ESet(P, 1, ["B"], "Erem", False)
    n0 = len(P.ops); rem_final(0, e0, K0); mark(n0, 700)
    for mt in range(4): chain(P, WR, mt, e1, False, K0 + 16 + 4 * mt, "Rrem")
    efree(P, e1)
    n0 = len(P.ops)
    for mt in range(4): pvch(P, 5, mt, sStP)
    mark(n0, 300)
    n0 = len(P.ops); rem_final(1, e1, K0 + 16); mark(n0, 0)
    for o in P.ops:
        if o.kind == "DR" and o.note in ("X5", "lsum", "ctx"): o.urgent = True

def program(truemax, tag):
    init = [f"s_mov_b32 s{sCnt}, 8", f"s_mov_b32 s{sBits}, 64", f"s_mov_b32 s{sStC}, s{sB0}", f"s_mov_b32 s{sStP}, 0x7ff00000", f"s_mov_b32 s{sTog}, {2*BUFSZ}"]
    drain = [Item(nop=8), Item(lgkm=0)]
    rep = bool(CFG.get("report")) and tag == "f"
    def mk():
        P = Prog(truemax); n0 = body(P); assert len(P.free) == NPOOL
        if CFG.get("share", 1): P.shr = P.share(); mk.shr = P.shr
        for o in P.ops[n0:]: o.pin = True
        for i_, o in enumerate(P.ops): o.late = i_ >= P.cut
        for o in P.ops:
            if o.kind in ("VL", "DW"): o.pin = True
        [o for o in P.ops if o.kind == "M16"][-1 - CFG.get("cutm", 8)].pin = True
        return P.ops
    P2 = Prog(truemax); body(P2)
    wb = []
    if CFG.get("wbat") is not None:
        wb = [Item(raw=f"s_cmp_lg_u32 s{sCnt}, s{sWb}"), Item(raw=f"s_cbranch_scc1 L_nowb{tag}"), Item(raw="buffer_wbl2 sc1"), Item(raw=f"L_nowb{tag}:")]
        init += [f"s_mov_b32 s{sWb}, {CFG['wbat']}", f"s_cmp_eq_u32 s{sW}, 0", f"s_cselect_b32 s{sWb}, s{sWb}, 99", f"s_cmp_lt_u32 s2, {CFG.get('wbn', 8)}", f"s_cselect_b32 s{sWb}, s{sWb}, 99"]
    br = stamp_q() + wb + [Item(raw=f"s_cmp_lg_u32 s{sCnt}, 0"), Item(raw=f"s_cbranch_scc1 L_loop{tag}")]
    i2, left, t2, e2 = schedule_loop(alloc_loop(mk, POOL), report=rep, lookahead=CFG.get("la", 0)); i2 = fix_items(i2 + br, i2)
    if tag == "f" and CFG.get("u0", 1):
        import copy
        from sched import bind
        k_ = max(it.op.it for it in i2 if it.op is not None)
        cur = [(n, it.op) for n, it in enumerate(i2) if it.op is not None and it.op.it == k_]
        X = max(n for n, o in cur if not o.late) + 1
        e4regs = [None] * 4; Da = None
        for n, o in cur:
            tg = getattr(o, "tag", None)
            if tg and tg[0] == "e4": e4regs[tg[1]] = int(o.w[0][1:])
            if tg and tg[0] == "Da": Da = int(o.w[0][1:])
        rest = [q for q in POOL if q not in e4regs + [Da]]
        head = []
        for n, o in cur:
            if n < X and o.late:
                c = copy.copy(o); Op._n += 1; c.id = Op._n; c.after = []; c.early = None; c.r = c.r + ["B"]; head.append(c)
        P1 = Prog(truemax); P1.free = collections.deque([0] * (len(rest) - 1)); unit0(P1, e4regs, Da, rest[-1])
        ia, _, _ = schedule2(P1.ops, strict_m=True, pool=rest[:-1])
        i1, t1, e1 = schedule2(bind([it.op for it in ia if it.op is not None], schedule2.vmap) + head, strict_m=True, report=rep)
        i1 = i1 + drain + stamp_q() + [Item(raw=f"s_branch L_entry{tag}")]
        print("   entry at window item", X, "of", len(i2), "model t", i2[X].op.issue if i2[X].op else None, "head ops", len(head), file=sys.stderr)
    else:
        import copy
        PREV = ("S5", "X5", "PV4", "PV5", "D4", "D5", "X4", "X3", "R5", "Q5", "Q5c", "D3", "PV3", "S4")
        X = max(n for n, it in enumerate(i2[:len(i2) // 2]) if it.op is not None and it.op.note == "PV5") + 1
        head = []; seen = set()
        for it in i2[:X]:
            o = it.op
            if o is None or o.kind == "BAR" or o.note in PREV: continue
            c = copy.copy(o); Op._n += 1; c.id = Op._n; c.after = []; c.early = None
            if c.note == "e":
                off = int(c.text.split("offset:")[1])
                c.r = [("Bf" if off in seen else ("Ba", "Be", "Bf")[off // (2 * TILE)]) if x == "B" else x for x in c.r]; seen.add(off)
            elif c.kind == "S" and c.text.startswith("s_add_u32") and (f"s{sT0}" in c.w or f"s{sT1}" in c.w) and f"s{sStP}" in c.r: continue
            elif not (c.note.startswith("K") and c.note[1:2].isdigit()): c.r = c.r + ["B"]
            head.append(c)
        hq = {int(x[1:]) // 4 * 4 for o in head for x in o.r + o.w + o.c if x[0] == "v" and x[1:].isdigit()}
        P1 = Prog(truemax); prologue(P1, tag == 'f')
        h1 = [o for o in head if o.note in ("K0", "K0c", "K1", "K1c") or "Ba" in o.r]
        h2 = [o for o in head if o.note in ("K2", "K2c", "K3", "K3c") or "Be" in o.r]
        h3 = [o for o in head if o.note in ("K4", "K4c", "K5", "K5c") or "Bf" in o.r]
        h4 = [o for o in head if o not in h1 and o not in h2 and o not in h3]
        from sched import build_deps
        build_deps(head); npos = {o.id: n for n, o in enumerate(h1 + h2 + h3 + h4)}
        for o in head:
            for (p_, *_) in o.preds: assert npos[p_.id] < npos[o.id], (p_, o)
        m1, m2, m3 = P1.marks
        ops1 = P1.ops[:m1] + h1 + P1.ops[m1:m2] + h2 + P1.ops[m2:m3] + h3 + P1.ops[m3:] + h4
        i1, t1, e1 = schedule2(ops1, strict_m=False, report=rep)
        i1 = i1 + drain + stamp_q() + [Item(raw=f"s_branch L_entry{tag}")]
    if CFG.get("share", 1): print("   shared turns / chains:", mk.shr, file=sys.stderr)
    P3 = Prog(truemax); epilogue(P3)
    if CFG.get("share", 1): P3.share()
    busy = {int(x[1:]) // 4 * 4 for o in left for x in o.r + o.w + o.c if x[0] == "v" and x[1:].isdigit()}
    pool3 = [q for q in POOL if q not in busy] + [q for q in POOL if q in busy]
    ia, _, _ = schedule2(P3.ops, strict_m=True, pool=POOL)
    vm_ = {k: pool3[POOL.index(p_)] for k, p_ in schedule2.vmap.items()}
    from sched import bind
    i3, t3, e3 = schedule2(left + bind([it.op for it in ia if it.op is not None], vm_), strict_m=True); i3 = fix_items(i2 + br, i3)
    pre3 = []
    kinds = collections.Counter(o.kind for o in P2.ops)
    print(f"[{tag}] model: prologue {t1} (mfma {e1})  loop {t2} (mfma {e2})  epilogue {t3} (mfma {e3})  total {t1 + 8*t2 + t3}  {dict(kinds)}", file=sys.stderr)
    bad = verify(i1 + i2[X:] + br + i2 + br + pre3 + i3)
    i2 = i2[:X] + [Item(raw=f'L_entry{tag}:')] + i2[X:]
    print("verify problems:", bad, file=sys.stderr)
    def filt(items):
        r = []
        for it in items:
            if it.op is not None:
                if CFG["nostore"] and it.op.kind == "VS": it = Item(nop=1)
                elif CFG["nodma"] and it.op.kind == "VL": it = Item(nop=1)
                elif CFG.get("noexp") and it.op.kind == "T": it = Item(nop=2)
                elif CFG.get("novalu") and it.op.kind in ("V", "DPP") and it.op.note: it = Item(nop=1)
                elif CFG.get("nods") and it.op.kind in ("DR", "DW"): it = Item(nop=1)
            r.append(it)
        return r
    an = CFG["annotate"]
    if CFG.get("lst") and tag == "f":
        r = []; nm = 0; mt_ = []; off = CFG["lst"] - 1
        for it in i2:
            r.append(it)
            if it.op is not None and it.op.kind == "M16":
                if nm % 74 == off * 37 and nm // 74 < 8:
                    k = nm // 74; r.append(Item(raw=f"s_memtime s[{76+2*k}:{77+2*k}]")); mt_.append(it.op.issue)
                nm += 1
        r += [Item(raw="s_waitcnt lgkmcnt(0)"), Item(raw=f"s_cmp_eq_u32 s{sCnt}, 3")] + [Item(raw=f"s_cselect_b32 s{60+2*k}, s{76+2*k}, s{60+2*k}") for k in range(8)]
        i2 = r
        print("model stamps:", [x - mt_[0] for x in mt_], file=sys.stderr)
    if CFG["stamps"] == 3 and tag == "f":
        nb = [n for n, it in enumerate(i2) if it.op is not None and it.op.kind == "BAR"][0]
        assert i2[nb - 1].vm is not None
        i2 = i2[:nb - 1] + [Item(raw="s_memtime s[64:65]")] + i2[nb - 1:nb + 1] + [Item(raw="s_memtime s[66:67]")] + i2[nb + 1:]
    out = list(init)
    if CFG.get("pst") and tag == "f":
        nb = [n for n, it in enumerate(i1) if it.op is not None and it.op.kind == "BAR"]
        marks = [0] + [b_ + 1 for b_ in nb] + [len(i1) - 1]
        if CFG["pst"] == 2:
            vw = [n for n, it in enumerate(i1) if it.op is None and it.vm is not None]
            vl = [n for n, it in enumerate(i1) if it.op is not None and it.op.kind in ("VL", "VG")]
            marks = sorted(set([0, vl[0], vl[7] + 1, vl[11] + 1, vl[15] + 1, (vl[15] + vw[0]) // 2, vw[0], vw[0] + 1, vw[1] + 1, vl[19] + 1, vl[23] + 1, nb[0] - 40, nb[0] - 1, nb[0] + 1]))
            print(marks, file=sys.stderr)
        r = []
        for n, it in enumerate(i1):
            if n in marks:
                k = marks.index(n) + 2; r.append(Item(raw=f"s_memtime s[{60+2*k}:{61+2*k}]"))
            r.append(it)
        i1 = r
    for it in i1: out += it.lines(an)
    out += [".p2align 6", f"L_loop{tag}:"]
    for it in filt(i2) + br + pre3 + filt(i3): out += it.lines(an)
    return out

def main():
    out = []
    for l in open("/code/" + NAME + ".s.ref").read().split("\n"):
        if l.startswith("; @launch"): break
        if l.startswith(";"): out.append(l)
    out.append(f"; @launch grid=(256,1,1) block=(256,1,1) lds={LDS_TOTAL}")
    out += """; GENERATED by gen/gen5.py (own generator + list scheduler gen/sched.py) - do not edit by hand
; One workgroup (4 waves, 512 registers each) per CU; wave = (batch stream p, head h); 8 batches per stream.
; Weights of the head live in the 256 AGPRs as 16x16x32 MFMA fragments (Wq pre-multiplied by 0.125*log2(e)).
; e is streamed through an LDS double buffer (LDS-DMA); K^T,Q^T,V -> S^T -> P -> ctx^T chain stays in registers.
; Rows 96..99 of the 8 batches are projected together (two packed 16-row tiles, tables in LDS).
; Softmax guard: the fast path evaluates exp2(s) without a shift and tracks max(l, 1/l) of EVERY row sum l.
; If any row sum of the workgroup leaves [2^-40, 2^40] (so a shift could matter), the workgroup recomputes all
; of its batches in the second copy of the program (after L_fast_end), which subtracts the true row maximum.""".split("\n")
    out += ['.amdgcn_target "amdgcn-amd-amdhsa--gfx950"', ".text", f".globl {NAME}_kernel", ".p2align 8", f".type {NAME}_kernel,@function", f"{NAME}_kernel:"]
    if CFG["stamps"]: out += ["s_memtime s[60:61]", "s_memrealtime s[62:63]"]
    if CFG.get("pst"): out += ["s_memtime s[60:61]"]
    out += ["s_cmp_ge_u32 s2, 256", "s_cbranch_scc1 L_end", "s_load_dwordx8 s[4:11], s[0:1], 0", "s_load_dwordx4 s[12:15], s[0:1], 32"]
    if CFG["pf"]:
        if CFG["pf"] == 1:
            out += ["s_getpc_b64 s[58:59]", "L_pc:", "v_lshlrev_b32 v2, 7, v0", "v_min_u32 v2, L_fast_end-L_pc-4, v2", "global_load_dword v184, v2, s[58:59]"]
        else:
            out += ["s_getpc_b64 s[58:59]", "L_pc:", "s_lshl_b32 s3, s2, 9", "s_and_b32 s3, s3, 0x7000", "v_lshrrev_b32 v2, 3, v0", "v_lshlrev_b32 v2, 7, v2", "v_add_u32 v2, s3, v2",
                    "v_min_u32 v2, L_fast_end-L_pc-4, v2", "global_load_dword v184, v2, s[58:59]"]
    pre = f"""
v_lshrrev_b32 v1, 6, v0
s_mov_b32 s{sC}, {f32(0.125 * math.log2(math.e))}
v_readfirstlane_b32 s{sW}, v1
s_mov_b32 s{sE+2}, {NB * BBATCH}
s_mov_b32 s{sE+3}, 0x20000
s_mov_b32 s{sO+2}, {NB * BBATCH}
s_mov_b32 s{sO+3}, 0x20000
s_mov_b32 s{sWQ+2}, 32768
s_mov_b32 s{sWQ+3}, 0x20000
s_mov_b32 s{sWK+2}, 32768
s_mov_b32 s{sWK+3}, 0x20000
s_mov_b32 s{sWV+2}, 32768
s_mov_b32 s{sWV+3}, 0x20000
s_mov_b32 s{sWR+2}, 32768
s_mov_b32 s{sWR+3}, 0x20000
s_lshr_b32 s{sP}, s{sW}, 1
s_and_b32 s{sH}, s{sW}, 1
s_lshl_b32 s{sB0}, s2, 1
s_add_u32 s{sB0}, s{sB0}, s{sP}
s_mul_i32 s{sB0}, s{sB0}, {BBATCH}
"""
    out += [l for l in pre.split("\n") if l]
    if CFG.get("pst"): out += ["s_memtime s[62:63]"]
    if CFG.get("wpf", 0):
        out += ["s_lshr_b32 s58, s2, 3", "s_and_b32 s58, s58, 3", "s_lshl_b32 s58, s58, 13", "v_and_b32 v3, 63, v0", "v_lshlrev_b32 v3, 7, v3",
                f"s_cmp_ge_u32 s{sW}, 2", "s_cbranch_scc1 L_wpf23", f"s_cmp_eq_u32 s{sW}, 0", "s_cbranch_scc1 L_wpf0",
                f"buffer_load_dword v185, v3, {srd(sWQ)}, s58 offen", "s_branch L_wpfd", "L_wpf0:", f"buffer_load_dword v185, v3, {srd(sWK)}, s58 offen", "s_branch L_wpfd",
                "L_wpf23:", f"s_cmp_eq_u32 s{sW}, 2", "s_cbranch_scc1 L_wpf2", f"buffer_load_dword v185, v3, {srd(sWR)}, s58 offen", "s_branch L_wpfd",
                "L_wpf2:", f"buffer_load_dword v185, v3, {srd(sWV)}, s58 offen", "L_wpfd:"]
    out += program(bool(CFG["truemax"]), "f")
    if CFG["stamps"]:
        for it in [Item(vm=0)] + stamp_q() + stamp_dump(): out += it.lines()
    if CFG.get("lst") or CFG.get("pst"):
        out += ["s_load_dwordx2 s[92:93], s[0:1], 56", "s_waitcnt lgkmcnt(0)", "s_mov_b32 s94, 0x100000", "s_mov_b32 s95, 0x20000",
                "s_lshl_b32 s3, s2, 2", f"s_add_u32 s3, s3, s{sW}", "s_lshl_b32 s3, s3, 8", "v_mov_b32 v2, 0", "s_mov_b64 exec, 1"]
        for n in range(16):
            out += [f"v_mov_b32 v{4+2*n}, s{60+2*n}", f"v_mov_b32 v{5+2*n}, s{60+2*n}", f"buffer_store_dwordx2 v[{4+2*n}:{5+2*n}], v2, s[92:95], s3 offen offset:{8*n}"]
        out += ["s_mov_b64 exec, -1"]
    if CFG["fallback"] and not CFG["truemax"]:
        out += [f"v_mov_b32 v1, {f32(2.0 ** CFG['thr'])}", f"v_cmp_nle_f32 vcc, {v(CHK)}, v1", f"s_lshl_b32 s{sT0}, s{sW}, 2", f"s_add_u32 s{sT0}, s{sT0}, {FLAG}",
                "s_or_b32 s3, vcc_lo, vcc_hi", f"v_mov_b32 v2, s{sT0}", "v_mov_b32 v3, s3", "ds_write_b32 v2, v3", f"v_mov_b32 v2, {FLAG}", "s_waitcnt lgkmcnt(0)", "s_barrier",
                "ds_read_b128 v[4:7], v2", "s_waitcnt lgkmcnt(0)", "v_or_b32 v4, v4, v5", "v_or3_b32 v4, v4, v6, v7", "s_nop 0", "v_readfirstlane_b32 s3, v4", "s_nop 3",
                "s_cmp_eq_u32 s3, 0", "s_cbranch_scc1 L_end", "L_fast_end:", "s_waitcnt vmcnt(0)", "s_barrier"]
        CFG["stamps"] = 0
        out += program(True, "s")
    else:
        out += ["L_fast_end:"]
    out += ["L_end:", "s_endpgm", '.section .rodata,"a"', ".p2align 6", f".amdhsa_kernel {NAME}_kernel",
            "  .amdhsa_next_free_vgpr 512", "  .amdhsa_next_free_sgpr 96", "  .amdhsa_accum_offset 256", "  .amdhsa_group_segment_fixed_size 0",
            "  .amdhsa_kernarg_size 64", "  .amdhsa_user_sgpr_count 2", "  .amdhsa_user_sgpr_kernarg_segment_ptr 1", "  .amdhsa_system_sgpr_workgroup_id_x 1",
            ".end_amdhsa_kernel"]
    open(sys.argv[1], "w").write("\n".join(out) + "\n")

if __name__ == "__main__":
    main()
```

```python
import collections

VALU_KINDS = ("V", "T", "P", "DPP")
MEM_KINDS = ("DR", "DW", "VL", "VS", "VG")
M_KINDS = ("M32", "M16", "SM")

class Op:
    _n = 0
    def __init__(self, text, kind, r=(), w=(), c=(), after=(), note="", cost=None, early=None):
        self.text = text
        self.kind = kind
        self.r = list(r)
        self.w = list(w)
        self.c = list(c)
        self.after = list(after)
        self.note = note
        self.ninst = len([l for l in text.split("\n") if l.strip()])
        if cost is None:
            cost = {"T": 8, "P": 8, "DW": 8, "VS": 8}.get(kind, 4) if self.ninst == 1 else 4 * self.ninst
        self.cost = cost
        self.early = early
        Op._n += 1; self.id = Op._n
    def __repr__(self):
        return f"<{self.kind} {self.text.splitlines()[0]}>"

def is_vreg(x):
    return x[0] in "va" and x[1:].isdigit()
def is_sreg(x):
    return (x[0] == "s" and x[1:].isdigit()) or x in ("vcc",)

def edge(p, q, reg, typ):
    ws = 0; lat = p.cost; cnt = None
    pk, qk = p.kind, q.kind
    if typ == "RAW" or typ == "RAWC":
        if pk in M_KINDS:
            big = pk == "M32"
            if qk in M_KINDS and typ == "RAWC":
                if qk == pk and p.w == q.c and p.text.split()[0] == q.text.split()[0]:
                    ws = 0; lat = 32 if big else 16
                else:
                    ws = 10 if big else 6; lat = 48 if big else 32
            else:
                ws = 12 if big else 8; lat = 56 if big else 40
        elif pk in VALU_KINDS:
            if is_vreg(reg):
                if qk in M_KINDS: ws = 2; lat = p.cost + 8
                elif qk in ("P", "DPP"): ws = 2; lat = p.cost + 8
                elif pk == "T" and qk in VALU_KINDS: ws = 1; lat = p.cost + 4
                if "readfirstlane" in q.text or "readlane" in q.text: ws = max(ws, 1)
            else:
                if qk in VALU_KINDS: ws = 2
                elif qk in ("VL", "VS", "VG"): ws = 5
                elif qk == "S": ws = 2
        elif pk == "S":
            if reg == "m0" and qk in ("VL",): ws = 1
        elif pk == "DR":
            if is_vreg(reg): cnt = "lgkm"; lat = 96
        elif pk == "DW":
            if qk == "BAR": cnt = "lgkm"; lat = 64
        elif pk == "VL":
            cnt = "vm"; lat = 0
        elif pk == "VG":
            cnt = "vm"; lat = 500
        elif pk == "SL":
            cnt = "lgkm0"; lat = 100
    elif typ == "WAW":
        if pk in M_KINDS:
            big = pk == "M32"
            if qk in M_KINDS:
                if not (qk == pk and p.w == q.w): ws = 10 if big else 6
            else:
                ws = 12 if big else 8; lat = 56 if big else 40
        elif pk == "DR" and is_vreg(reg):
            if qk != "DR": cnt = "lgkm"; lat = 128
        elif pk == "VG" and is_vreg(reg):
            cnt = "vm"
    elif typ == "WAR":
        if pk in ("VS", "DW") and is_vreg(reg) and qk not in ("S",): ws = 2
        if pk == "DR" and qk == "BAR": cnt = "lgkm"; lat = 128
    elif typ == "WARC":
        if qk not in M_KINDS: ws = 7 if pk == "M32" else 3
    return ws, lat, cnt

def build_deps(ops, carry=None):
    lastw = {}; readers = collections.defaultdict(list)
    for q in ops:
        d = {}
        def add(p, reg, typ):
            if p is q: return
            ws, lat, cnt = edge(p, q, reg, typ)
            o = d.get(p.id)
            if o is None: d[p.id] = [p, ws, lat, cnt]
            else:
                o[1] = max(o[1], ws); o[2] = max(o[2], lat); o[3] = o[3] or cnt
        for x in q.r:
            if x in lastw: add(lastw[x], x, "RAW")
        for x in q.c:
            if x in lastw: add(lastw[x], x, "RAWC")
        for x in q.w:
            if x in lastw: add(lastw[x], x, "WAW")
            for (p, isc) in readers[x]: add(p, x, "WARC" if isc else "WAR")
        for p in q.after:
            if p.id not in d: d[p.id] = [p, 0, q.delay if getattr(p, "marker", False) and hasattr(q, "delay") else p.cost, None]
        q.preds = list(d.values())
        for x in q.w:
            lastw[x] = q; readers[x] = []
        for x in q.r: readers[x].append((q, False))
        for x in q.c:
            if x not in q.w: readers[x].append((q, True))

def schedule(ops, verbose=False, m_window=64):
    ids = {o.id for o in ops}
    for o in ops:
        o.after = [p for p in o.after if p.id in ids]
    build_deps(ops)
    succ = collections.defaultdict(list)
    for q in ops:
        for (p, ws, lat, cnt) in q.preds: succ[p.id].append((q, lat))
    T = 0
    for o in ops:
        if o.kind in M_KINDS:
            o.ideal = T; T += 32 if o.kind == "M32" else 16
    end = T
    for o in reversed(ops):
        a = end
        for (q, lat) in succ[o.id]: a = min(a, q.alap - lat)
        if o.kind in M_KINDS: a = min(a, o.ideal)
        if o.early: a -= o.early
        o.alap = a
    for i, o in enumerate(ops):
        o.idx = i; o.npred = len(o.preds); o.issue = None; o.pos = None
    ready = [o for o in ops if o.npred == 0]
    out = []
    t = 0; pos = 0
    last_valu_end = -100; last_m = -100; m_free = 0
    def earliest(o):
        b = t
        if o.kind not in ("S", "BAR"): b = max(b, last_m + 8)
        if o.kind in MEM_KINDS: b = max(b, last_valu_end + 8)
        if o.kind in M_KINDS: b = max(b, m_free)
        nops = 0
        for (p, ws, lat, cnt) in o.preds:
            b = max(b, p.issue + lat)
            nops = max(nops, ws - (pos - p.pos - p.ninst))
        if nops > 0: b = max(b, t + 4 * nops)
        return b
    mf_idle = 0
    while ready:
        cand = [(earliest(o), o) for o in ready]
        ms = [(e, o) for (e, o) in cand if o.kind in M_KINDS]
        fs = [(e, o) for (e, o) in cand if o.kind not in M_KINDS]
        pick = None
        mnext = None
        if ms:
            lo = min(o.idx for e, o in ms)
            emin = min(e for e, o in ms)
            mnext = min(((e, o) for (e, o) in ms if e <= emin + 8), key=lambda x: x[1].idx)
        if mnext and mnext[0] <= t:
            pick = mnext
        else:
            lim = mnext[0] if mnext else 1 << 60
            fit = [(e, o) for (e, o) in fs if e + o.cost <= lim + 0]
            if fit:
                emin = min(e for e, o in fit)
                now = [(e, o) for (e, o) in fit if e <= max(t, emin)]
                just_m = out and out[-1].kind in M_KINDS or (len(out) > 1 and out[-1].kind in ("S",) + MEM_KINDS and out[-2].kind in M_KINDS)
                if out and out[-1].kind in M_KINDS:
                    sal = [(e, o) for (e, o) in fit if o.kind == "S" and e <= t]
                    if sal: now = sal
                    else:
                        mem = [(e, o) for (e, o) in fit if o.kind in MEM_KINDS and e <= last_m + 8]
                        if mem: now = mem
                elif just_m:
                    mem = [(e, o) for (e, o) in fit if o.kind in MEM_KINDS and e <= max(t, last_m + 8)]
                    if mem: now = mem
                pick = min(now, key=lambda x: (x[1].alap, x[1].idx))
            elif mnext:
                late = [(e, o) for (e, o) in fs if e <= t and o.alap < mnext[1].alap - 64]
                if late and lim - t >= 4: pick = min(late, key=lambda x: (x[1].alap, x[1].idx))
                else: pick = mnext
            else:
                pick = min(fs, key=lambda x: (x[0], x[1].alap))
        e, o = pick
        nops = 0
        for (p, ws, lat, cnt) in o.preds:
            nops = max(nops, ws - (pos - p.pos - p.ninst))
        if nops > 0: pos += nops
        o.issue = e; o.pos = pos; pos += o.ninst
        if o.kind in M_KINDS:
            mf_idle += max(0, e - m_free)
            last_m = e; m_free = e + (32 if o.kind == "M32" else 16); t = e + 4
        else:
            t = e + o.cost
            if o.kind in VALU_KINDS: last_valu_end = t
        out.append(o); ready.remove(o)
        for (q, lat) in succ[o.id]:
            q.npred -= 1
            if q.npred == 0: ready.append(q)
    assert len(out) == len(ops)
    return out, max(t, m_free), end

def finalize(seq, loop=False, entry_drained=True, annotate=False):
    import copy
    if loop:
        a = [copy.copy(o) for o in seq]; b = [copy.copy(o) for o in seq]
        for i, o in enumerate(a + b):
            Op._n += 1; o.id = Op._n; o.after = []
        full = a + b; start = len(a)
    else:
        full = [copy.copy(o) for o in seq]
        for o in full: o.after = []
        start = 0
    build_deps(full)
    dsn = 0; vmn = 0
    for i, o in enumerate(full):
        o.i = i
        if o.kind in ("DR", "DW"): dsn += o.ninst if o.kind in ("DR", "DW") else 0
        o.dsn = dsn
        if o.kind in ("VL", "VS", "VG"): vmn += 1
        o.vmn = vmn
    waits = collections.defaultdict(dict)
    done_ds = 0; done_vm = 0
    for i, o in enumerate(full):
        nd = 0; nv = 0; prod = None; z = False
        for (p, ws, lat, cnt) in o.preds:
            if cnt == "lgkm" and p.dsn > nd: nd = p.dsn; prod = p
            if cnt == "vm": nv = max(nv, p.vmn)
            if cnt == "lgkm0" and not getattr(p, "waited", False): z = True; p.waited = True
        if z:
            waits[i]["lgkm"] = 1 << 30; done_ds = max(done_ds, full[i-1].dsn if i else 0)
        elif nd > done_ds:
            j = i
            k = i - 1
            while k > prod.i and full[k].kind not in M_KINDS and i - k < 10: k -= 1
            if k > prod.i and full[k].kind in M_KINDS and (k + 1 >= start or i < start):
                same_iter = (prod.i >= start) == (k >= start)
                if (not same_iter) or full[k].issue - prod.issue >= 110: j = k + 1
            waits[j]["lgkm"] = max(waits[j].get("lgkm", 0), nd); done_ds = nd
        if nv > done_vm:
            waits[i]["vm"] = nv; done_vm = nv
    lines = []
    pos = 0
    for i, o in enumerate(full):
        emit = []
        wt = waits.get(i)
        if wt:
            parts = []
            prev_ds = full[i-1].dsn if i else 0
            prev_vm = full[i-1].vmn if i else 0
            if "vm" in wt:
                n = prev_vm - wt["vm"]; assert n >= 0
                parts.append(f"vmcnt({min(n, 63)})")
            if "lgkm" in wt:
                n = max(0, prev_ds - wt["lgkm"])
                parts.append(f"lgkmcnt({min(n, 15)})")
            emit.append("s_waitcnt " + " ".join(parts)); pos += 1
        nops = 0
        for (p, ws, lat, cnt) in o.preds:
            nops = max(nops, ws - (pos - p.fpos - p.ninst))
        while nops > 0:
            n = min(nops, 16); emit.append(f"s_nop {n-1}"); nops -= n; pos += n
        o.fpos = pos; pos += o.ninst
        tl = [l.strip() for l in o.text.split("\n") if l.strip()]
        if annotate: tl[0] += f"    ; t={o.issue} {o.note}"
        emit += tl
        if i >= start: lines += emit
    return lines

class Item:
    def __init__(self, op=None, vm=None, lgkm=None, nop=0, raw=None):
        self.op = op; self.vm = vm; self.lgkm = lgkm; self.nop = nop; self.raw = raw
    def lines(self, annotate=False):
        if self.op is not None:
            tl = [l.strip() for l in self.op.text.split("\n") if l.strip()]
            if annotate: tl[0] += f"    ; t={self.op.issue} {self.op.note}"
            return tl
        if self.raw is not None: return [self.raw]
        if self.nop: return [f"s_nop {self.nop-1}"]
        parts = []
        if self.vm is not None: parts.append(f"vmcnt({self.vm})")
        if self.lgkm is not None: parts.append(f"lgkmcnt({self.lgkm})")
        return ["s_waitcnt " + " ".join(parts)]
    def states(self):
        if self.op is not None: return self.op.ninst
        if self.raw is not None: return 0 if self.raw.rstrip().endswith(":") or self.raw.startswith(".") else 1
        if self.nop: return self.nop
        return 1

def finalize_items(seq, loop=False):
    import copy
    def clone(s):
        r = []
        for o in s:
            c = copy.copy(o); Op._n += 1; c.id = Op._n; c.after = []; c.orig = o; r.append(c)
        return r
    if loop:
        full = clone(seq) + clone(seq); start = len(seq)
    else:
        full = clone(seq); start = 0
    build_deps(full)
    dsn = 0; vmn = 0
    for i, o in enumerate(full):
        o.i = i
        if o.kind in ("DR", "DW"): dsn += 1
        o.dsn = dsn
        if o.kind in ("VL", "VS", "VG"): vmn += 1
        o.vmn = vmn
    waits = collections.defaultdict(dict)
    done_ds = 0; done_vm = 0
    for i, o in enumerate(full):
        nd = 0; nv = 0; prod = None
        for (p, ws, lat, cnt) in o.preds:
            if cnt == "lgkm" and p.dsn > nd: nd = p.dsn; prod = p
            if cnt == "vm": nv = max(nv, p.vmn)
        if nd > done_ds:
            j = i; k = i - 1
            while k > prod.i and full[k].kind not in M_KINDS and i - k < 10: k -= 1
            if k > prod.i and full[k].kind in M_KINDS and (k + 1 > start or i < start):
                same_iter = (prod.i >= start) == (k >= start)
                if (not same_iter) or full[k].issue - prod.issue >= 110: j = k + 1
            waits[j]["lgkm"] = max(waits[j].get("lgkm", 0), nd); done_ds = nd
        if nv > done_vm:
            waits[i]["vm"] = nv; done_vm = nv
    items = []
    pos = 0
    for i, o in enumerate(full):
        emit = []
        wt = waits.get(i)
        if wt:
            prev_ds = full[i-1].dsn if i else 0
            prev_vm = full[i-1].vmn if i else 0
            it = Item()
            if "vm" in wt: it.vm = min(prev_vm - wt["vm"], 63)
            if "lgkm" in wt: it.lgkm = min(max(0, prev_ds - wt["lgkm"]), 15)
            emit.append(it); pos += 1
        nops = 0
        for (p, ws, lat, cnt) in o.preds:
            nops = max(nops, ws - (pos - p.fpos - p.ninst))
        while nops > 0:
            n = min(nops, 16); emit.append(Item(nop=n)); nops -= n; pos += n
        o.fpos = pos; pos += o.ninst
        emit.append(Item(op=o.orig))
        if i >= start: items += emit
    return items

def verify(trace):
    import copy
    ops = []
    pos = 0; dsn = 0; vmn = 0; done_ds = 0; done_vm = 0
    for it in trace:
        if it.op is not None:
            c = copy.copy(it.op); Op._n += 1; c.id = Op._n; c.after = []
            c.fpos = pos; c.done_ds = done_ds; c.done_vm = done_vm
            if c.kind in ("DR", "DW"): dsn += 1
            if c.kind in ("VL", "VS", "VG"): vmn += 1
            c.dsn = dsn; c.vmn = vmn
            ops.append(c)
        elif it.raw is None and not it.nop:
            if it.vm is not None: done_vm = max(done_vm, vmn - it.vm)
            if it.lgkm is not None: done_ds = max(done_ds, dsn - it.lgkm)
        pos += it.states()
    build_deps(ops)
    bad = 0
    for o in ops:
        for (p, ws, lat, cnt) in o.preds:
            if o.fpos - p.fpos - p.ninst < ws:
                print("HAZARD", p, "->", o, "need", ws, "have", o.fpos - p.fpos - p.ninst); bad += 1
            if cnt == "lgkm" and p.dsn > o.done_ds:
                print("LGKM", p, "->", o); bad += 1
            if cnt == "vm" and p.vmn > o.done_vm:
                print("VM", p, "->", o); bad += 1
    return bad

DS_LAT = 84
DS_COV = 0
CRIT_WIN = 6
VBASE = 1000
BACKPACK = True
NOISE = [0, 0]
def schedule2(ops, report=False, strict_m=True, lookahead=0, pool=None):
    ids = {o.id for o in ops}
    for o in ops: o.after = [p for p in o.after if p.id in ids]
    build_deps(ops)
    succ = collections.defaultdict(list)
    for q in ops:
        for (p, ws, lat, cnt) in q.preds: succ[p.id].append((q, lat))
    T = 0; mlist = []
    for o in ops:
        if o.kind in M_KINDS:
            o.ideal = T; T += 32 if o.kind == "M32" else 16; mlist.append(o)
    end = T
    for o in reversed(ops):
        a = end
        for (q, lat) in succ[o.id]: a = min(a, q.alap - lat)
        if o.kind in M_KINDS: a = min(a, o.ideal)
        if o.early: a -= o.early
        o.alap = a
    if BACKPACK:
        import heapq
        nsucc = {o.id: len(succ[o.id]) for o in ops}
        lat_ = {}
        used = collections.defaultdict(int)
        def dl(o):
            a = end
            for (q, lat) in succ[o.id]: a = min(a, lat_[q.id] - lat)
            if o.kind in M_KINDS: a = min(a, o.ideal)
            if o.early: a -= o.early
            return a
        heap = [(-dl(o), -i, o) for i, o in enumerate(ops) if nsucc[o.id] == 0]
        heapq.heapify(heap); pos_ = {o.id: i for i, o in enumerate(ops)}
        while heap:
            d, _, o = heapq.heappop(heap); d = -d
            if o.kind not in M_KINDS and o.kind != "S":
                g = d // 16; c = min(o.cost, 8)
                while used[g] + c > 8: g -= 1
                used[g] += c; d = min(d, g * 16 + 16 - used[g])
            lat_[o.id] = d
            for (p, ws, lat, cnt) in o.preds:
                nsucc[p.id] -= 1
                if nsucc[p.id] == 0: heapq.heappush(heap, (-dl(p), -pos_[p.id], p))
        for o in ops: o.alap = lat_[o.id]
    if NOISE[0]:
        import random
        rnd = random.Random(NOISE[1]); tab = [rnd.uniform(-NOISE[0], NOISE[0]) for _ in range(4096)]
        for i, o in enumerate(ops):
            if hasattr(o, "bi"): o.alap += tab[o.bi % 4096]
    for i, o in enumerate(ops):
        o.idx = i; o.npred = len(o.preds); o.issue = None; o.pos = None
    ready = [o for o in ops if o.npred == 0]
    items = []
    vusers = collections.defaultdict(list)
    for o in ops:
        o.vq = sorted({int(x[1:]) // 4 for x in o.r + o.w + o.c if x[0] == "v" and x[1:].isdigit() and int(x[1:]) >= VBASE})
        for q in o.vq: vusers[q].append(o)
    vorder = sorted(vusers, key=lambda q: (vusers[q][0].idx, q)); vnext = [0]; vmap = {}; vpos = {q: i for i, q in enumerate(vorder)}
    vleft = {q: len(u) for q, u in vusers.items()}
    phold = {p_: None for p_ in (pool or [])}
    def valloc(o):
        newq = [q for q in o.vq if q not in vmap]
        if not newq: return (0, 0, {})
        last = max(vpos[q] for q in newq)
        if last - vnext[0] > 16: return None
        skipped = sum(1 for q in vorder[vnext[0]:last + 1] if q not in vmap)
        if skipped > sum(1 for h in phold.values() if h is None or vleft[h] == 0): return None
        best = {}; eb = 0; nb = 0
        for q in newq:
            opts = []
            for p_, h in phold.items():
                if p_ in best.values() or (h is not None and vleft[h] > 0): continue
                e_ = 0; n_ = 0
                for u in (vusers[h] if h is not None else []):
                    for typ, has in (("WAW", u.w), ("WAR", u.r), ("WARC", u.c)):
                        if any(x[0] == "v" and x[1:].isdigit() and int(x[1:]) // 4 == h for x in has):
                            ws, lat, cnt = edge(u, o, "v0", typ)
                            if typ == "WAW" and u.kind in M_KINDS and o.kind in M_KINDS: ws = 0
                            e_ = max(e_, u.issue + lat); n_ = max(n_, ws - (st["pos"] - u.pos - u.ninst))
                opts.append((max(e_, st["t"] + 4 * max(n_, 0)), p_, e_, n_))
            if not opts: return None
            base = max(st["t"], min(x[0] for x in opts))
            c = min((x for x in opts if x[0] <= base), key=lambda x: x[1])
            best[q] = c[1]; eb = max(eb, c[2]); nb = max(nb, c[3])
        return (eb, nb, best)
    st = dict(t=0, pos=0, lve=-100, lm=-100, lmv=-100, mfree=0)
    ds = []
    cov = [0]
    vm = []; vcov = [0]
    def need(o):
        nd = 0; nv = 0
        for (p, ws, lat, cnt) in o.preds:
            if cnt == "lgkm": nd = max(nd, p.dsn)
            if cnt == "vm": nv = max(nv, p.vmn)
        return nd, nv
    def earliest(o):
        t = st["t"]
        nd, nv = need(o)
        w = 1 if (nd > cov[0] or nv > vcov[0]) else 0
        b = max(t + 4 * w, getattr(o, "nb", 0))
        if o.kind not in ("S", "BAR"): b = max(b, st["lm"] + 8)
        if o.kind in VALU_KINDS: b = max(b, st["lmv"])
        if o.kind in MEM_KINDS: b = max(b, st["lve"] + 8)
        if o.kind in M_KINDS: b = max(b, st["mfree"])
        if getattr(o, "gapafter", False) and st["lm"] < st.get("lvs", -1): b = max(b, st["mfree"] + 8)
        nops = 0
        for (p, ws, lat, cnt) in o.preds:
            if cnt == "lgkm":
                if p.dsn > cov[0]: b = max(b, p.issue + DS_LAT + 4)
            else: b = max(b, p.issue + lat)
            if cnt == "vm": b = max(b, getattr(p, "arrive", 0))
            nops = max(nops, ws - (st["pos"] + w - p.pos - p.ninst))
        if o.vq:
            va = valloc(o)
            if va is None: return 1 << 50
            b = max(b, va[0]); nops = max(nops, va[1])
        if nops > 0: b = max(b, t + 4 * (w + nops))
        return b
    def emit_wait(nd=None, nv=None):
        it = Item()
        if nd is not None: it.lgkm = min(len(ds) - nd, 15); cov[0] = max(cov[0], len(ds) - it.lgkm)
        if nv is not None: it.vm = min(len(vm) - nv, 63); vcov[0] = max(vcov[0], len(vm) - it.vm)
        items.append(it); st["pos"] += 1; st["t"] += 4
    def issue(e, o):
        nd, nv = need(o)
        if nd > cov[0] or nv > vcov[0]:
            emit_wait(nd if nd > cov[0] else None, nv if nv > vcov[0] else None)
        nops = 0
        for (p, ws, lat, cnt) in o.preds: nops = max(nops, ws - (st["pos"] - p.pos - p.ninst))
        assert e < (1 << 49), "allocation deadlock"
        if o.vq:
            va = valloc(o); nops = max(nops, va[1])
            for q, p_ in va[2].items(): vmap[q] = p_; phold[p_] = q
            while vnext[0] < len(vorder) and vorder[vnext[0]] in vmap: vnext[0] += 1
            for q in o.vq: vleft[q] -= 1
        if nops > 0: items.append(Item(nop=nops)); st["pos"] += nops
        o.issue = e; o.pos = st["pos"]; st["pos"] += o.ninst
        if o.kind in M_KINDS:
            st["lm"] = e; st["mfree"] = e + (32 if o.kind == "M32" else 16); st["t"] = e + 4
            st["lmv"] = e + (12 if o.kind == "SM" else 8)
        else:
            st["t"] = e + o.cost
            if o.kind in VALU_KINDS: st["lve"] = st["t"]
            if o.kind == "VS":
                st["mfree"] = max(st["mfree"], max(e, st.get("vsfree", 0)) + 20); st["vsfree"] = max(e, st.get("vsfree", 0)) + 20; st["lvs"] = e
            if o.kind == "BAR": st["t"] = e + 24
        if o.kind in ("DR", "DW"): ds.append(o); o.dsn = len(ds)
        if o.kind in ("VL", "VS", "VG"): vm.append(o); o.vmn = len(vm)
        items.append(Item(op=o)); ready.remove(o)
        for (q, lat) in succ[o.id]:
            q.npred -= 1
            if q.npred == 0: ready.append(q)
    mi = 0
    last_kind = None
    while ready:
        t = st["t"]
        while mi < len(mlist) and mlist[mi].issue is not None: mi += 1
        if items and items[-1].op is not None:
            gl = [o for o in ready if getattr(o, "glue", False) and any(p is items[-1].op for p in o.after[:o.glue])]
            if gl:
                issue(earliest(gl[0]), gl[0]); last_kind = gl[0].kind; continue
        if last_kind in M_KINDS:
            k = cov[0]
            while k < len(ds) and ds[k].issue + DS_LAT <= t: k += 1
            if DS_COV > DS_LAT:
                soon = {id(m) for m in mlist[mi:mi + 2]}
                while k > cov[0] and ds[k - 1].issue + DS_COV > t and not any(q.issue is None and (id(q) in soon or (q.kind not in M_KINDS and ds[k - 1].kind == "DR" and set(q.r) & set(ds[k - 1].w))) for (q, lat) in succ[ds[k - 1].id]): k -= 1
            bar = [o for o in ready if o.kind == "BAR" and earliest(o) <= t + 4]
            if bar:
                issue(earliest(bar[0]), bar[0]); last_kind = "W"; continue
            sal = [o for o in ready if o.kind == "S" and o.ninst == 1 and earliest(o) <= t]
            useful = k > cov[0] and any(x.kind == "DR" for x in ds[cov[0]:k])
            urgent = min((x.alap for x in ds[cov[0]:k] if x.kind == "DR"), default=1 << 60) + DS_LAT
            if useful and (not sal or urgent <= min(o.alap for o in sal)):
                emit_wait(k); last_kind = "W"; continue
            if sal:
                o = min(sal, key=lambda x: (x.alap, x.idx)); issue(t, o); last_kind = "W"; continue
        cand = [(earliest(o), o) for o in ready]
        cand = [(e, o) for (e, o) in cand if e < (1 << 49)]
        ms = [(e, o) for (e, o) in cand if o.kind in M_KINDS]
        fs = [(e, o) for (e, o) in cand if o.kind not in M_KINDS]
        mnext = None
        if ms:
            if strict_m:
                win = set(x.id for x in mlist[mi:mi + 1 + lookahead])
                ms2 = [(e, o) for (e, o) in ms if o.id in win]
            else: ms2 = ms
            if ms2:
                emin = min(e for e, o in ms2)
                mnext = min(((e, o) for (e, o) in ms2 if e <= emin + 8), key=lambda x: x[1].idx)
        def needs_wait(o):
            nd, nv = need(o); return nd > cov[0] or nv > vcov[0]
        if mnext and (mnext[0] <= t or (mnext[0] <= t + 4 and needs_wait(mnext[1]))): pick = mnext
        else:
            lim = mnext[0] if mnext else 1 << 60
            if mnext and needs_wait(mnext[1]): lim -= 4
            crit = {}
            for dist, m in enumerate(mlist[mi:mi + CRIT_WIN]):
                stack = [m]
                while stack:
                    x = stack.pop()
                    for (p, ws, lat, cnt) in x.preds:
                        if p.issue is None and p.id not in crit and p.kind not in M_KINDS:
                            crit[p.id] = dist; stack.append(p)
            if vorder and vnext[0] < len(vorder):
                for u in vusers[vorder[vnext[0]]][:1]:
                    if u.kind not in M_KINDS and u.id not in crit: crit[u.id] = 1
                nfree = sum(1 for h in phold.values() if h is None or vleft[h] == 0)
                if nfree <= 1:
                    held = sorted((h for h in phold.values() if h is not None and vleft[h] > 0 and all(u.kind not in M_KINDS or u.issue is not None for u in vusers[h])), key=lambda h: vleft[h])
                    for h in held[:1]:
                        stack = [u for u in vusers[h] if u.issue is None]
                        while stack:
                            x = stack.pop(); crit[x.id] = min(crit.get(x.id, 99), 1)
                            stack += [p for (p, ws, lat, cnt) in x.preds if p.issue is None and p.kind not in M_KINDS and crit.get(p.id, 99) > 1]
            def key(x): return (crit.get(x[1].id, CRIT_WIN), x[1].alap, x[1].idx)
            fit = [(e, o) for (e, o) in fs if e + min(o.cost, 8) <= lim]
            urg = [(e, o) for (e, o) in fit if getattr(o, "urgent", False) and e <= t + 8]
            if urg: fit = urg
            elif not mnext and t >= st["mfree"] - 4:
                c0 = [(e, o) for (e, o) in fs if crit.get(o.id, 99) == 0 and e <= t + 12]
                if c0: fit = c0
            nons = [(e, o) for (e, o) in fit if not (o.kind == "S" and o.ninst == 1)]
            if mnext and any(e <= max(t, st["lm"] + 8) for (e, o) in nons): fit = nons
            if fit:
                base = max(t, st["lm"] + 8)
                now = [(e, o) for (e, o) in fit if e <= base]
                if not now:
                    emin = min(e for e, o in fit); now = [(e, o) for (e, o) in fit if e <= emin]
                mem = [(e, o) for (e, o) in now if o.kind in MEM_KINDS]
                if mem and last_kind in M_KINDS + ("W",): now = mem
                pick = min(now, key=key)
            elif mnext:
                room = (lim - t) // 4
                want = 0
                for (e, o) in fs:
                    for (p, ws, lat, cnt) in o.preds: want = max(want, ws - (st["pos"] + 1 - p.pos - p.ninst))
                k = min(room, want)
                if k > 0 and last_kind != "N":
                    items.append(Item(nop=k)); st["pos"] += k; st["t"] += 4 * k; last_kind = "N"; continue
                pick = mnext
            elif fs: pick = min(fs, key=lambda x: (x[0], key(x)))
            else: pick = min(ms, key=lambda x: x[1].idx)
        issue(*pick); last_kind = pick[1].kind
    total = max(st["t"], st["mfree"])
    if report:
        seq = sorted(mlist, key=lambda o: o.issue)
        line = []
        for i in range(0, len(seq), 16):
            j = min(i + 16, len(seq) - 1)
            line.append(f"{seq[i].note}:{seq[j].issue - seq[i].issue - 16 * (j - i)}")
        print(" ".join(line))
    schedule2.vmap = vmap
    return items, total, end

def bind(ops, vmap):
    import re, copy
    def ph(n): return vmap[n // 4] + n % 4 if n >= VBASE else n
    def rr(x): return f"v{ph(int(x[1:]))}" if x[0] == "v" and x[1:].isdigit() else x
    m = {}; out = []
    for o in ops:
        c = copy.copy(o); Op._n += 1; c.id = Op._n; m[o.id] = c
        c.text = re.sub(r"v\[(\d+):(\d+)\]", lambda k: f"v[{ph(int(k.group(1)))}:{ph(int(k.group(2)))}]", o.text)
        c.text = re.sub(r"\bv(\d+)\b", lambda k: f"v{ph(int(k.group(1)))}", c.text)
        c.r = [rr(x) for x in o.r]; c.w = [rr(x) for x in o.w]; c.c = [rr(x) for x in o.c]
        out.append(c)
    for c in out: c.after = [m[p.id] for p in c.after if p.id in m]
    return out

def schedule_block(ops, pool, **kw):
    items, t, e = schedule2(ops, pool=pool, **kw)
    seq = [it.op for it in items if it.op is not None]
    return schedule2(bind(seq, schedule2.vmap), **kw)

def alloc_loop(make_body, pool, n=4, lookahead=0):
    allops = []; bodies = []
    for k in range(n):
        b = make_body()
        for i, o in enumerate(b): o.it = k; o.bi = i; o.after0 = list(o.after)
        if k:
            pins = [o for o in bodies[-1] if getattr(o, "pin", False)]
            for o in b: o.after = list(o.after) + pins
        bodies.append(b); allops += b
    items, total, end = schedule2(allops, lookahead=lookahead, pool=pool)
    vmap = dict(schedule2.vmap)
    f = lambda k: min(o.issue for o in bodies[k])
    print("   phase1 period", f(n - 1) - f(n - 2))
    seq = [it.op for it in items if it.op is not None and it.op.it == n - 2]
    for o in seq: o.after = o.after0
    return lambda: bind(seq, vmap)

def fix_items(pre, items):
    import copy
    trace = pre + items
    ops = []
    for n, it in enumerate(trace):
        if it.op is not None:
            c = copy.copy(it.op); Op._n += 1; c.id = Op._n; c.after = []; c.n = n; ops.append(c)
    build_deps(ops)
    byn = {c.n: c for c in ops}
    out = []
    pos = 0; dsn = 0; vmn = 0; done_ds = 0; done_vm = 0
    for n, it in enumerate(trace):
        emit = []
        if it.op is not None:
            c = byn[n]
            nd = max((p.dsn for (p, ws, lat, cnt) in c.preds if cnt == "lgkm"), default=0)
            nv = max((p.vmn for (p, ws, lat, cnt) in c.preds if cnt == "vm"), default=0)
            if n >= len(pre) and (nd > done_ds or nv > done_vm):
                w = Item()
                if nd > done_ds: w.lgkm = min(dsn - nd, 15); done_ds = dsn - w.lgkm
                if nv > done_vm: w.vm = min(vmn - nv, 63); done_vm = vmn - w.vm
                emit.append(w); pos += 1
            nops = max((ws - (pos - p.fpos - p.ninst) for (p, ws, lat, cnt) in c.preds), default=0)
            if n >= len(pre) and nops > 0: emit.append(Item(nop=nops)); pos += nops
            c.fpos = pos
            if c.kind in ("DR", "DW"): dsn += 1
            if c.kind in ("VL", "VS", "VG"): vmn += 1
            c.dsn = dsn; c.vmn = vmn
        elif it.raw is None and not it.nop:
            if it.vm is not None: done_vm = max(done_vm, vmn - it.vm)
            if it.lgkm is not None: done_ds = max(done_ds, dsn - it.lgkm)
        pos += it.states()
        emit.append(it)
        if n >= len(pre): out += emit
    return out


def schedule_loop(make_body, n=4, report=False, lookahead=0):
    allops = []; bodies = []
    for k in range(n):
        b = make_body()
        for i, o in enumerate(b): o.it = k; o.bi = i
        if k:
            pins = [o for o in bodies[-1] if getattr(o, "pin", False)]
            for o in b: o.after = list(o.after) + pins
        bodies.append(b); allops += b
    items, total, end = schedule2(allops, lookahead=lookahead)
    first = {}
    for n_, it in enumerate(items):
        if it.op is not None and it.op.it not in first: first[it.op.it] = n_
    k = n - 2
    def start(j):
        x = first[j]
        while x > 0 and items[x - 1].op is None: x -= 1
        return x
    win = items[start(k):start(k + 1)]
    idx = sorted(it.op.bi for it in win if it.op is not None)
    assert idx == list(range(len(bodies[0]))), "window is not a steady state"
    period = items[first[k + 1]].op.issue - items[first[k]].op.issue
    left = [it.op for it in win if it.op is not None and it.op.it == k - 1]
    assert all(it.op.it in (k - 1, k) for it in win if it.op is not None)
    posn = {it.op.bi: (n_, it.op.it - k) for n_, it in enumerate(win) if it.op is not None}
    L = len(win)
    def when(o): return (o.it - posn[o.bi][1]) * L + posn[o.bi][0]
    for o in allops:
        for (p, ws, lat, cnt) in o.preds:
            assert when(p) < when(o), ("order violated", p, o)
    if report:
        seq = [it.op for it in win if it.op is not None and it.op.kind in M_KINDS]
        line = []
        for i in range(0, len(seq), 16):
            j = min(i + 16, len(seq) - 1)
            line.append(f"{seq[i].note}:{seq[j].issue - seq[i].issue - sum(32 if o.kind == 'M32' else 16 for o in seq[i:j])}")
        print(" ".join(line)); print("leftover ops:", len(left), collections.Counter(o.note for o in left))
    t0 = items[first[k]].op.issue
    import copy
    for it in win:
        if it.op is not None: it.op = copy.copy(it.op); it.op.issue -= t0
    left2 = []
    for o in sorted(left, key=lambda o: o.bi):
        c = copy.copy(o); Op._n += 1; c.id = Op._n; c.after = []; left2.append(c)
    return win, left2, period, end // n
```

```python
import os, sys, math, struct, collections, copy, itertools
ARGV = sys.argv[:]; sys.argv = sys.argv[:2]
import gen5 as old
sys.argv = ARGV
import sched
from sched import Op, Item, schedule2, schedule_loop, alloc_loop, fix_items, verify, bind
from gen5 import v, a, vs, as_, srd, f32, lane_expr, lane_id, select, SRDTXT
from gen5 import sE, sO, sWQ, sWK, sWV, sWR, sC, sW, sP, sH, sB0, sCnt, sStC, sStP, sSo, sLn, sEn, sStr, sT0, sT1, sT2, sT3, sTog, sM, sBits, sRb, sRd
from gen5 import BBATCH, NB, UB, BLK, RG, TILE, BUFSZ, KSTEP, WQ, WK, WV, WR, FT, NAME

CFG = dict(lsp=145, tE1=5700, tE2=6100, u0s=8, lp=2, lpk=2, lp2=1, eh=8, cw=20, bp=0, noise=10, seed=1, annotate=0, stamps=0, nostore=0, nodma=0, ldnt=1, stpol=1,
           fallback=1, pf=1, thr=40, ga=3, gb=3, mq=2, mk=3, m0=3, seam=2, sync=1, d0=12, dgap=20, dm=0)
for a_ in sys.argv[2:]:
    k_, v_ = a_.split("="); CFG[k_] = int(v_)
STPOL = ["", " nt", " sc1", " sc0 sc1", " sc0 nt", " sc1 nt", " sc0 sc1 nt"][CFG["stpol"]]; LDPOL = ["", " nt", " sc1 nt", " sc0 sc1 nt", " sc1", " sc0 nt"][CFG["ldnt"]]
TAB0 = 4 * BUFSZ; US = 1600; TABSZ = 8 * US; ZOFF = 1072; VOFF = 1088; CST = 272
SCR0 = TAB0 + 4 * TABSZ; SCRSZ = 4 * CST
RR0 = SCR0 + 4 * SCRSZ
FLAG = RR0 + 4 * 512
LDS_TOTAL = 163840
assert FLAG + 16 <= LDS_TOTAL and TAB0 % 128 == 0 and TABSZ % 64 == 0 and SCR0 % 16 == 0
WST = 2 * BUFSZ
K0 = 0; V0 = 48; KRS = 96; VR = 100; QF = 104; PBUF = (112, 128); RES = (144, 160); OBLK = 176; ONES = 192; POOL0 = 196; NPOOL = 11
aE, aDMA, aST, aKr, aVr, aQa, aPw, aPr, aCw, aLw, IDX, SEL0, SEL1, INV, CHK, aFl = range(240, 256)
sBias = 96; sD = 98
POOL = [POOL0 + 4 * i for i in range(NPOOL)]
MK = ("M16", "SM", "M32")

class Prog:
    def __init__(self):
        self.ops = []; self.free = collections.deque(POOL); self.lastm = None; self.nm = 0; self.hook = None; self.fin = {}
    vq = 1000
    stpol = STPOL
    def alloc(self):
        self.free.popleft(); Prog.vq += 4; return Prog.vq
    def release(self, q): self.free.append(0)
    def add(self, *o, **k):
        op = Op(*o, **k); self.ops.append(op); return op
    def _m(self, op):
        self.lastm = op; self.nm += 1
        if self.hook: self.hook(self)
        return op
    def mfma(self, d, A, B, first=False, note=""):
        def t(x): return (v if x[0] == "v" else a)(x[1], 4)
        def r(x): return (vs if x[0] == "v" else as_)(x[1], 4)
        ct, c = ("0", []) if first else (v(d, 4), vs(d, 4))
        op = self.add(f"v_mfma_f32_16x16x32_bf16 {v(d, 4)}, {t(A)}, {t(B)}, {ct}", "M16", r=r(A) + r(B), w=vs(d, 4), c=c, note=note)
        op.mf = (d, A, B, ct)
        return self._m(op)
    def smf(self, d, A, B, abid=0, note=""):
        op = self.add(f"v_smfmac_f32_16x16x64_bf16 {v(d, 4)}, {v(A, 4)}, {v(B, 8)}, {v(IDX)}" + (" abid:1" if abid else ""), "SM", r=vs(A, 4) + vs(B, 8) + [v(IDX)], w=vs(d, 4), c=vs(d, 4), note=note)
        op.mf = (d, ("v", A), ("v", B), "x")
        return self._m(op)
    def m32(self, d, A, B, note=""):
        op = self.add(f"v_mfma_f32_32x32x16_bf16 {v(d, 16)}, {v(A, 4)}, {v(B, 4)}, 0", "M32", r=vs(A, 4) + vs(B, 4), w=vs(d, 16), note=note)
        op.mf = (d, ("v", A), ("v", B), "x")
        return self._m(op)
    def share(self):
        chains = []
        for o in self.ops:
            if o.kind not in MK: continue
            if o.kind == "M16" and chains and chains[-1][-1].kind == "M16" and chains[-1][-1].mf[0] == o.mf[0] and o.mf[3] != "0": chains[-1].append(o)
            else: chains.append([o])
        def opts(c):
            st = [(o.mf[1], o.mf[2]) for o in c]
            if len(st) == 1: return [(0, 0, st)]
            return [(i, j, [st[i]] + [x for k, x in enumerate(st) if k not in (i, j)] + [st[j]]) for i, j in itertools.permutations(range(len(st)), 2)]
        def gain(x, y): return int(x[0] == y[0]) + int(x[1] == y[1])
        allo = [opts(c) for c in chains]
        best = [[0.0 - 1e-3 * (i != 0) for (i, j, q) in allo[0]]]; back = [[None] * len(allo[0])]
        for n in range(1, len(chains)):
            b = []; k_ = []
            for (i, j, q) in allo[n]:
                sc = [best[-1][m] + gain(pq[-1], q[0]) for m, (_, _, pq) in enumerate(allo[n - 1])]
                m = max(range(len(sc)), key=lambda m: sc[m]); b.append(sc[m] - 1e-3 * (i != 0) - 1e-3 * (j != len(q) - 1)); k_.append(m)
            best.append(b); back.append(k_)
        m = max(range(len(best[-1])), key=lambda m: best[-1][m]); tot = best[-1][m]
        for n in range(len(chains) - 1, -1, -1):
            for o, (A, B) in zip(chains[n], allo[n][m][2]):
                if o.kind != "M16": continue
                d, _, _, ct = o.mf
                t = lambda x: (v if x[0] == "v" else a)(x[1], 4)
                r = lambda x: (vs if x[0] == "v" else as_)(x[1], 4)
                o.text = f"v_mfma_f32_16x16x32_bf16 {v(d, 4)}, {t(A)}, {t(B)}, {ct}"; o.r = r(A) + r(B); o.mf = (d, A, B, ct)
            m = back[n][m]
        return round(tot), len(chains)
    def dsr(self, dst, n, addr, off, pseudo=(), note="", ins=None):
        ins = ins or {4: "ds_read_b128", 2: "ds_read_b64", 1: "ds_read_b32"}[n]
        assert 0 <= off < 65536
        return self.add(f"{ins} {v(dst, n)}, {v(addr)} offset:{off}", "DR", r=[v(addr)] + list(pseudo), w=vs(dst, n), note=note)
    def dsw(self, addr, src, n, off, pw=(), pr=(), note="", ins=None):
        ins = ins or {4: "ds_write_b128", 2: "ds_write_b64", 1: "ds_write_b32"}[n]
        assert 0 <= off < 65536
        return self.add(f"{ins} {v(addr)}, {v(src, n)} offset:{off}", "DW", r=[v(addr)] + vs(src, n) + list(pr), w=list(pw), note=note, cost={4: 28, 2: 12, 1: 4}[n])
    def valu(self, text, r, w, kind="V", **k): return self.add(text, kind, r=r, w=w, **k)
    def op2(self, ins, d, x, y, note="", kind="V"):
        return self.valu(f"{ins} {v(d)}, {v(x)}, {v(y)}", [v(x), v(y)], [v(d)], kind=kind, note=note)
    def cvt(self, d, x, y, note=""): return self.op2("v_cvt_pk_bf16_f32", d, x, y, note)
    def exp(self, x, note=""): return self.valu(f"v_exp_f32 {v(x)}, {v(x)}", [v(x)], [v(x)], kind="T", note=note)
    def mov(self, d, val, note=""): return self.valu(f"v_mov_b32 {v(d)}, {val}", [], [v(d)], note=note)
    def mov2(self, d, val="0", note=""):
        o = self.valu(f"v_mov_b64 {v(d, 2)}, {val}", [], vs(d, 2), note=note); self.hold(o, CFG.get("zh", 6)); return o
    def hold(self, o, k):
        ms = [x for x in self.ops if x.kind in MK]
        if len(ms) > k: o.after = list(o.after) + [ms[-1 - k]]
    def salu(self, text, r=(), w=(), **k): return self.add(text, "S", r=list(r), w=list(w), **k)

class ESet:
    def __init__(self, P, t, pseudo, note, fixed=None, tag=None):
        self.fixed = fixed; self.fr = []
        for ks in range(4):
            q = P.alloc() if fixed is None else fixed[ks]
            o = P.dsr(q, 4, aE, t * TILE + ks * KSTEP, pseudo, note); self.fr.append(q)
            o.tag = (tag, ks); P.hold(o, CFG["eh"])
    def __getitem__(self, ks): return self.fr[ks]
def eload(P, t, pseudo, note="e", fixed=None, tag=None): return ESet(P, t, pseudo, note, fixed, tag)
def efree(P, e):
    if e.fixed is None:
        for q in e.fr: P.release(q)

def chain(P, W, mt, fr, e_is_A, d, note):
    for n_, ks in enumerate([3, 2, 1, 0] if mt & 1 else [0, 1, 2, 3]):
        w = ("a", W + (mt * 4 + ks) * 4)
        A, B = (("v", fr[ks]), w) if e_is_A else (w, ("v", fr[ks]))
        P.mfma(d, A, B, first=(n_ == 0), note=note)
def pchain(P, W, mt, fr, e_is_A, dst, note, dst1=None):
    d = P.alloc(); chain(P, W, mt, fr, e_is_A, d, note)
    P.cvt(dst, d, d + 1, note + "c"); P.cvt(dst + 1 if dst1 is None else dst1, d + 2, d + 3, note + "c"); P.release(d)
def kch(P, t, mt, fr): pchain(P, WK, mt, fr, False, K0 + 8 * t + 2 * mt, f"K{t}")
def qch(P, mt, fr, tau): pchain(P, WQ, mt, fr, False, QF + 2 * mt, f"Q{tau}")
def vch(P, t, mt, fr): pchain(P, WV, mt, fr, True, V0 + 16 * (t >> 1) + 4 * mt + 2 * (t & 1), f"V{t}")
def rch(P, mt, fr, tau): chain(P, WR, mt, fr, False, RES[tau & 1] + 4 * mt, f"R{tau}")
def MTO(k): return [3, 2, 1, 0] if k & 1 else [0, 1, 2, 3]

def sc(P, tau, gs):
    pb = PBUF[tau & 1]; n = f"X{tau}"
    for g in gs:
        d = P.alloc()
        if g < 6:
            for ks in range(2): P.mfma(d, ("v", K0 + 8 * g + 4 * ks), ("v", QF + 4 * ks), first=(ks == 0), note=f"S{tau}")
            for i in range(4): P.exp(d + i, n)
            dst = pb + 4 * (g >> 1) + 2 * (g & 1)
            P.cvt(dst, d, d + 1, n); P.cvt(dst + 1, d + 2, d + 3, n)
        else:
            for i in (0, 2): P.mov2(d + i, f"s[{sBias}:{sBias+1}]", n)
            P.smf(d, KRS, QF, note=f"S{tau}")
            for i in (0, 2): P.op2("v_add_f32", d + i, d + i, d + i + 1, n); P.exp(d + i, n)
            for i, sel in enumerate((SEL0, SEL1)):
                P.valu(f"v_perm_b32 {v(pb + 12 + i)}, {v(d + 2)}, {v(d)}, {v(sel)}", [v(d), v(d + 2), v(sel)], [v(pb + 12 + i)], note=n)
        P.release(d)
def lsum(P, tau):
    pb = PBUF[tau & 1]; n = f"L{tau}"
    d = P.alloc(); P.mov2(d, "0", n)
    P.smf(d, ONES, pb, note=n); P.smf(d, ONES, pb + 8, abid=1, note=n)
    P.op2("v_add_f32", d, d, d + 1, n)
    P.valu(f"v_rcp_f32 {v(INV)}, {v(d)}", [v(d)], [v(INV)], kind="T", note=n, early=CFG.get("fe", 100))
    P.valu(f"v_max3_f32 {v(CHK)}, {v(CHK)}, {v(d)}, {v(INV)}", [v(CHK), v(d), v(INV)], [v(CHK)], note=n)
    P.release(d)

def pack_half(P, r, half, note):
    b = r + 8 * half
    for k in range(4): P.cvt(b + k, b + 2 * k, b + 2 * k + 1, note)
    return [P.valu(f"v_pk_max_i16 {v(b+k)}, {v(b+k)}, 0", [v(b + k)], [v(b + k)], note=note) for k in range(4)]
def stores(P, r, sreg, vaddr, note, after=()):
    o = None
    for half in range(2):
        b = r + 8 * half
        o = P.add(f"buffer_store_dwordx4 {v(b, 4)}, {v(vaddr)}, {srd(sO)}, s{sreg} offen offset:{half * 64}{P.stpol}", "VS", r=vs(b, 4) + [v(vaddr), f"s{sreg}"], note=note, cost=(24, 4)[half],
                  after=list(after) if o is None else [o])
        o.urgent = True
        if half or (len(after) == 1 and after[0].kind == "M32"): o.glue = 1
    return o
def pv(P, tau, mts):
    pb = PBUF[tau & 1]; r = RES[tau & 1]
    for mt in mts:
        d = OBLK + 4 * mt
        for kp in range(3): P.mfma(d, ("v", V0 + 16 * kp + 4 * mt), ("v", pb + 4 * kp), note=f"PV{tau}")
        for i in range(4):
            x = r + 4 * mt + i
            P.valu(f"v_fmac_f32 {v(x)}, {v(d+i)}, {v(INV)}", [v(x), v(d + i), v(INV)], [v(x)], note=f"D{tau}")
        if mt & 1: P.fin.setdefault(tau, []).extend(pack_half(P, r, mt >> 1, f"D{tau}"))
def m32st(P, tau, prev=None, sbase=None, pre=None):
    o = None
    if prev is not None:
        st = (sT0, sT1)[prev & 1]
        s_ = P.salu(f"s_add_u32 s{st}, s{sbase}, {FT[prev] * 4096}", r=[f"s{sbase}"], w=[f"s{st}"])
    aft = P.fin.pop(prev) + [s_] if prev is not None else []
    if pre: aft += pre(P)
    if tau is not None:
        hk = P.hook; P.hook = None
        o = P.m32(OBLK, VR, PBUF[tau & 1] + 12, note=f"PV{tau}"); o.after = list(aft); aft = [o]
        P.hook = hk
    if prev is not None: o = stores(P, RES[prev & 1], st, aST, f"D{prev}", aft)
    return o

class Rem:
    def __init__(self, P): self.P = P
    def ld(self):
        P = self.P; self.a = P.alloc(); P.hold(P.dsr(self.a, 4, aQa, 0, ["L:Qtab"], "Srem"), 8)
    def s(self, par):
        P = self.P
        if par == 0:
            for t in range(6): P.mov2(OBLK + 2 * t, "0", "Xrem")
        for t in range(par, 6, 2): P.smf(OBLK + 2 * t, self.a, K0 + 8 * t, note="Srem")
        if par: P.release(self.a)
    def soft(self):
        P = self.P; n = "Xrem"; l = OBLK + 12
        for t in range(6):
            x = OBLK + 2 * t; P.op2("v_add_f32", x, x, x + 1, n); P.exp(x, n)
        P.op2("v_add_f32", l, OBLK, OBLK + 2, n)
        for t in range(2, 6): P.op2("v_add_f32", l, l, OBLK + 2 * t, n)
        for rot in (8, 4):
            P.valu(f"v_add_f32_dpp {v(l)}, {v(l)}, {v(l)} row_ror:{rot} row_mask:0xf bank_mask:0xf", [v(l)], [v(l)], kind="DPP", note=n)
        P.dsw(aLw, l, 1, 0, pw=["L:Qtab", "L:Ktab"], note=n)
        for kp in range(3):
            x = OBLK + 4 * kp; P.cvt(x + 1, x, x + 2, n)
            P.dsw(aPw, x + 1, 1, kp * CST, pw=["L:Ps"], note=n, ins="ds_write_b16")
            P.dsw(aPw, x + 1, 1, kp * CST + 4, pw=["L:Ps"], note=n, ins="ds_write_b16_d16_hi")
    def ldp(self):
        P = self.P; self.b = [P.alloc() for _ in range(3)]
        for kp in range(3): P.hold(P.dsr(self.b[kp], 4, aPr, kp * CST, ["L:Ps"], "PVrem"), 4)
    def pv(self):
        P = self.P; n = "PVrem"
        for s_ in range(2):
            d = P.alloc()
            for i in (0, 2): P.mov2(d + i, "0", n)
            for kp in ((0, 1, 2), (2, 1, 0))[s_]: P.smf(d, self.b[kp], V0 + 16 * kp + 8 * s_, note=n)
            for i in (0, 2): P.op2("v_add_f32", d + i, d + i, d + i + 1, n)
            P.add(f"ds_write2_b32 {v(aCw)}, {v(d)}, {v(d + 2)} offset0:{32 * s_} offset1:{32 * s_ + 16}", "DW", r=[v(aCw), v(d), v(d + 2)], w=["L:Qtab", "L:Ktab"], note=n, cost=8)
            P.release(d)
        for q in self.b: P.release(q)

def dma_setup(P, i, pr):
    o = [P.salu(f"s_add_u32 m0, s{sLn}, {2 * i * TILE}", r=[f"s{sLn}"] + pr, w=["m0"])]
    if i == 0: o.append(P.salu(f"s_mov_b32 s{sD}, s{sEn}", r=[f"s{sEn}"] + pr, w=[f"s{sD}"]))
    else: o.append(P.salu(f"s_add_u32 s{sD}, s{sD}, s{sSo}", r=[f"s{sD}", f"s{sSo}"] + pr, w=[f"s{sD}"]))
    for k in range(1, 4): o.append(P.salu(f"s_add_u32 s{sD+k}, s{sD+k-1}, s{sStr}", r=[f"s{sD+k-1}", f"s{sStr}"] + pr, w=[f"s{sD+k}"]))
    for x in o: x.early = 20000
    return o
def dma(P, k, pr, after, cost):
    o = P.add(f"buffer_load_dwordx4 {v(aDMA)}, {srd(sE)}, s{sD+k} offen offset:{k * BLK}{LDPOL} lds", "VL", r=[v(aDMA), "m0", f"s{sD+k}"] + pr, w=["dma"], note="dma", after=after, cost=cost)
    o.early = 20000; o.urgent = True; o.glue = 1
    return o
def dma_spread(P, i, ks, pr, gap=1):
    ks = list(ks)
    if ks[0] == 0:
        su = dma_setup(P, i, pr); del P.ops[-5:]; n_ = P.ops.index(P.lastm); P.ops[n_:n_] = su; P.lastm.after = list(P.lastm.after) + su
    n0 = P.nm
    def hook(P_):
        if (P_.nm - n0) % gap == 0:
            dma(P_, ks.pop(0), pr, [P_.lastm], 8)
            if not ks: P_.hook = None
    assert P.hook is None
    P.hook = hook; hook(P)

def remops(P):
    P.dsr(KRS, 4, aKr, 0, ["L:Ktab"], "KR")
    P.add(f"ds_read2_b32 {v(VR, 2)}, {v(aVr)} offset0:0 offset1:8", "DR", r=[v(aVr), "L:Vtab"], w=vs(VR, 2), note="VR")

def signal(P):
    q = P.alloc()
    P.hold(P.valu(f"v_mov_b32 {v(q)}, s{sCnt}", [f"s{sCnt}"], [v(q)], note="sig"), 2)
    P.dsw(aPw, q, 1, 3 * CST, pw=["Bs"], pr=["dma"], note="sig", ins="ds_write_b16").early = 500
    P.release(q)
def check(P):
    q = P.alloc()
    o = P.dsr(q, 1, aFl, 0, ["Bs"], "chk", ins="ds_read_u16"); o.delay = CFG.get("cd", 120); o.urgent = True
    P.valu(f"v_cmp_lt_u32 vcc, s{sCnt}, {v(q)}", [f"s{sCnt}", v(q)], ["vcc"], note="chk").urgent = True
    o = P.add("s_cbranch_vccnz L_spin\nL_back:", "S", r=["vcc", v(q), f"s{sCnt}"], w=["B"], note="chk", cost=4); o.ninst = 1
    P.release(q)

def run(P, order, pseudo=lambda t, n: ["B", "Bs"], fixed={}):
    toks = order.split(); E = {}; R = Rem(P); lastW = None; dirn = {}; late = False
    def tile(w): return int(w[1]) if w[0] in "KV" else FT[int(w[1])]
    for n, w in enumerate(toks):
        h, _, arg = w.partition(":")
        if w[0] in "KVQR":
            t = tile(w)
            if h not in dirn:
                dirn[h] = (1 - dirn[lastW]) if lastW and lastW[0] == h[0] else 0
            lastW = h
            for c in (arg or "0123"):
                mt = MTO(dirn[h])[int(c)]
                if h[0] == "K": kch(P, t, mt, E[t])
                elif h[0] == "V": vch(P, t, mt, E[t])
                elif h[0] == "Q": qch(P, mt, E[t], int(h[1]))
                else: rch(P, mt, E[t], int(h[1]))
            used = False
            for x in toks[n + 1:]:
                if x == f"e{t}": break
                if x[0] in "KVQR" and tile(x) == t: used = True
            if not used: efree(P, E.pop(t))
        elif w[0] == "e":
            t = int(w[1]); k = toks[:n].count(w)
            nxt = toks.index("cut") if "cut" in toks else -1
            across = n < nxt and w not in toks[n + 1:nxt] and any(x[0] in "KVQR" and tile(x) == t for x in itertools.takewhile(lambda y: y != w, toks[nxt:]))
            E[t] = eload(P, t, pseudo(t, k), tag="e4" if across else None, fixed=fixed.get(n))
        elif h == "sig":
            if CFG["sync"]:
                P.salu(f"s_sub_u32 s{sCnt}, s{sCnt}, 1", r=[f"s{sCnt}"], w=[f"s{sCnt}"]); signal(P)
        elif h == "rl": R.ld()
        elif h == "r0": R.s(0)
        elif h == "r1": R.s(1); R.soft()
        elif h == "pl": R.ldp()
        elif h == "pr": R.pv()
        elif h == "ko": remops(P)
        elif h == "cut": P.cut = len(P.ops); late = True
        elif w[0] == "s": sc(P, int(h[1]), [int(c) for c in arg])
        elif w[0] == "p": pv(P, int(h[1]), [int(c) for c in (arg or "0123")])
        elif w[0] == "l": lsum(P, int(h[1]))
        elif w[0] == "m":
            tau = int(h[1]); prev = (tau - 1) % 6
            nd = toks[n + 1] if n + 1 < len(toks) and toks[n + 1][0] == "d" else None
            pre = step if tau == 4 else ((lambda P_: dma_setup(P_, int(nd[1]), ["B"])) if nd and nd[3] == "0" else None)
            o = m32st(P, tau, prev, sStP if prev >= 4 else sStC, pre)
            if tau == 4: P.seam = o
            if nd:
                for c in nd[3:]: o = dma(P, int(c), ["B"], [o], 4)
        elif w[0] == "d":
            if toks[n - 1][0] != "m": dma_spread(P, int(h[1]), [int(c) for c in arg], ["B"])
        else: raise ValueError(w)
    assert not E, E

ORDERS = {
 0: """e0 s5:6012 K0:012 e1 K0:3 p4 s5:34 K1:012 e2 K1:3 m5 K2:012 e3 K2:3 s5:5 K3:012 e4 K3:3 K4:01 l5 K4:2 e5 K4:3 p5 K5 ko
       Q0:01 rl Q0:23 r0 R0:0 r1 R0:123 s0:601 V5:012 e1 V5:3 s0:23 V1:012 e0 V1:3 m0 s0:45 V0 Q1 l0 R1:01 e2 R1:23 s1:601 V2:012 e3 V2:3 s1:23 V3:012 e4 V3:3 V4 s1:45 cut
       p0 Q2:012 pl Q2:3 pr s2:6012 m1 R2:01 l1 R2:23 p1:01 e1 p1:23 s2:345 Q3:012 m2 Q3:3 R3:012 l2 R3:3 s3:6012 p2:01 e2 p2:23 s3:345 Q4:012 m3 Q4:3
       R4:012 l3 R4:3 s4:6012 p3:01 e3 p3:23 s4:345 Q5:012 m4 Q5:3 R5:012 l4 R5:3""",
 1: """e0 s5:601 K0:0 d0:01 K0:1 l4 K0:2 e1 K0:3 p4 s5:23 K1:012 e2 K1:3 K2:012 m5 d0:23 e3 K2:3 s5:45 K3:01 d1:01 K3:2 e4 K3:3 K4:012 e5 l5 K4:3 p5 K5 ko
       Q0:01 rl d1:23 Q0:23 r0 R0:0 r1 R0:123 s0:60 V5:012 e1 V5:3 s0:123 V1:012 e0 V1:3 m0 d2:0123 s0:45 V0 Q1 l0 R1:01 e2 R1:23 s1:601 V2:012 e3 V2:3 s1:23 V3:012 e4 V3:3 V4 s1:45 cut
       p0 Q2:012 pl Q2:3 pr s2:6012 m1 R2:01 l1 R2:23 p1:01 e1 p1:23 s2:345 Q3:012 m2 Q3:3 R3:012 l2 R3:3 s3:6012 p2:01 e2 p2:23 s3:345 Q4:012 m3 Q4:3
       R4 l3 s4:6012 p3:01 e3 p3:23 sig s4:345 Q5:012 m4 Q5:3 R5""",
}
ORDER = open(os.environ["ORDER"]).read() if os.environ.get("ORDER") else ORDERS[CFG.get("ord", 0)]

def body(P):
    if CFG["sync"]:
        o = P.add("s_nop 0", "S", cost=0); o.marker = True
        check(P)
    else: P.add("s_barrier", "BAR", r=["dma"], w=["B"])
    run(P, ORDER)
    assert P.hook is None and sum(o.kind == "VL" for o in P.ops[:P.cut]) == 12

def step(P):
    n0 = len(P.ops)
    P.valu(f"v_add_u32 {v(aE)}, s{sTog}, {v(aE)}", [v(aE), f"s{sTog}"], [v(aE)])
    P.salu(f"s_sub_u32 s{sLn}, s{sLn}, s{sTog}", r=[f"s{sLn}", f"s{sTog}"], w=[f"s{sLn}"])
    P.salu(f"s_sub_u32 s{sTog}, 0, s{sTog}", r=[f"s{sTog}"], w=[f"s{sTog}"])
    for x in (aKr, aVr, aQa, aCw, aLw):
        P.valu(f"v_add_u32 {v(x)}, {US}, {v(x)}", [v(x)], [v(x)])
    P.salu(f"s_mov_b32 s{sStP}, s{sStC}", r=[f"s{sStC}"], w=[f"s{sStP}"])
    P.salu(f"s_add_u32 s{sStC}, s{sStC}, {UB}", r=[f"s{sStC}"], w=[f"s{sStC}"])
    if not CFG["sync"]: P.salu(f"s_sub_u32 s{sCnt}, s{sCnt}, 1", r=[f"s{sCnt}"], w=[f"s{sCnt}"])
    P.salu(f"s_add_u32 s{sEn}, s{sEn}, {UB}", r=[f"s{sEn}"], w=[f"s{sEn}"])
    P.salu(f"s_bfe_i32 s{sM}, s{sBits}, 0x10000", r=[f"s{sBits}"], w=[f"s{sM}"])
    P.salu(f"s_lshr_b32 s{sBits}, s{sBits}, 1", r=[f"s{sBits}"], w=[f"s{sBits}"])
    P.salu(f"s_and_b32 s{sStr}, s{sM}, {UB - 1024}", r=[f"s{sM}"], w=[f"s{sStr}"])
    P.salu(f"s_lshl3_add_u32 s{sSo}, s{sStr}, 8192", r=[f"s{sStr}"], w=[f"s{sSo}"])
    P.salu(f"s_sub_u32 s{sStr}, s{sStr}, {BLK - 1024}", r=[f"s{sStr}"], w=[f"s{sStr}"])
    P.salu(f"s_and_b32 s{sT2}, s{sM}, s{sRd}", r=[f"s{sM}", f"s{sRd}"], w=[f"s{sT2}"])
    P.salu(f"s_sub_u32 s{sEn}, s{sEn}, s{sT2}", r=[f"s{sEn}", f"s{sT2}"], w=[f"s{sEn}"])
    for o in P.ops[n0:]: o.pin = True
    return P.ops[n0:]

def xor_in(P, dst, L, t, terms):
    for (off, w, sh) in terms:
        P.valu(f"v_bfe_u32 {v(t)}, {v(L)}, {off}, {w}", [v(L)], [v(t)])
        P.valu(f"v_lshlrev_b32 {v(t)}, {sh}, {v(t)}", [v(t)], [v(t)])
        P.valu(f"v_xor_b32 {v(dst)}, {v(t)}, {v(dst)}", [v(t), v(dst)], [v(dst)])
def lanemask(fn):
    m = 0
    for l in range(64):
        if fn(l): m |= 1 << l
    return m
def selc(P, dst, t, ctrue, cfalse, fn):
    P.mov(dst, cfalse); P.mov(t, ctrue); select(P, dst, t, dst, fn)

def unit0(P, e4regs, TQ):
    E = 1 << 20
    SV = WST; SQ = TAB0 - 16384; SK = SQ + 32768
    assert SV + 32768 <= SQ and SK + 32768 <= SCR0 and SV % 128 == 0 and SQ % 128 == 0
    ER = V0; KP = V0 + 32; QP = V0 + 40
    WQR = PBUF[0]; WRR = RES[0]
    L, t, vK0, vK1, vQ0, vQ1, y0, y1 = range(OBLK, OBLK + 8)
    aT = [OBLK + 8 + i for i in range(4)]; aV = [OBLK + 12, OBLK + 13]; vWr, vLin = OBLK + 14, OBLK + 15
    vV, aVw = TQ, TQ + 1; aTabW = [TQ + 2, TQ + 3]; aZw = KRS; aRw = INV
    sTab, sX = sT0, sT1
    o = P.salu(SRDTXT, r=["s4", "s5"], w=["srd"]); o.nb = CFG.get("knb", 200); o.urgent = True
    nld = [0]
    sp = CFG["lsp"]
    ARR = [1000] * 8 + [2400] * 12 + [CFG.get("tR", 3300)] * 4 + [CFG.get("tV", 3800)] * 8 + [CFG.get("tO", 5000)] * 8 + [CFG["tE1"]] * 4 + [CFG["tE2"]] * 4
    def timed(o):
        n = nld[0]; nld[0] += 1
        o.r = o.r + ["srd"]; o.nb = 350 + 25 * n if n < 20 else CFG.get("nb0", 1000) + sp * (n - 20); o.arrive = ARR[n]; o.urgent = True; o.early = E
        return o
    def V(text, r, w): return P.valu(text, r, w, early=E)
    lane_id(P, L)
    V(f"v_lshlrev_b32 {v(vLin)}, 4, {v(L)}", [v(L)], [v(vLin)])
    V(f"v_and_b32 {v(t)}, 16, {v(L)}", [v(L)], [v(t)])
    V(f"v_lshlrev_b32 {v(vV)}, 2, {v(t)}", [v(t)], [v(vV)])
    V(f"v_lshlrev_b32 {v(t)}, 1, {v(t)}", [v(t)], [v(t)])
    V(f"v_xor_b32 {v(vK0)}, {v(vLin)}, {v(t)}", [v(vLin), v(t)], [v(vK0)])
    V(f"v_xor_b32 {v(vV)}, {v(vLin)}, {v(vV)}", [v(vLin), v(vV)], [v(vV)])
    V(f"v_xor_b32 {v(vK1)}, 64, {v(vK0)}", [v(vK0)], [v(vK1)])
    P.salu(f"s_lshl_b32 s{sT2}, s{sW}, 13", r=[f"s{sW}"], w=[f"s{sT2}"], early=E)
    P.salu(f"s_add_u32 s{sM}, s{sT2}, 4096", r=[f"s{sT2}"], w=[f"s{sM}"], early=E)
    def wdma(srdn, lds, pw, vo):
        for j4 in range(2):
            so = (sT2, sM)[j4]
            P.salu(f"s_add_u32 m0, s{so}, {lds}", r=[f"s{so}"], w=["m0"], early=E).urgent = True
            for j in range(4):
                timed(P.add(f"buffer_load_dwordx4 {v(vo[j & 1])}, {srd(srdn)}, s{so} offen offset:{j*1024} lds", "VL", r=[v(vo[j & 1]), "m0", f"s{so}"], w=[pw, "ord"], note="wdma"))
    def gl(dst, srdn):
        for j in range(8):
            so = (sT2, sM)[j >> 2]
            timed(P.add(f"buffer_load_dwordx4 {v(dst + 4 * j, 4)}, {v(vLin)}, {srd(srdn)}, s{so} offen offset:{(j & 3) * 1024}", "VG", r=[v(vLin), f"s{so}"], w=vs(dst + 4 * j, 4) + ["ord"], note="gl"))
    def edma(js, src, pw, lb=sLn, sb=sT3, pr=[]):
        for j in js:
            P.salu(f"s_add_u32 m0, s{lb}, {j * RG}", r=[f"s{lb}"] + pr, w=["m0"], early=E).urgent = True
            P.salu(f"s_add_u32 s{sSo}, s{sb}, {src(j)}", r=[f"s{sb}"] + pr, w=[f"s{sSo}"], early=E).urgent = True
            timed(P.add(f"buffer_load_dwordx4 {v(aDMA)}, {srd(sE)}, s{sSo} offen{LDPOL} lds", "VL", r=[v(aDMA), "m0", f"s{sSo}"] + pr, w=[pw, "ord"], note="dma"))
    lane_expr(P, aDMA, L, t, [(0, 2, 16), (4, 2, 64), (2, 2, 256)])
    P.salu(f"s_lshl_b32 s{sT3}, s{sH}, 10", r=[f"s{sH}"], w=[f"s{sT3}"])
    P.salu(f"s_add_u32 s{sT3}, s{sT3}, s{sB0}", r=[f"s{sT3}", f"s{sB0}"], w=[f"s{sT3}"])
    P.salu(f"s_lshl_b32 s{sEn}, s{sH}, 12\ns_add_u32 s{sEn}, s{sEn}, s{sB0}\ns_add_u32 s{sEn}, s{sEn}, {UB}", r=[f"s{sH}", f"s{sB0}"], w=[f"s{sEn}"])
    P.salu(f"s_mul_i32 s{sLn}, s{sP}, {BUFSZ}\ns_mul_i32 s{sX}, s{sH}, {BLK}\ns_add_u32 s{sLn}, s{sLn}, s{sX}", r=[f"s{sP}", f"s{sH}"], w=[f"s{sLn}", f"s{sX}"])
    P.salu(f"s_mov_b32 s{sStr}, {1024 - BLK}", w=[f"s{sStr}"])
    P.salu(f"s_mul_i32 s{sRb}, s{sH}, {UB}\ns_add_u32 s{sRb}, s{sRb}, s{sB0}\ns_add_u32 s{sRb}, s{sRb}, {96 * 256}\ns_mul_i32 s{sRd}, s{sH}, {4096 - 4 * UB}\ns_add_u32 s{sRd}, s{sRd}, {8 * UB - 96 * 256}",
           r=[f"s{sH}", f"s{sB0}"], w=[f"s{sRb}", f"s{sRd}"])
    gl(WQR, sWQ)
    edma([10, 11, 0, 1], lambda j: j * 2048, "dK")
    wdma(sWK, SK, "dK", (vK0, vK1))
    edma(range(6, 10), lambda j: (j - 6) * 2 * UB, "dR", sb=sRb)
    wdma(sWV, SV, "dV", (vV, vV))
    gl(WRR, sWR)
    edma(range(2, 6), lambda j: j * 2048, "dE1")
    P.salu(f"s_lshl_b32 s{sX}, s{sH}, 14", r=[f"s{sH}"], w=[f"s{sX}"])
    lane_expr(P, aT[0], L, t, [(4, 2, 1024), (2, 2, 128), (3, 1, 32), (4, 1, 64), (0, 2, 8)], const=SQ, sconst=sX)
    for mt in range(1, 4): P.valu(f"v_xor_b32 {v(aT[mt])}, {mt * 32}, {v(aT[0])}", [v(aT[0])], [v(aT[mt])])
    lane_expr(P, aV[0], L, t, [(4, 2, 1024), (2, 2, 128), (3, 1, 64), (0, 2, 16)], const=SV, sconst=sX)
    P.valu(f"v_xor_b32 {v(aV[1])}, 64, {v(aV[0])}", [v(aV[0])], [v(aV[1])])
    P.salu(f"s_mul_i32 s{sX}, s{sP}, {BUFSZ}", r=[f"s{sP}"], w=[f"s{sX}"])
    lane_expr(P, aE, L, t, [(2, 2, BLK), (0, 2, 64), (4, 2, 16)], sconst=sX)
    P.salu(f"s_add_u32 s{sX}, s{sT2}, {SQ}", r=[f"s{sT2}"], w=[f"s{sX}"])
    P.valu(f"v_add_u32 {v(vQ0)}, s{sX}, {v(vK0)}", [v(vK0), f"s{sX}"], [v(vQ0)])
    P.valu(f"v_add_u32 {v(vQ1)}, s{sX}, {v(vK1)}", [v(vK1), f"s{sX}"], [v(vQ1)])
    P.salu(f"s_lshl_b32 s{sX}, s{sW}, 12", r=[f"s{sW}"], w=[f"s{sX}"])
    lane_expr(P, vWr, L, t, [(3, 1, 16384), (4, 2, 128), (2, 1, 64), (5, 1, 32), (0, 2, 8)], const=SV, sconst=sX)
    P.salu(f"s_lshl_b32 s{sX}, s{sH}, 7", r=[f"s{sH}"], w=[f"s{sX}"])
    lane_expr(P, aST, L, t, [(0, 4, 256), (4, 2, 16)], sconst=sX)
    P.salu(f"s_mul_i32 s{sTab}, s{sW}, {TABSZ}\ns_add_u32 s{sTab}, s{sTab}, {TAB0}", r=[f"s{sW}"], w=[f"s{sTab}"])
    lane_expr(P, aVr, L, t, [(3, 2, 128), (2, 1, 64), (0, 2, 8), (5, 1, 4)], const=VOFF, sconst=sTab)
    lane_expr(P, aKr, L, t, [(3, 1, 256), (1, 1, 128), (0, 1, 64), (4, 2, 16)], sconst=sTab); xor_in(P, aKr, L, t, [(3, 1, 5), (1, 1, 4)])
    lane_expr(P, aQa, L, t, [(2, 2, 128), (0, 1, 64), (4, 2, 16)], const=512, sconst=sTab); xor_in(P, aQa, L, t, [(2, 2, 4)])
    lane_expr(P, y0, L, t, [], const=ZOFF, sconst=sTab)
    select(P, aQa, aQa, y0, lambda l: (l & 2) == 0)
    lane_expr(P, aLw, L, t, [(4, 2, CST), (0, 2, 4)], const=256, sconst=sTab)
    lane_expr(P, aCw, L, t, [(4, 2, CST), (0, 4, 4)], sconst=sTab)
    lane_expr(P, aZw, L, t, [(0, 3, US)], const=ZOFF, sconst=sTab)
    lane_expr(P, aTabW[0], L, t, [(2, 2, US), (0, 2, 128), (5, 1, 16), (4, 1, 8)], sconst=sTab); xor_in(P, aTabW[0], L, t, [(0, 2, 4)])
    P.valu(f"v_xor_b32 {v(aTabW[1])}, 32, {v(aTabW[0])}", [v(aTabW[0])], [v(aTabW[1])])
    lane_expr(P, aVw, L, t, [(4, 2, US), (0, 4, 8)], const=VOFF, sconst=sTab)
    P.salu(f"s_mul_i32 s{sX}, s{sW}, {SCRSZ}\ns_add_u32 s{sX}, s{sX}, {SCR0}", r=[f"s{sW}"], w=[f"s{sX}"])
    lane_expr(P, aPw, L, t, [(4, 2, 64), (1, 1, 32), (2, 2, 8), (0, 1, 2)], sconst=sX)
    lane_expr(P, aPr, L, t, [(2, 2, 64), (0, 1, 32), (4, 1, 16)], sconst=sX)
    lane_expr(P, y0, L, t, [], const=256, sconst=sX)
    select(P, aPr, aPr, y0, lambda l: ((l >> 1) & 1) == (l >> 5))
    for i in range(4): P.mov(VR + i, 0)
    lane_expr(P, y0, L, t, [(0, 2, CST)], const=256, sconst=sX)
    P.dsw(y0, VR, 4, 0, pw=["L:Ps"])
    P.mov(y0, 64); P.dsw(aPw, y0, 1, 3 * CST, pw=["dz"], ins="ds_write_b16")
    P.salu(f"s_xor_b32 s{sX}, s{sW}, 1\ns_mul_i32 s{sX}, s{sX}, {SCRSZ}", r=[f"s{sW}"], w=[f"s{sX}"])
    lane_expr(P, aFl, L, t, [], const=SCR0 + 3 * CST, sconst=sX)
    P.salu(f"s_lshl_b32 s{sX}, s{sW}, 9", r=[f"s{sW}"], w=[f"s{sX}"])
    lane_expr(P, aRw, L, t, [(0, 4, 16)], const=RR0, sconst=sX)
    selc(P, ONES, t, "0x3f803f80", 0, lambda l: (l & 2) == 0)
    for i in range(1, 4): P.valu(f"v_mov_b32 {v(ONES + i)}, {v(ONES)}", [v(ONES)], [v(ONES + i)])
    selc(P, IDX, t, "0xeeeeeeee", "0x44444444", lambda l: l & 1)
    P.mov(t, "0xe4eeeeee"); select(P, IDX, t, IDX, lambda l: (l & 1) and l >= 32)
    selc(P, SEL0, t, "0x07060302", "0x0c0c0c0c", lambda l: not (l & 16))
    selc(P, SEL1, t, "0x07060302", "0x0c0c0c0c", lambda l: (l & 16))
    P.mov(CHK, 0)
    def bar(r, w):
        o = P.add("s_barrier", "BAR", r=r, w=w + ["barorder"], early=E); o.urgent = True; return o
    def trload(W, base, vpat, pseudo, e=0):
        for mt in range(4):
            for ks in range(4):
                for jh in range(2):
                    o = W + (mt * 4 + ks) * 4 + 2 * jh
                    addr = aV[mt >> 1] if vpat else aT[mt]
                    off = base + ks * 4096 + jh * 512 + ((mt & 1) * 8 if vpat else 0)
                    P.add(f"ds_read_b64_tr_b16 {a(o, 2)}, {v(addr)} offset:{off}", "DR", r=[v(addr)] + pseudo, w=as_(o, 2), note="tr", early=e)
    for j in range(8):
        for i in range(4):
            x = WQR + 4 * j + i; y = (y0, y1)[i & 1]
            P.valu(f"v_and_b32 {v(y)}, 0xffff0000, {v(x)}", [v(x)], [v(y)])
            P.valu(f"v_lshlrev_b32 {v(x)}, 16, {v(x)}", [v(x)], [v(x)])
            P.valu(f"v_mul_f32 {v(y)}, s{sC}, {v(y)}", [v(y), f"s{sC}"], [v(y)])
            P.valu(f"v_mul_f32 {v(x)}, s{sC}, {v(x)}", [v(x), f"s{sC}"], [v(x)])
            P.cvt(x, x, y)
        P.dsw((vQ0, vQ1)[j & 1], WQR + 4 * j, 4, j * 1024, pw=["dz"])
    for x in [pb + 14 + i for pb in PBUF for i in range(2)]: P.mov(x, 0)
    bar(["dK", "dz"], ["B1"])
    trload(WK, 32768, False, ["B1", "L:k"], E)
    trload(WQ, 0, False, ["B1", "L:k"])
    for mt in range(4): P.valu(f"v_subrev_u32 {v(aT[mt])}, {SQ - SV}, {v(aT[mt])}", [v(aT[mt])], [v(aT[mt])])
    e0 = eload(P, 0, ["B1"]); e5 = eload(P, 5, ["B1"], fixed=e4regs)
    for mt in range(4): kch(P, 0, mt, e0)
    efree(P, e0)
    for mt in MTO(1): kch(P, 5, mt, e5)
    for mt in range(4): qch(P, mt, e5, 0)
    bar(["dR"], ["L:k", "B2"])
    er = [[ER + 16 * z + 4 * ks for ks in range(4)] for z in range(2)]
    for z in range(2):
        for ks in range(4): P.dsr(er[z][ks], 4, aE, (3 + z) * TILE + ks * KSTEP, ["B2", "L:r"], "Erem").early = E
    bar(["dV"], ["L:r", "B3"])
    edma(range(6, 10), lambda j: j * 2048, "dE2", pr=["B3"])
    P.salu(f"s_mul_i32 s{sSo}, s{sH}, {TILE - BLK}\ns_add_u32 s{sLn}, s{sLn}, s{sSo}\ns_add_u32 s{sLn}, s{sLn}, {2*BUFSZ}\ns_mov_b32 s{sSo}, 8192", r=[f"s{sLn}", f"s{sH}"], w=[f"s{sLn}", f"s{sSo}"])
    trload(WV, 0, True, ["B3", "L:v"])
    P.dsw(aZw, VR, 4, 0, pw=["L:Qtab"], pr=["B2"])
    sc(P, 0, [0, 5])
    mrr = lanemask(lambda l: (l >> 4) == ((l >> 2) & 3))
    for z in range(2):
        for (W, X, off, pw, nt) in ((WK, KP, 0, "L:Ktab", "Krem"), (WQ, QP, 512, "L:Qtab", "Qrem"))[::(1, -1)[z]]:
            for mt in MTO(z + (W == WQ)):
                b = X + 4 * (mt >> 1) + (mt & 1)
                pchain(P, W, mt, er[z], False, b, nt, dst1=b + 2)
            for ks in range(2):
                for hf in range(2): P.dsw(aTabW[ks], X + 4 * ks + 2 * hf, 2, z * 4 * US + off + hf * 64, pw=[pw], pr=["B2"])
        if z == 0: P.dsr(KRS, 4, aKr, 0, ["L:Ktab"], "KR")
        else: bar([], ["L:v", "B4"])
        for mt in MTO(z):
            d = P.alloc(); chain(P, WV, mt, er[z], True, d, "Vrem")
            P.cvt(d, d, d + 1); P.cvt(d + 1, d + 2, d + 3)
            P.dsw(aVw, d, 2, z * 4 * US + mt * 128, pw=["L:Vtab"], pr=["B2"]); P.release(d)
            if mt == MTO(z)[0]:
                d = P.alloc()
                for ks in range(2): P.mfma(d, ("v", KP + 4 * ks), ("v", QP + 4 * ks), first=(ks == 0), note="Srr")
                for i in range(4): P.exp(d + i)
                P.op2("v_add_f32", y0, d, d + 1); P.op2("v_add_f32", y1, d + 2, d + 3)
                P.cvt(d, d, d + 1); P.cvt(d + 1, d + 2, d + 3); P.op2("v_add_f32", d + 2, y0, y1)
                P.add(f"s_mov_b32 exec_lo, 0x{mrr & 0xffffffff:x}\ns_mov_b32 exec_hi, 0x{mrr >> 32:x}\nds_write_b96 {v(aRw)}, {v(d, 3)} offset:{z * 256}\ns_mov_b64 exec, -1", "DW",
                      r=[v(aRw)] + vs(d, 3), w=["L:rr"], cost=32)
                P.release(d)
        if z == 0: sc(P, 0, [6])
    wr = [vWr, aV[0], aV[1], vLin]
    for k in range(1, 4): P.valu(f"v_xor_b32 {v(wr[k])}, {k * 32}, {v(vWr)}", [v(vWr)], [v(wr[k])])
    for j in range(8):
        for u_ in range(2): P.dsw(wr[u_ + 2 * ((j >> 1) & 1)], WRR + 4 * j + 2 * u_, 2, j * 512, pw=["wO"], pr=["B4"])
    bar(["wO"], ["B5"])
    trload(WR, 0, False, ["B5", "L:w"])
    e0 = eload(P, 0, ["B1"])
    for mt in range(4): vch(P, 0, mt, e0)
    efree(P, e0)
    for mt in MTO(1): vch(P, 5, mt, e5)
    for mt in range(4): rch(P, mt, e5, 0)
    bar(["dE1"], ["L:w", "B6", "B"])
    P.add(f"ds_read2_b32 {v(VR, 2)}, {v(aVr)} offset0:0 offset1:8", "DR", r=[v(aVr), "L:Vtab"], w=vs(VR, 2), note="VR")
    e1 = eload(P, 1, ["B6"]); e2 = eload(P, 2, ["B6"], fixed=e4regs)
    for mt in range(4): kch(P, 1, mt, e1)
    efree(P, e1)
    bar(["dE2"], ["B7"])
    e3 = eload(P, 3, ["B7"])
    for mt in MTO(1): kch(P, 2, mt, e2)
    for mt in range(4): vch(P, 2, mt, e2)
    cnt = [0]; nm0 = P.nm + CFG.get("u0d", 2)
    def hook(P_):
        if P_.nm >= nm0 and (P_.nm - nm0) % (2 * CFG["u0s"]) < 2 and cnt[0] < 12:
            j = cnt[0]; cnt[0] += 1
            if j % 4 == 0: dma_setup(P_, j // 4, ["B7"])
            dma(P_, j % 4, ["B7"], [P_.lastm], 8)
    P.hook = hook
    sc(P, 0, [1, 2])
    e4 = eload(P, 4, ["B7"], fixed=e4regs)
    for mt in range(4): kch(P, 3, mt, e3)
    efree(P, e3)
    for n_, mt in enumerate(MTO(1)):
        kch(P, 4, mt, e4)
        if n_ == 1: e0 = eload(P, 0, ["B7"])
    R = Rem(P)
    for mt in range(4):
        rch(P, mt, e0, 1)
        if mt == 0: sc(P, 0, [3, 4])
    for mt in range(4): qch(P, mt, e0, 1)
    efree(P, e0)
    R.ld()
    for mt in range(4):
        vch(P, 4, mt, e4)
        if mt == 0: sc(P, 1, [6, 0, 1])
        if mt == 1: R.s(0)
        if mt == 2: R.s(1); R.soft()
    lsum(P, 0)
    e3 = eload(P, 3, ["B7"])
    sc(P, 1, [2, 3])
    for mt in range(4): vch(P, 3, mt, e3)
    efree(P, e3)
    e1 = eload(P, 1, ["B7"])
    m32st(P, 0)
    sc(P, 1, [4])
    for mt in range(4): vch(P, 1, mt, e1)
    efree(P, e1)
    sc(P, 1, [5])
    P.hook = None
    assert cnt[0] == 12, cnt
    P.share()

def epilogue(P):
    if CFG.get("epol") is not None: P.stpol = ["", " nt", " sc1", " sc0 sc1"][CFG["epol"]]
    P.add("s_barrier", "BAR", r=["dma"], w=["B"])
    L, t, aCr, aSr, aVa, aRr, aLr = aKr, aVr, aQa, aPw, aPr, aCw, aLw
    RA = K0; VA = K0 + 32; PR = QF
    lane_id(P, L)
    P.salu(f"s_mul_i32 s{sT2}, s{sW}, {TABSZ}\ns_add_u32 s{sT2}, s{sT2}, {TAB0}", r=[f"s{sW}"], w=[f"s{sT2}"])
    lane_expr(P, aCr, L, t, [(2, 2, US), (0, 2, CST), (4, 2, 16)], sconst=sT2)
    lane_expr(P, aLr, L, t, [(2, 2, US), (0, 2, CST)], const=256, sconst=sT2)
    lane_expr(P, aVa, L, t, [(4, 2, US), (0, 4, 8)], const=VOFF, sconst=sT2)
    P.salu(f"s_lshl_b32 s{sT3}, s{sW}, 9", r=[f"s{sW}"], w=[f"s{sT3}"])
    lane_expr(P, aRr, L, t, [(0, 4, 16)], const=RR0, sconst=sT3)
    lane_expr(P, aSr, L, t, [(0, 2, 256), (2, 2, UB), (4, 2, 16)], const=96 * 256)
    mrr = lanemask(lambda l: (l >> 4) == ((l >> 2) & 3))
    def mark(n0, e):
        for o in P.ops[n0:]:
            if o.kind == "VS": o.early = e
    def rem_ld():
        for mt in range(4):
            for z in range(2): P.dsr(VA + 4 * mt + 2 * z, 2, aVa, z * 4 * US + mt * 128, ["L:Vtab"], "ctx")
        for z in range(2): P.dsr(PR + 4 * z, 2, aRr, z * 256, ["L:rr"], "ctx")
        P.mov2(PR + 2)
        P.salu(f"s_mov_b32 vcc_lo, 0x{mrr & 0xffffffff:x}\ns_mov_b32 vcc_hi, 0x{mrr >> 32:x}", w=["vcc"])
        for x in (PR, PR + 1, PR + 4, PR + 5): P.valu(f"v_cndmask_b32 {v(x)}, 0, {v(x)}, vcc", [v(x), "vcc"], [v(x)])
    def rem_final(z, r):
        c = [P.alloc() for _ in range(5)]; ls = c[4]
        for mt in range(4): P.dsr(c[mt], 4, aCr, z * 4 * US + 64 * mt, ["L:Qtab"], "ctx")
        P.dsr(ls, 4, aLr, z * 4 * US, ["L:Qtab"], "lsum"); P.dsr(PR + 6 + z, 1, aRr, z * 256 + 8, ["L:rr"], "lsum")
        P.op2("v_add_f32", ls, ls, ls + 1); P.op2("v_add_f32", ls + 2, ls + 2, ls + 3); P.op2("v_add_f32", ls, ls, PR + 6 + z); P.op2("v_add_f32", ls, ls, ls + 2)
        P.valu(f"v_rcp_f32 {v(ls + 1)}, {v(ls)}", [v(ls)], [v(ls + 1)], kind="T")
        P.valu(f"v_max3_f32 {v(CHK)}, {v(CHK)}, {v(ls)}, {v(ls + 1)}", [v(CHK), v(ls), v(ls + 1)], [v(CHK)])
        fin = []
        for mt in range(4):
            P.mfma(c[mt], ("v", VA + 4 * mt), ("v", PR + 2 * z), note="PVrr")
        for mt in range(4):
            for i in range(4):
                x = r + 4 * mt + i
                P.valu(f"v_fmac_f32 {v(x)}, {v(c[mt] + i)}, {v(ls + 1)}", [v(x), v(c[mt] + i), v(ls + 1)], [v(x)])
            if mt & 1: fin += pack_half(P, r, mt >> 1, "Drem")
        for q in c: P.release(q)
        st = (sSo, sStr)[z]
        P.salu(f"s_lshl_b32 s{st}, s{sH}, 7\ns_add_u32 s{st}, s{st}, s{sB0}\ns_add_u32 s{st}, s{st}, {z * 4 * UB}", r=[f"s{sH}", f"s{sB0}"], w=[f"s{st}"])
        stores(P, r, st, aSr, "Drem", fin)
    e0 = ESet(P, 0, ["B"], "Erem")
    sc(P, 5, [6, 0, 1, 2])
    if ORDER.split().index("l4") < ORDER.split().index("cut"): lsum(P, 4)
    n0 = len(P.ops)
    for mt in range(4):
        pv(P, 4, [mt])
        if mt < 3: sc(P, 5, [3 + mt])
    rem_ld()
    for mt in range(4): chain(P, WR, mt, e0, False, RA + 4 * mt, "Rrem")
    efree(P, e0)
    m32st(P, 5, 4, sStP)
    mark(n0, 1500)
    e1 = ESet(P, 1, ["B"], "Erem")
    n0 = len(P.ops); rem_final(0, RA); mark(n0, 700)
    lsum(P, 5)
    for mt in range(4): chain(P, WR, mt, e1, False, RA + 16 + 4 * mt, "Rrem")
    efree(P, e1)
    n0 = len(P.ops)
    pv(P, 5, range(4))
    m32st(P, None, 5, sStP)
    mark(n0, 300)
    n0 = len(P.ops); rem_final(1, RA + 16); mark(n0, 0)
    for o in P.ops:
        if o.kind == "DR" and o.note in ("lsum", "ctx"): o.urgent = True

def program():
    tag = "f"
    sched.CRIT_WIN = CFG["cw"]; sched.BACKPACK = bool(CFG["bp"]); sched.DS_LAT = CFG.get("dl", 84); sched.DS_COV = CFG.get("dc", 200); sched.NOISE[:] = [CFG["noise"], CFG["seed"]]
    old.CFG["stamps"] = CFG["stamps"]
    init = [f"s_mov_b32 s{sCnt}, {5 if CFG.get('lst') or CFG.get('sst') else 8}", f"s_mov_b32 s{sBits}, 64", f"s_mov_b32 s{sStC}, s{sB0}", f"s_mov_b32 s{sStP}, 0x7ff00000", f"s_mov_b32 s{sTog}, {2*BUFSZ}",
            f"s_mov_b32 s{sBias}, {f32(math.log2(1 + 2 ** -8.5))}", f"s_mov_b32 s{sBias+1}, 0"]
    drain = [Item(nop=8), Item(lgkm=0)]
    rep = bool(CFG.get("report"))
    def mk():
        P = Prog(); body(P); assert len(P.free) == NPOOL
        mk.shr = P.share()
        for i_, o in enumerate(P.ops): o.late = i_ >= P.cut
        for o in P.ops:
            if o.kind in ("VL", "DW"): o.pin = True
        if CFG["seam"]:
            P.seam.pin = True; P.ops[0].urgent = True; P.ops[0].early = 20000; P.ops[0].glue = 99
            for o in P.ops[1:]: o.after = list(o.after) + [P.ops[0]]
        else: [o for o in P.ops if o.kind in MK][-1 - CFG.get("cutm", 8)].pin = True
        return P.ops
    P2 = Prog(); body(P2)
    pre3 = []
    br = [Item(raw=f"s_cmp_lg_u32 s{sCnt}, 0"), Item(raw=f"s_cbranch_scc1 L_loop{tag}")]
    i2, left, t2, e2 = schedule_loop(alloc_loop(mk, POOL), report=rep)
    k_ = max(it.op.it for it in i2 if it.op is not None)
    if CFG["seam"] == 2:
        assert i2[-1].op.kind == "VS" and i2[-2].op.kind == "VS"
        assert i2[0].op.marker if CFG["sync"] else (i2[0].vm is not None and i2[0].lgkm is None and i2[1].op.kind == "BAR")
        s2 = i2.pop(); s2.op.it = k_ - 1; wt = i2.pop(0); i2.insert(0, s2)
        c = copy.copy(s2.op); Op._n += 1; c.id = Op._n; c.after = []; pre3 = [Item(op=c)]
        m = max(n for n, it in enumerate(i2) if it.op is not None and it.op.kind == "M32")
        assert m == len(i2) - 2
        i2.insert(m + 1, br.pop(0))
        n = m - CFG.get("wb", 12)
        while not (i2[n].op is not None and i2[n].op.kind == "M16" and i2[n + 1].op is not None and i2[n + 1].op.kind != "S"): n -= 1
        if not CFG["sync"]: i2.insert(n + 1, Item(vm=wt.vm - 2))
    i2 = fix_items(i2 + br, i2)
    cur = [(n, it.op) for n, it in enumerate(i2) if it.op is not None and it.op.it == k_]
    X = max(n for n, o in cur if not o.late) + 1
    assert all(it.op is None or it.op.it == k_ for it in i2[X:])
    e4regs = [None] * 4
    for n, o in cur:
        tg = getattr(o, "tag", None)
        if tg and tg[0] == "e4": e4regs[tg[1]] = int(o.w[0][1:])
    rest = [q for q in POOL if q not in e4regs]
    head = []
    for n, o in cur:
        if n < X and o.late:
            c = copy.copy(o); Op._n += 1; c.id = Op._n; c.after = []; c.early = None; c.r = c.r + ["B"]; head.append(c)
    P1 = Prog(); P1.free = collections.deque([0] * (len(rest) - 1)); unit0(P1, e4regs, rest[-1])
    ia, _, _ = schedule2(P1.ops, strict_m=True, pool=rest[:-1])
    i1, t1, e1 = schedule2(bind([it.op for it in ia if it.op is not None], schedule2.vmap) + head, strict_m=True, report=rep)
    i1 = i1 + drain + [Item(raw=f"s_branch L_entry{tag}")]
    print("   entry at window item", X, "of", len(i2), "model t", i2[X].op.issue if i2[X].op else None, "head ops", len(head), file=sys.stderr)
    print("   shared turns / chains:", mk.shr, file=sys.stderr)
    P3 = Prog(); epilogue(P3); P3.share()
    busy = {int(x[1:]) // 4 * 4 for o in left for x in o.r + o.w + o.c if x[0] == "v" and x[1:].isdigit()}
    pool3 = [q for q in POOL if q not in busy] + [q for q in POOL if q in busy]
    ia, _, _ = schedule2(P3.ops, strict_m=True, pool=POOL)
    vm_ = {k: pool3[POOL.index(p_)] for k, p_ in schedule2.vmap.items()}
    i3, t3, e3 = schedule2(left + bind([it.op for it in ia if it.op is not None], vm_), strict_m=True, report=rep); i3 = fix_items(i2 + br, pre3 + old.stamp_q() + i3)
    kinds = collections.Counter(o.kind for o in P2.ops)
    print(f"[{tag}] model: prologue {t1} (mfma {e1})  loop {t2} (mfma {e2})  epilogue {t3} (mfma {e3})  {dict(kinds)}", file=sys.stderr)
    bad = verify(i1 + i2[X:] + br + i2 + br + i3)
    i2 = i2[:X] + [Item(raw=f'L_entry{tag}:')] + old.stamp_q() + i2[X:]
    print("verify problems:", bad, file=sys.stderr)
    def filt(items):
        r = []
        for it in items:
            if it.op is not None:
                if CFG["nostore"] and it.op.kind == "VS": it = Item(nop=1)
                elif CFG["nodma"] and it.op.kind == "VL": it = Item(nop=1)
            r.append(it)
        return r
    an = CFG["annotate"]
    if CFG.get("lst"):
        r = []; nm = 0; mt_ = []
        for it in i2:
            r.append(it)
            if it.op is not None and it.op.kind in MK:
                k, rem_ = divmod(nm - CFG.get("lst0", 0), CFG["lst"])
                if rem_ == 0 and k == 14: r.append(Item(raw="s_mov_b32 s90, s88"))
                if rem_ == 0 and 0 <= k < 15:
                    r.append(Item(raw=f"s_memtime s[{60+2*k}:{61+2*k}]")); mt_.append((it.op.issue, it.op.note))
                nm += 1
        i2 = r
        print("model stamps:", [x[0] - mt_[0][0] for x in mt_], [x[1] for x in mt_], file=sys.stderr)
    if CFG.get("sst"):
        T = lambda k: Item(raw=f"s_memtime s[{60+2*k}:{61+2*k}]")
        ms = [n for n, it in enumerate(i2) if it.op is not None and it.op.kind in MK]
        ins = {ms[-4]: T(20 - 8), ms[-2]: T(21 - 8), len(i2) - 1: T(22 - 8), 0: T(4), 1: T(5), ms[0]: T(6), ms[1]: T(7), ms[2]: T(8), ms[4]: T(9), ms[8]: T(10), ms[12]: T(11)}
        r = [T(3)]
        for n, it in enumerate(i2):
            r.append(it)
            if n in ins: r.append(ins[n])
            if n == ms[200]: r += [Item(raw=f"s_mov_b32 s{60+2*k}, s{84+2*k}") for k in range(3)]
        i2 = r
    out = list(init)
    for it in i1: out += it.lines(an)
    if CFG["sync"]:
        rd, cp = [[it.op.text for it in i2 if it.op is not None and it.op.note == "chk" and it.op.kind == k][0] for k in ("DR", "V")]
        out += ["L_spin:", rd, "s_waitcnt lgkmcnt(0)", cp, "s_nop 1", "s_cbranch_vccnz L_spin", "s_branch L_back"]
    out += [".p2align 6", f"L_loop{tag}:"]
    for it in filt(i2) + br + filt(i3): out += it.lines(an)
    return out

def main():
    out = []
    for l in open("/code/" + NAME + ".s.ref").read().split("\n"):
        if l.startswith("; @launch"): break
        if l.startswith(";"): out.append(l)
    out.append(f"; @launch grid=(256,1,1) block=(256,1,1) lds={LDS_TOTAL}")
    out += """; GENERATED by gen/gen6.py (own generator + list scheduler gen/sched.py) - do not edit by hand
; One workgroup (4 waves, 512 registers each) per CU; wave = (batch stream p, head h); 8 batches per stream.
; Weights of the head live in the 256 AGPRs as 16x16x32 MFMA fragments (Wq pre-multiplied by 0.125*log2(e)).
; e is streamed through an LDS double buffer (LDS-DMA); K^T,Q^T,V -> S^T -> P -> ctx^T chain stays in registers.
; Rows 96..99 of the 8 batches are projected together (two packed 16-row tiles, tables in LDS); every product with
; those 4 rows and the softmax row sums use the sparse MFMA (two output rows per dot product, one half each).
; Softmax guard: the fast path evaluates exp2(s) without a shift and tracks max(l, 1/l) of EVERY row sum l.
; If any row sum of the workgroup leaves [2^-40, 2^40] (so a shift could matter), the workgroup recomputes all
; of its batches in the second copy of the program (after L_fast_end), which subtracts the true row maximum.""".split("\n")
    out += ['.amdgcn_target "amdgcn-amd-amdhsa--gfx950"', ".text", f".globl {NAME}_kernel", ".p2align 8", f".type {NAME}_kernel,@function", f"{NAME}_kernel:"]
    if CFG["stamps"]: out += ["s_memtime s[60:61]", "s_memrealtime s[62:63]"]
    out += ["s_cmp_ge_u32 s2, 256", "s_cbranch_scc1 L_end", "s_load_dwordx8 s[4:11], s[0:1], 0", "s_load_dwordx4 s[12:15], s[0:1], 32"]
    if CFG["pf"]:
        out += ["s_getpc_b64 s[58:59]", "L_pc:", "v_lshlrev_b32 v2, 7, v0", "v_min_u32 v2, L_fast_end-L_pc-4, v2", f"global_load_dword v{QF}, v2, s[58:59]"]
    pre = f"""
v_lshrrev_b32 v1, 6, v0
s_mov_b32 s{sC}, {f32(0.125 * math.log2(math.e))}
v_readfirstlane_b32 s{sW}, v1
s_mov_b32 s{sE+2}, {NB * BBATCH}
s_mov_b32 s{sE+3}, 0x20000
s_mov_b32 s{sO+2}, {NB * BBATCH}
s_mov_b32 s{sO+3}, 0x20000
s_mov_b32 s{sWQ+2}, 32768
s_mov_b32 s{sWQ+3}, 0x20000
s_mov_b32 s{sWK+2}, 32768
s_mov_b32 s{sWK+3}, 0x20000
s_mov_b32 s{sWV+2}, 32768
s_mov_b32 s{sWV+3}, 0x20000
s_mov_b32 s{sWR+2}, 32768
s_mov_b32 s{sWR+3}, 0x20000
s_lshr_b32 s{sP}, s{sW}, 1
s_and_b32 s{sH}, s{sW}, 1
s_lshl_b32 s{sB0}, s2, 1
s_add_u32 s{sB0}, s{sB0}, s{sP}
s_mul_i32 s{sB0}, s{sB0}, {BBATCH}
"""
    out += [l for l in pre.split("\n") if l]
    out += program()
    if CFG["stamps"]:
        for it in [Item(vm=0)] + old.stamp_q() + old.stamp_dump(): out += it.lines()
    if CFG.get("lst") or CFG.get("sst"):
        out += ["s_load_dwordx2 s[92:93], s[0:1], 56", "s_waitcnt lgkmcnt(0)", "s_mov_b32 s94, 0x100000", "s_mov_b32 s95, 0x20000",
                "s_lshl_b32 s3, s2, 2", f"s_add_u32 s3, s3, s{sW}", "s_lshl_b32 s3, s3, 8", "v_mov_b32 v2, 0", "s_mov_b64 exec, 1"]
        for n in range(16):
            out += [f"v_mov_b32 v{4+2*n}, s{60+2*n}", f"v_mov_b32 v{5+2*n}, s{60+2*n}", f"buffer_store_dwordx2 v[{4+2*n}:{5+2*n}], v2, s[92:95], s3 offen offset:{8*n}"]
        out += ["s_mov_b64 exec, -1"]
    if CFG["fallback"]:
        out += [f"v_mov_b32 v1, {f32(2.0 ** CFG['thr'])}", f"v_cmp_nle_f32 vcc, {v(CHK)}, v1", f"s_lshl_b32 s{sT0}, s{sW}, 2", f"s_add_u32 s{sT0}, s{sT0}, {FLAG}",
                "s_or_b32 s3, vcc_lo, vcc_hi", f"v_mov_b32 v2, s{sT0}", "v_mov_b32 v3, s3", "ds_write_b32 v2, v3", f"v_mov_b32 v2, {FLAG}", "s_waitcnt lgkmcnt(0)", "s_barrier",
                "ds_read_b128 v[4:7], v2", "s_waitcnt lgkmcnt(0)", "v_or_b32 v4, v4, v5", "v_or3_b32 v4, v4, v6, v7", "s_nop 0", "v_readfirstlane_b32 s3, v4", "s_nop 3",
                "s_cmp_eq_u32 s3, 0", "s_cbranch_scc1 L_end", "L_fast_end:", "s_waitcnt vmcnt(0)", "s_barrier"]
        old.CFG["stamps"] = 0
        sched.CRIT_WIN = old.CFG["cw"]; sched.BACKPACK = bool(old.CFG["bp"]); sched.DS_LAT = 84; sched.DS_COV = 0; sched.NOISE[:] = [old.CFG["noise"], old.CFG["seed"]]
        out += old.program(True, "s")
    else:
        out += ["L_fast_end:"]
    out += ["L_end:", "s_endpgm", '.section .rodata,"a"', ".p2align 6", f".amdhsa_kernel {NAME}_kernel",
            "  .amdhsa_next_free_vgpr 512", "  .amdhsa_next_free_sgpr 102", "  .amdhsa_accum_offset 256", "  .amdhsa_group_segment_fixed_size 0",
            "  .amdhsa_kernarg_size 64", "  .amdhsa_user_sgpr_count 2", "  .amdhsa_user_sgpr_kernarg_segment_ptr 1", "  .amdhsa_system_sgpr_workgroup_id_x 1",
            ".end_amdhsa_kernel"]
    open(sys.argv[1], "w").write("\n".join(out) + "\n")

if __name__ == "__main__":
    main()
```

```python
import collections

VALU_KINDS = ("V", "T", "P", "DPP")
MEM_KINDS = ("DR", "DW", "VL", "VS", "VG")
M_KINDS = ("M32", "M16", "SM")

class Op:
    _n = 0
    def __init__(self, text, kind, r=(), w=(), c=(), after=(), note="", cost=None, early=None):
        self.text = text
        self.kind = kind
        self.r = list(r)
        self.w = list(w)
        self.c = list(c)
        self.after = list(after)
        self.note = note
        self.ninst = len([l for l in text.split("\n") if l.strip()])
        if cost is None:
            cost = {"T": 8, "P": 8, "DW": 8, "VS": 8}.get(kind, 4) if self.ninst == 1 else 4 * self.ninst
        self.cost = cost
        self.early = early
        Op._n += 1; self.id = Op._n
    def __repr__(self):
        return f"<{self.kind} {self.text.splitlines()[0]}>"

def is_vreg(x):
    return x[0] in "va" and x[1:].isdigit()
def is_sreg(x):
    return (x[0] == "s" and x[1:].isdigit()) or x in ("vcc",)

def edge(p, q, reg, typ):
    ws = 0; lat = p.cost; cnt = None
    pk, qk = p.kind, q.kind
    if typ == "RAW" or typ == "RAWC":
        if pk in M_KINDS:
            big = pk == "M32"
            if qk in M_KINDS and typ == "RAWC":
                if qk == pk and p.w == q.c and p.text.split()[0] == q.text.split()[0]:
                    ws = 0; lat = 32 if big else 16
                else:
                    ws = 10 if big else 6; lat = 48 if big else 32
            else:
                ws = 12 if big else 8; lat = 56 if big else 40
        elif pk in VALU_KINDS:
            if is_vreg(reg):
                if qk in M_KINDS: ws = 2; lat = p.cost + 8
                elif qk in ("P", "DPP"): ws = 2; lat = p.cost + 8
                elif pk == "T" and qk in VALU_KINDS: ws = 1; lat = p.cost + 4
                if "readfirstlane" in q.text or "readlane" in q.text: ws = max(ws, 1)
            else:
                if qk in VALU_KINDS: ws = 2
                elif qk in ("VL", "VS", "VG"): ws = 5
                elif qk == "S": ws = 2
        elif pk == "S":
            if reg == "m0" and qk in ("VL",): ws = 1
        elif pk == "DR":
            if is_vreg(reg): cnt = "lgkm"; lat = 96
        elif pk == "DW":
            if qk == "BAR": cnt = "lgkm"; lat = 64
        elif pk == "VL":
            if reg != "ord": cnt = "vm"; lat = 0
        elif pk == "VG":
            cnt = "vm"; lat = 500
        elif pk == "SL":
            cnt = "lgkm0"; lat = 100
    elif typ == "WAW":
        if pk in M_KINDS:
            big = pk == "M32"
            if qk in M_KINDS:
                if not (qk == pk and p.w == q.w): ws = 10 if big else 6
            else:
                ws = 12 if big else 8; lat = 56 if big else 40
        elif pk == "DR" and is_vreg(reg):
            if qk != "DR": cnt = "lgkm"; lat = 128
        elif pk == "VG" and is_vreg(reg):
            cnt = "vm"
    elif typ == "WAR":
        if pk in ("VS", "DW") and is_vreg(reg) and qk not in ("S",): ws = 2
        if pk == "DR" and qk == "BAR": cnt = "lgkm"; lat = 128
    elif typ == "WARC":
        if qk not in M_KINDS: ws = 7 if pk == "M32" else 3
    return ws, lat, cnt

def build_deps(ops, carry=None):
    lastw = {}; readers = collections.defaultdict(list)
    for q in ops:
        d = {}
        def add(p, reg, typ):
            if p is q: return
            ws, lat, cnt = edge(p, q, reg, typ)
            o = d.get(p.id)
            if o is None: d[p.id] = [p, ws, lat, cnt]
            else:
                o[1] = max(o[1], ws); o[2] = max(o[2], lat); o[3] = o[3] or cnt
        for x in q.r:
            if x in lastw: add(lastw[x], x, "RAW")
        for x in q.c:
            if x in lastw: add(lastw[x], x, "RAWC")
        for x in q.w:
            if x in lastw: add(lastw[x], x, "WAW")
            for (p, isc) in readers[x]: add(p, x, "WARC" if isc else "WAR")
        for p in q.after:
            if p.id not in d: d[p.id] = [p, 0, q.delay if getattr(p, "marker", False) and hasattr(q, "delay") else p.cost, None]
        q.preds = list(d.values())
        for x in q.w:
            lastw[x] = q; readers[x] = []
        for x in q.r: readers[x].append((q, False))
        for x in q.c:
            if x not in q.w: readers[x].append((q, True))

def schedule(ops, verbose=False, m_window=64):
    ids = {o.id for o in ops}
    for o in ops:
        o.after = [p for p in o.after if p.id in ids]
    build_deps(ops)
    succ = collections.defaultdict(list)
    for q in ops:
        for (p, ws, lat, cnt) in q.preds: succ[p.id].append((q, lat))
    T = 0
    for o in ops:
        if o.kind in M_KINDS:
            o.ideal = T; T += 32 if o.kind == "M32" else 16
    end = T
    for o in reversed(ops):
        a = end
        for (q, lat) in succ[o.id]: a = min(a, q.alap - lat)
        if o.kind in M_KINDS: a = min(a, o.ideal)
        if o.early: a -= o.early
        o.alap = a
    for i, o in enumerate(ops):
        o.idx = i; o.npred = len(o.preds); o.issue = None; o.pos = None
    ready = [o for o in ops if o.npred == 0]
    out = []
    t = 0; pos = 0
    last_valu_end = -100; last_m = -100; m_free = 0
    def earliest(o):
        b = t
        if o.kind not in ("S", "BAR"): b = max(b, last_m + 8)
        if o.kind in MEM_KINDS: b = max(b, last_valu_end + 8)
        if o.kind in M_KINDS: b = max(b, m_free)
        nops = 0
        for (p, ws, lat, cnt) in o.preds:
            b = max(b, p.issue + lat)
            nops = max(nops, ws - (pos - p.pos - p.ninst))
        if nops > 0: b = max(b, t + 4 * nops)
        return b
    mf_idle = 0
    while ready:
        cand = [(earliest(o), o) for o in ready]
        ms = [(e, o) for (e, o) in cand if o.kind in M_KINDS]
        fs = [(e, o) for (e, o) in cand if o.kind not in M_KINDS]
        pick = None
        mnext = None
        if ms:
            lo = min(o.idx for e, o in ms)
            emin = min(e for e, o in ms)
            mnext = min(((e, o) for (e, o) in ms if e <= emin + 8), key=lambda x: x[1].idx)
        if mnext and mnext[0] <= t:
            pick = mnext
        else:
            lim = mnext[0] if mnext else 1 << 60
            fit = [(e, o) for (e, o) in fs if e + o.cost <= lim + 0]
            if fit:
                emin = min(e for e, o in fit)
                now = [(e, o) for (e, o) in fit if e <= max(t, emin)]
                just_m = out and out[-1].kind in M_KINDS or (len(out) > 1 and out[-1].kind in ("S",) + MEM_KINDS and out[-2].kind in M_KINDS)
                if out and out[-1].kind in M_KINDS:
                    sal = [(e, o) for (e, o) in fit if o.kind == "S" and e <= t]
                    if sal: now = sal
                    else:
                        mem = [(e, o) for (e, o) in fit if o.kind in MEM_KINDS and e <= last_m + 8]
                        if mem: now = mem
                elif just_m:
                    mem = [(e, o) for (e, o) in fit if o.kind in MEM_KINDS and e <= max(t, last_m + 8)]
                    if mem: now = mem
                pick = min(now, key=lambda x: (x[1].alap, x[1].idx))
            elif mnext:
                late = [(e, o) for (e, o) in fs if e <= t and o.alap < mnext[1].alap - 64]
                if late and lim - t >= 4: pick = min(late, key=lambda x: (x[1].alap, x[1].idx))
                else: pick = mnext
            else:
                pick = min(fs, key=lambda x: (x[0], x[1].alap))
        e, o = pick
        nops = 0
        for (p, ws, lat, cnt) in o.preds:
            nops = max(nops, ws - (pos - p.pos - p.ninst))
        if nops > 0: pos += nops
        o.issue = e; o.pos = pos; pos += o.ninst
        if o.kind in M_KINDS:
            mf_idle += max(0, e - m_free)
            last_m = e; m_free = e + (32 if o.kind == "M32" else 16); t = e + 4
        else:
            t = e + o.cost
            if o.kind in VALU_KINDS: last_valu_end = t
        out.append(o); ready.remove(o)
        for (q, lat) in succ[o.id]:
            q.npred -= 1
            if q.npred == 0: ready.append(q)
    assert len(out) == len(ops)
    return out, max(t, m_free), end

def finalize(seq, loop=False, entry_drained=True, annotate=False):
    import copy
    if loop:
        a = [copy.copy(o) for o in seq]; b = [copy.copy(o) for o in seq]
        for i, o in enumerate(a + b):
            Op._n += 1; o.id = Op._n; o.after = []
        full = a + b; start = len(a)
    else:
        full = [copy.copy(o) for o in seq]
        for o in full: o.after = []
        start = 0
    build_deps(full)
    dsn = 0; vmn = 0
    for i, o in enumerate(full):
        o.i = i
        if o.kind in ("DR", "DW"): dsn += o.ninst if o.kind in ("DR", "DW") else 0
        o.dsn = dsn
        if o.kind in ("VL", "VS", "VG"): vmn += 1
        o.vmn = vmn
    waits = collections.defaultdict(dict)
    done_ds = 0; done_vm = 0
    for i, o in enumerate(full):
        nd = 0; nv = 0; prod = None; z = False
        for (p, ws, lat, cnt) in o.preds:
            if cnt == "lgkm" and p.dsn > nd: nd = p.dsn; prod = p
            if cnt == "vm": nv = max(nv, p.vmn)
            if cnt == "lgkm0" and not getattr(p, "waited", False): z = True; p.waited = True
        if z:
            waits[i]["lgkm"] = 1 << 30; done_ds = max(done_ds, full[i-1].dsn if i else 0)
        elif nd > done_ds:
            j = i
            k = i - 1
            while k > prod.i and full[k].kind not in M_KINDS and i - k < 10: k -= 1
            if k > prod.i and full[k].kind in M_KINDS and (k + 1 >= start or i < start):
                same_iter = (prod.i >= start) == (k >= start)
                if (not same_iter) or full[k].issue - prod.issue >= 110: j = k + 1
            waits[j]["lgkm"] = max(waits[j].get("lgkm", 0), nd); done_ds = nd
        if nv > done_vm:
            waits[i]["vm"] = nv; done_vm = nv
    lines = []
    pos = 0
    for i, o in enumerate(full):
        emit = []
        wt = waits.get(i)
        if wt:
            parts = []
            prev_ds = full[i-1].dsn if i else 0
            prev_vm = full[i-1].vmn if i else 0
            if "vm" in wt:
                n = prev_vm - wt["vm"]; assert n >= 0
                parts.append(f"vmcnt({min(n, 63)})")
            if "lgkm" in wt:
                n = max(0, prev_ds - wt["lgkm"])
                parts.append(f"lgkmcnt({min(n, 15)})")
            emit.append("s_waitcnt " + " ".join(parts)); pos += 1
        nops = 0
        for (p, ws, lat, cnt) in o.preds:
            nops = max(nops, ws - (pos - p.fpos - p.ninst))
        while nops > 0:
            n = min(nops, 16); emit.append(f"s_nop {n-1}"); nops -= n; pos += n
        o.fpos = pos; pos += o.ninst
        tl = [l.strip() for l in o.text.split("\n") if l.strip()]
        if annotate: tl[0] += f"    ; t={o.issue} {o.note}"
        emit += tl
        if i >= start: lines += emit
    return lines

class Item:
    def __init__(self, op=None, vm=None, lgkm=None, nop=0, raw=None):
        self.op = op; self.vm = vm; self.lgkm = lgkm; self.nop = nop; self.raw = raw
    def lines(self, annotate=False):
        if self.op is not None:
            tl = [l.strip() for l in self.op.text.split("\n") if l.strip()]
            if annotate: tl[0] += f"    ; t={self.op.issue} {self.op.note}"
            return tl
        if self.raw is not None: return [self.raw]
        if self.nop: return [f"s_nop {self.nop-1}"]
        parts = []
        if self.vm is not None: parts.append(f"vmcnt({self.vm})")
        if self.lgkm is not None: parts.append(f"lgkmcnt({self.lgkm})")
        return ["s_waitcnt " + " ".join(parts)]
    def states(self):
        if self.op is not None: return self.op.ninst
        if self.raw is not None: return 0 if self.raw.rstrip().endswith(":") or self.raw.startswith(".") else 1
        if self.nop: return self.nop
        return 1

def finalize_items(seq, loop=False):
    import copy
    def clone(s):
        r = []
        for o in s:
            c = copy.copy(o); Op._n += 1; c.id = Op._n; c.after = []; c.orig = o; r.append(c)
        return r
    if loop:
        full = clone(seq) + clone(seq); start = len(seq)
    else:
        full = clone(seq); start = 0
    build_deps(full)
    dsn = 0; vmn = 0
    for i, o in enumerate(full):
        o.i = i
        if o.kind in ("DR", "DW"): dsn += 1
        o.dsn = dsn
        if o.kind in ("VL", "VS", "VG"): vmn += 1
        o.vmn = vmn
    waits = collections.defaultdict(dict)
    done_ds = 0; done_vm = 0
    for i, o in enumerate(full):
        nd = 0; nv = 0; prod = None
        for (p, ws, lat, cnt) in o.preds:
            if cnt == "lgkm" and p.dsn > nd: nd = p.dsn; prod = p
            if cnt == "vm": nv = max(nv, p.vmn)
        if nd > done_ds:
            j = i; k = i - 1
            while k > prod.i and full[k].kind not in M_KINDS and i - k < 10: k -= 1
            if k > prod.i and full[k].kind in M_KINDS and (k + 1 > start or i < start):
                same_iter = (prod.i >= start) == (k >= start)
                if (not same_iter) or full[k].issue - prod.issue >= 110: j = k + 1
            waits[j]["lgkm"] = max(waits[j].get("lgkm", 0), nd); done_ds = nd
        if nv > done_vm:
            waits[i]["vm"] = nv; done_vm = nv
    items = []
    pos = 0
    for i, o in enumerate(full):
        emit = []
        wt = waits.get(i)
        if wt:
            prev_ds = full[i-1].dsn if i else 0
            prev_vm = full[i-1].vmn if i else 0
            it = Item()
            if "vm" in wt: it.vm = min(prev_vm - wt["vm"], 63)
            if "lgkm" in wt: it.lgkm = min(max(0, prev_ds - wt["lgkm"]), 15)
            emit.append(it); pos += 1
        nops = 0
        for (p, ws, lat, cnt) in o.preds:
            nops = max(nops, ws - (pos - p.fpos - p.ninst))
        while nops > 0:
            n = min(nops, 16); emit.append(Item(nop=n)); nops -= n; pos += n
        o.fpos = pos; pos += o.ninst
        emit.append(Item(op=o.orig))
        if i >= start: items += emit
    return items

def verify(trace):
    import copy
    ops = []
    pos = 0; dsn = 0; vmn = 0; done_ds = 0; done_vm = 0
    for it in trace:
        if it.op is not None:
            c = copy.copy(it.op); Op._n += 1; c.id = Op._n; c.after = []
            c.fpos = pos; c.done_ds = done_ds; c.done_vm = done_vm
            if c.kind in ("DR", "DW"): dsn += 1
            if c.kind in ("VL", "VS", "VG"): vmn += 1
            c.dsn = dsn; c.vmn = vmn
            ops.append(c)
        elif it.raw is None and not it.nop:
            if it.vm is not None: done_vm = max(done_vm, vmn - it.vm)
            if it.lgkm is not None: done_ds = max(done_ds, dsn - it.lgkm)
        pos += it.states()
    build_deps(ops)
    bad = 0
    for o in ops:
        for (p, ws, lat, cnt) in o.preds:
            if o.fpos - p.fpos - p.ninst < ws:
                print("HAZARD", p, "->", o, "need", ws, "have", o.fpos - p.fpos - p.ninst); bad += 1
            if cnt == "lgkm" and p.dsn > o.done_ds:
                print("LGKM", p, "->", o); bad += 1
            if cnt == "vm" and p.vmn > o.done_vm:
                print("VM", p, "->", o); bad += 1
    return bad

DS_LAT = 84
DS_COV = 0
DS_FINE = False
CRIT_WIN = 6
VBASE = 1000
BACKPACK = True
NOISE = [0, 0]
def schedule2(ops, report=False, strict_m=True, lookahead=0, pool=None):
    ids = {o.id for o in ops}
    for o in ops: o.after = [p for p in o.after if p.id in ids]
    build_deps(ops)
    succ = collections.defaultdict(list)
    for q in ops:
        for (p, ws, lat, cnt) in q.preds: succ[p.id].append((q, lat))
    T = 0; mlist = []
    for o in ops:
        if o.kind in M_KINDS:
            o.ideal = T; T += 32 if o.kind == "M32" else 16; mlist.append(o)
    end = T
    for o in reversed(ops):
        a = end
        for (q, lat) in succ[o.id]: a = min(a, q.alap - lat)
        if o.kind in M_KINDS: a = min(a, o.ideal)
        if o.early: a -= o.early
        o.alap = a
    if BACKPACK:
        import heapq
        nsucc = {o.id: len(succ[o.id]) for o in ops}
        lat_ = {}
        used = collections.defaultdict(int)
        def dl(o):
            a = end
            for (q, lat) in succ[o.id]: a = min(a, lat_[q.id] - lat)
            if o.kind in M_KINDS: a = min(a, o.ideal)
            if o.early: a -= o.early
            return a
        heap = [(-dl(o), -i, o) for i, o in enumerate(ops) if nsucc[o.id] == 0]
        heapq.heapify(heap); pos_ = {o.id: i for i, o in enumerate(ops)}
        while heap:
            d, _, o = heapq.heappop(heap); d = -d
            if o.kind not in M_KINDS and o.kind != "S":
                g = d // 16; c = min(o.cost, 8)
                while used[g] + c > 8: g -= 1
                used[g] += c; d = min(d, g * 16 + 16 - used[g])
            lat_[o.id] = d
            for (p, ws, lat, cnt) in o.preds:
                nsucc[p.id] -= 1
                if nsucc[p.id] == 0: heapq.heappush(heap, (-dl(p), -pos_[p.id], p))
        for o in ops: o.alap = lat_[o.id]
    if NOISE[0]:
        import random
        rnd = random.Random(NOISE[1]); tab = [rnd.uniform(-NOISE[0], NOISE[0]) for _ in range(4096)]
        for i, o in enumerate(ops):
            if hasattr(o, "bi"): o.alap += tab[o.bi % 4096]
    for i, o in enumerate(ops):
        o.idx = i; o.npred = len(o.preds); o.issue = None; o.pos = None
    ready = [o for o in ops if o.npred == 0]
    items = []
    vusers = collections.defaultdict(list)
    for o in ops:
        o.vq = sorted({int(x[1:]) // 4 for x in o.r + o.w + o.c if x[0] == "v" and x[1:].isdigit() and int(x[1:]) >= VBASE})
        for q in o.vq: vusers[q].append(o)
    vorder = sorted(vusers, key=lambda q: (vusers[q][0].idx, q)); vnext = [0]; vmap = {}; vpos = {q: i for i, q in enumerate(vorder)}
    vleft = {q: len(u) for q, u in vusers.items()}
    phold = {p_: None for p_ in (pool or [])}
    def valloc(o):
        newq = [q for q in o.vq if q not in vmap]
        if not newq: return (0, 0, {})
        last = max(vpos[q] for q in newq)
        if last - vnext[0] > 16: return None
        skipped = sum(1 for q in vorder[vnext[0]:last + 1] if q not in vmap)
        if skipped > sum(1 for h in phold.values() if h is None or vleft[h] == 0): return None
        best = {}; eb = 0; nb = 0
        for q in newq:
            opts = []
            for p_, h in phold.items():
                if p_ in best.values() or (h is not None and vleft[h] > 0): continue
                e_ = 0; n_ = 0
                for u in (vusers[h] if h is not None else []):
                    for typ, has in (("WAW", u.w), ("WAR", u.r), ("WARC", u.c)):
                        if any(x[0] == "v" and x[1:].isdigit() and int(x[1:]) // 4 == h for x in has):
                            ws, lat, cnt = edge(u, o, "v0", typ)
                            if typ == "WAW" and u.kind in M_KINDS and o.kind in M_KINDS: ws = 0
                            e_ = max(e_, u.issue + lat); n_ = max(n_, ws - (st["pos"] - u.pos - u.ninst))
                opts.append((max(e_, st["t"] + 4 * max(n_, 0)), p_, e_, n_))
            if not opts: return None
            base = max(st["t"], min(x[0] for x in opts))
            c = min((x for x in opts if x[0] <= base), key=lambda x: x[1])
            best[q] = c[1]; eb = max(eb, c[2]); nb = max(nb, c[3])
        return (eb, nb, best)
    st = dict(t=0, pos=0, lve=-100, lm=-100, lmv=-100, ldr=-100, ltr=-100, mfree=0)
    ds = []
    cov = [0]
    vm = []; vcov = [0]
    def need(o):
        nd = 0; nv = 0
        for (p, ws, lat, cnt) in o.preds:
            if cnt == "lgkm": nd = max(nd, p.dsn)
            if cnt == "vm": nv = max(nv, p.vmn)
        return nd, nv
    def earliest(o):
        t = st["t"]
        nd, nv = need(o)
        w = 1 if (nd > cov[0] or nv > vcov[0]) else 0
        b = max(t + 4 * w, getattr(o, "nb", 0))
        if o.kind not in ("S", "BAR"): b = max(b, st["lm"] + 8)
        if o.kind in VALU_KINDS: b = max(b, st["lmv"])
        if o.kind in MEM_KINDS: b = max(b, st["lve"] + 8)
        if o.kind in M_KINDS: b = max(b, st["mfree"])
        if DS_FINE:
            if o.kind == "DW": b = max(b, st["ldr"] + 12)
            if o.note == "tr": b = max(b, st["ltr"] + 8)
        if getattr(o, "gapafter", False) and st["lm"] < st.get("lvs", -1): b = max(b, st["mfree"] + 8)
        nops = 0
        for (p, ws, lat, cnt) in o.preds:
            if cnt == "lgkm":
                if p.dsn > cov[0]: b = max(b, p.issue + DS_LAT + 4)
            else: b = max(b, p.issue + lat)
            if cnt == "vm": b = max(b, getattr(p, "arrive", 0))
            nops = max(nops, ws - (st["pos"] + w - p.pos - p.ninst))
        if o.vq:
            va = valloc(o)
            if va is None: return 1 << 50
            b = max(b, va[0]); nops = max(nops, va[1])
        if nops > 0: b = max(b, t + 4 * (w + nops))
        return b
    def emit_wait(nd=None, nv=None):
        it = Item()
        if nd is not None: it.lgkm = min(len(ds) - nd, 15); cov[0] = max(cov[0], len(ds) - it.lgkm)
        if nv is not None: it.vm = min(len(vm) - nv, 63); vcov[0] = max(vcov[0], len(vm) - it.vm)
        items.append(it); st["pos"] += 1; st["t"] += 4
    def issue(e, o):
        nd, nv = need(o)
        if nd > cov[0] or nv > vcov[0]:
            emit_wait(nd if nd > cov[0] else None, nv if nv > vcov[0] else None)
        nops = 0
        for (p, ws, lat, cnt) in o.preds: nops = max(nops, ws - (st["pos"] - p.pos - p.ninst))
        assert e < (1 << 49), "allocation deadlock"
        if o.vq:
            va = valloc(o); nops = max(nops, va[1])
            for q, p_ in va[2].items(): vmap[q] = p_; phold[p_] = q
            while vnext[0] < len(vorder) and vorder[vnext[0]] in vmap: vnext[0] += 1
            for q in o.vq: vleft[q] -= 1
        if nops > 0: items.append(Item(nop=nops)); st["pos"] += nops
        o.issue = e; o.pos = st["pos"]; st["pos"] += o.ninst
        if o.kind in M_KINDS:
            st["lm"] = e; st["mfree"] = e + (32 if o.kind == "M32" else 16); st["t"] = e + 4
            st["lmv"] = e + (12 if o.kind == "SM" else 8)
        else:
            st["t"] = e + o.cost
            if o.kind in VALU_KINDS: st["lve"] = st["t"]
            if o.kind == "VS":
                st["mfree"] = max(st["mfree"], max(e, st.get("vsfree", 0)) + 20); st["vsfree"] = max(e, st.get("vsfree", 0)) + 20; st["lvs"] = e
            if o.kind == "BAR": st["t"] = e + 24
        if o.kind == "DR": st["ldr"] = e
        if o.note == "tr": st["ltr"] = e
        if o.kind in ("DR", "DW"): ds.append(o); o.dsn = len(ds)
        if o.kind in ("VL", "VS", "VG"): vm.append(o); o.vmn = len(vm)
        items.append(Item(op=o)); ready.remove(o)
        for (q, lat) in succ[o.id]:
            q.npred -= 1
            if q.npred == 0: ready.append(q)
    mi = 0
    last_kind = None
    while ready:
        t = st["t"]
        while mi < len(mlist) and mlist[mi].issue is not None: mi += 1
        if items and items[-1].op is not None:
            gl = [o for o in ready if getattr(o, "glue", False) and not getattr(o, "soft", False) and any(p is items[-1].op for p in o.after[:o.glue])]
            if gl:
                issue(earliest(gl[0]), gl[0]); last_kind = gl[0].kind; continue
        if last_kind in M_KINDS:
            k = cov[0]
            while k < len(ds) and ds[k].issue + DS_LAT <= t: k += 1
            if DS_COV > DS_LAT:
                soon = {id(m) for m in mlist[mi:mi + 2]}
                while k > cov[0] and ds[k - 1].issue + DS_COV > t and not any(q.issue is None and (id(q) in soon or (q.kind not in M_KINDS and ds[k - 1].kind == "DR" and set(q.r) & set(ds[k - 1].w))) for (q, lat) in succ[ds[k - 1].id]): k -= 1
            bar = [o for o in ready if o.kind == "BAR" and earliest(o) <= t + 4]
            if bar:
                issue(earliest(bar[0]), bar[0]); last_kind = "W"; continue
            sal = [o for o in ready if o.kind == "S" and o.ninst == 1 and earliest(o) <= t]
            useful = k > cov[0] and any(x.kind == "DR" for x in ds[cov[0]:k])
            urgent = min((x.alap for x in ds[cov[0]:k] if x.kind == "DR"), default=1 << 60) + DS_LAT
            if useful and (not sal or urgent <= min(o.alap for o in sal)):
                emit_wait(k); last_kind = "W"; continue
            if sal:
                o = min(sal, key=lambda x: (x.alap, x.idx)); issue(t, o); last_kind = "W"; continue
        if last_kind in M_KINDS + ("W",):
            gl = [o for o in ready if getattr(o, "soft", False) and earliest(o) <= max(t, st["lm"] + 8)]
            if gl:
                o = min(gl, key=lambda x: x.idx); issue(earliest(o), o); last_kind = o.kind; continue
        cand = [(earliest(o), o) for o in ready]
        cand = [(e, o) for (e, o) in cand if e < (1 << 49)]
        ms = [(e, o) for (e, o) in cand if o.kind in M_KINDS]
        fs = [(e, o) for (e, o) in cand if o.kind not in M_KINDS]
        mnext = None
        if ms:
            if strict_m:
                win = set(x.id for x in mlist[mi:mi + 1 + lookahead])
                ms2 = [(e, o) for (e, o) in ms if o.id in win]
            else: ms2 = ms
            if ms2:
                emin = min(e for e, o in ms2)
                mnext = min(((e, o) for (e, o) in ms2 if e <= emin + 8), key=lambda x: x[1].idx)
        def needs_wait(o):
            nd, nv = need(o); return nd > cov[0] or nv > vcov[0]
        if mnext and (mnext[0] <= t or (mnext[0] <= t + 4 and needs_wait(mnext[1]))): pick = mnext
        else:
            lim = mnext[0] if mnext else 1 << 60
            if mnext and needs_wait(mnext[1]): lim -= 4
            crit = {}
            for dist, m in enumerate(mlist[mi:mi + CRIT_WIN]):
                stack = [m]
                while stack:
                    x = stack.pop()
                    for (p, ws, lat, cnt) in x.preds:
                        if p.issue is None and p.id not in crit and p.kind not in M_KINDS:
                            crit[p.id] = dist; stack.append(p)
            if vorder and vnext[0] < len(vorder):
                for u in vusers[vorder[vnext[0]]][:1]:
                    if u.kind not in M_KINDS and u.id not in crit: crit[u.id] = 1
                nfree = sum(1 for h in phold.values() if h is None or vleft[h] == 0)
                if nfree <= 1:
                    held = sorted((h for h in phold.values() if h is not None and vleft[h] > 0 and all(u.kind not in M_KINDS or u.issue is not None for u in vusers[h])), key=lambda h: vleft[h])
                    for h in held[:1]:
                        stack = [u for u in vusers[h] if u.issue is None]
                        while stack:
                            x = stack.pop(); crit[x.id] = min(crit.get(x.id, 99), 1)
                            stack += [p for (p, ws, lat, cnt) in x.preds if p.issue is None and p.kind not in M_KINDS and crit.get(p.id, 99) > 1]
            def key(x): return (crit.get(x[1].id, CRIT_WIN), x[1].alap, x[1].idx)
            fit = [(e, o) for (e, o) in fs if e + min(o.cost, 8) <= lim]
            urg = [(e, o) for (e, o) in fit if getattr(o, "urgent", False) and e <= t + 8]
            if urg: fit = urg
            elif not mnext and t >= st["mfree"] - 4:
                c0 = [(e, o) for (e, o) in fs if crit.get(o.id, 99) == 0 and e <= t + 12]
                if c0: fit = c0
            nons = [(e, o) for (e, o) in fit if not (o.kind == "S" and o.ninst == 1)]
            if mnext and any(e <= max(t, st["lm"] + 8) for (e, o) in nons): fit = nons
            if fit:
                base = max(t, st["lm"] + 8)
                now = [(e, o) for (e, o) in fit if e <= base]
                if not now:
                    emin = min(e for e, o in fit); now = [(e, o) for (e, o) in fit if e <= emin]
                nl = [(e, o) for (e, o) in now if not getattr(o, "lazy", False) or o.id in crit]
                if not nl and last_kind in M_KINDS + ("W",) and any(not getattr(o, "lazy", False) and o.kind in VALU_KINDS and e <= base + 4 for (e, o) in fit):
                    nl = [(e, o) for (e, o) in fit if not getattr(o, "lazy", False) and o.kind in VALU_KINDS and e <= base + 4]
                if nl: now = nl
                mem = [(e, o) for (e, o) in now if o.kind in MEM_KINDS]
                if mem and last_kind in M_KINDS + ("W",): now = mem
                pick = min(now, key=key)
            elif mnext:
                room = (lim - t) // 4
                want = 0
                for (e, o) in fs:
                    for (p, ws, lat, cnt) in o.preds: want = max(want, ws - (st["pos"] + 1 - p.pos - p.ninst))
                k = min(room, want)
                if k > 0 and last_kind != "N":
                    items.append(Item(nop=k)); st["pos"] += k; st["t"] += 4 * k; last_kind = "N"; continue
                pick = mnext
            elif fs: pick = min(fs, key=lambda x: (x[0], key(x)))
            else: pick = min(ms, key=lambda x: x[1].idx)
        issue(*pick); last_kind = pick[1].kind
    total = max(st["t"], st["mfree"])
    if report:
        seq = sorted(mlist, key=lambda o: o.issue)
        line = []
        for i in range(0, len(seq), 16):
            j = min(i + 16, len(seq) - 1)
            line.append(f"{seq[i].note}:{seq[j].issue - seq[i].issue - 16 * (j - i)}")
        print(" ".join(line))
    schedule2.vmap = vmap
    return items, total, end

def bind(ops, vmap):
    import re, copy
    def ph(n): return vmap[n // 4] + n % 4 if n >= VBASE else n
    def rr(x): return f"v{ph(int(x[1:]))}" if x[0] == "v" and x[1:].isdigit() else x
    m = {}; out = []
    for o in ops:
        c = copy.copy(o); Op._n += 1; c.id = Op._n; m[o.id] = c
        c.text = re.sub(r"v\[(\d+):(\d+)\]", lambda k: f"v[{ph(int(k.group(1)))}:{ph(int(k.group(2)))}]", o.text)
        c.text = re.sub(r"\bv(\d+)\b", lambda k: f"v{ph(int(k.group(1)))}", c.text)
        c.r = [rr(x) for x in o.r]; c.w = [rr(x) for x in o.w]; c.c = [rr(x) for x in o.c]
        out.append(c)
    for c in out: c.after = [m[p.id] for p in c.after if p.id in m]
    return out

def schedule_block(ops, pool, **kw):
    items, t, e = schedule2(ops, pool=pool, **kw)
    seq = [it.op for it in items if it.op is not None]
    return schedule2(bind(seq, schedule2.vmap), **kw)

def alloc_loop(make_body, pool, n=4, lookahead=0):
    allops = []; bodies = []
    for k in range(n):
        b = make_body()
        for i, o in enumerate(b): o.it = k; o.bi = i; o.after0 = list(o.after)
        if k:
            pins = [o for o in bodies[-1] if getattr(o, "pin", False)]
            for o in b: o.after = list(o.after) + pins
        bodies.append(b); allops += b
    items, total, end = schedule2(allops, lookahead=lookahead, pool=pool)
    vmap = dict(schedule2.vmap)
    f = lambda k: min(o.issue for o in bodies[k])
    print("   phase1 period", f(n - 1) - f(n - 2))
    seq = [it.op for it in items if it.op is not None and it.op.it == n - 2]
    for o in seq: o.after = o.after0
    return lambda: bind(seq, vmap)

def fix_items(pre, items):
    import copy
    trace = pre + items
    ops = []
    for n, it in enumerate(trace):
        if it.op is not None:
            c = copy.copy(it.op); Op._n += 1; c.id = Op._n; c.after = []; c.n = n; ops.append(c)
    build_deps(ops)
    byn = {c.n: c for c in ops}
    out = []
    pos = 0; dsn = 0; vmn = 0; done_ds = 0; done_vm = 0
    for n, it in enumerate(trace):
        emit = []
        if it.op is not None:
            c = byn[n]
            nd = max((p.dsn for (p, ws, lat, cnt) in c.preds if cnt == "lgkm"), default=0)
            nv = max((p.vmn for (p, ws, lat, cnt) in c.preds if cnt == "vm"), default=0)
            if n >= len(pre) and (nd > done_ds or nv > done_vm):
                w = Item()
                if nd > done_ds: w.lgkm = min(dsn - nd, 15); done_ds = dsn - w.lgkm
                if nv > done_vm: w.vm = min(vmn - nv, 63); done_vm = vmn - w.vm
                emit.append(w); pos += 1
            nops = max((ws - (pos - p.fpos - p.ninst) for (p, ws, lat, cnt) in c.preds), default=0)
            if n >= len(pre) and nops > 0: emit.append(Item(nop=nops)); pos += nops
            c.fpos = pos
            if c.kind in ("DR", "DW"): dsn += 1
            if c.kind in ("VL", "VS", "VG"): vmn += 1
            c.dsn = dsn; c.vmn = vmn
        elif it.raw is None and not it.nop:
            if it.vm is not None: done_vm = max(done_vm, vmn - it.vm)
            if it.lgkm is not None: done_ds = max(done_ds, dsn - it.lgkm)
        pos += it.states()
        emit.append(it)
        if n >= len(pre): out += emit
    return out


def schedule_loop(make_body, n=4, report=False, lookahead=0):
    allops = []; bodies = []
    for k in range(n):
        b = make_body()
        for i, o in enumerate(b): o.it = k; o.bi = i
        if k:
            pins = [o for o in bodies[-1] if getattr(o, "pin", False)]
            for o in b: o.after = list(o.after) + pins
        bodies.append(b); allops += b
    items, total, end = schedule2(allops, lookahead=lookahead)
    first = {}
    for n_, it in enumerate(items):
        if it.op is not None and it.op.it not in first: first[it.op.it] = n_
    k = n - 2
    def start(j):
        x = first[j]
        while x > 0 and items[x - 1].op is None: x -= 1
        return x
    win = items[start(k):start(k + 1)]
    idx = sorted(it.op.bi for it in win if it.op is not None)
    assert idx == list(range(len(bodies[0]))), "window is not a steady state"
    period = items[first[k + 1]].op.issue - items[first[k]].op.issue
    left = [it.op for it in win if it.op is not None and it.op.it == k - 1]
    assert all(it.op.it in (k - 1, k) for it in win if it.op is not None)
    posn = {it.op.bi: (n_, it.op.it - k) for n_, it in enumerate(win) if it.op is not None}
    L = len(win)
    def when(o): return (o.it - posn[o.bi][1]) * L + posn[o.bi][0]
    for o in allops:
        for (p, ws, lat, cnt) in o.preds:
            assert when(p) < when(o), ("order violated", p, o)
    if report:
        seq = [it.op for it in win if it.op is not None and it.op.kind in M_KINDS]
        line = []
        for i in range(0, len(seq), 16):
            j = min(i + 16, len(seq) - 1)
            line.append(f"{seq[i].note}:{seq[j].issue - seq[i].issue - sum(32 if o.kind == 'M32' else 16 for o in seq[i:j])}")
        print(" ".join(line)); print("leftover ops:", len(left), collections.Counter(o.note for o in left))
    t0 = items[first[k]].op.issue
    import copy
    for it in win:
        if it.op is not None: it.op = copy.copy(it.op); it.op.issue -= t0
    left2 = []
    for o in sorted(left, key=lambda o: o.bi):
        c = copy.copy(o); Op._n += 1; c.id = Op._n; c.after = []; left2.append(c)
    return win, left2, period, end // n
```

```python
import os, sys, math, struct, collections, copy, itertools
ARGV = sys.argv[:]; sys.argv = sys.argv[:2]
import gen5 as old
sys.argv = ARGV
import sched
from sched import Op, Item, schedule2, schedule_loop, alloc_loop, fix_items, verify, bind
from gen5 import v, a, vs, as_, srd, f32, lane_expr, lane_id, select, SRDTXT
from gen5 import sE, sO, sWQ, sWK, sWV, sWR, sC, sW, sP, sH, sB0, sCnt, sStC, sStP, sSo, sLn, sEn, sStr, sT0, sT1, sT2, sT3, sTog, sM, sBits, sRb, sRd
from gen5 import BBATCH, NB, UB, BLK, RG, TILE, BUFSZ, KSTEP, WQ, WK, WV, WR, FT, NAME

CFG = dict(lsp=145, tE1=5700, tE2=6100, u0s=8, lp=2, lpk=2, lp2=1, eh=8, cw=20, bp=0, noise=10, seed=1, annotate=0, stamps=0, nostore=0, nodma=0, ldnt=1, stpol=1,
           fallback=1, pf=2, thr=40, ga=3, gb=3, mq=2, mk=3, m0=3, seam=2, sync=1, u0=2, d0=12, dgap=20, dm=0)
for a_ in sys.argv[2:]:
    k_, v_ = a_.split("="); CFG[k_] = int(v_)
STPOL = ["", " nt", " sc1", " sc0 sc1", " sc0 nt", " sc1 nt", " sc0 sc1 nt"][CFG["stpol"]]; LDPOL = ["", " nt", " sc1 nt", " sc0 sc1 nt", " sc1", " sc0 nt"][CFG["ldnt"]]
TAB0 = 4 * BUFSZ; US = 1600; TABSZ = 8 * US; ZOFF = 1072; VOFF = 1088; CST = 272
SCR0 = TAB0 + 4 * TABSZ; SCRSZ = 4 * CST
RR0 = SCR0 + 4 * SCRSZ
FLAG = RR0 + 4 * 512; DUMP = FLAG + 16
LDS_TOTAL = 163840
assert DUMP + 512 <= LDS_TOTAL and TAB0 % 128 == 0 and TABSZ % 64 == 0 and SCR0 % 16 == 0
WST = 2 * BUFSZ
K0 = 0; V0 = 48; KRS = 96; VR = 100; QF = 104; PBUF = (112, 128); RES = (144, 160); OBLK = 176; ONES = 192; POOL0 = 196; NPOOL = 11
aE, aDMA, aST, aKr, aVr, aQa, aPw, aPr, aCw, aLw, IDX, SEL0, SEL1, INV, CHK, aFl = range(240, 256)
sBias = 96; sD = 98
POOL = [POOL0 + 4 * i for i in range(NPOOL)]
MK = ("M16", "SM", "M32")

class Prog:
    def __init__(self):
        self.ops = []; self.free = collections.deque(POOL); self.lastm = None; self.nm = 0; self.hook = None; self.fin = {}; self.queue = collections.deque()
    vq = 1000
    stpol = STPOL
    def alloc(self):
        self.free.popleft(); Prog.vq += 4; return Prog.vq
    def release(self, q): self.free.append(0)
    def add(self, *o, **k):
        op = Op(*o, **k); self.ops.append(op); return op
    def _m(self, op):
        self.lastm = op; self.nm += 1
        if self.hook: self.hook(self)
        elif self.queue:
            f = self.queue.popleft()
            if f:
                o = f(); o.after = [op] + list(o.after); o.glue = 1; o.soft = True; o.urgent = False
        return op
    def mfma(self, d, A, B, first=False, note=""):
        def t(x): return (v if x[0] == "v" else a)(x[1], 4)
        def r(x): return (vs if x[0] == "v" else as_)(x[1], 4)
        ct, c = ("0", []) if first else (v(d, 4), vs(d, 4))
        op = self.add(f"v_mfma_f32_16x16x32_bf16 {v(d, 4)}, {t(A)}, {t(B)}, {ct}", "M16", r=r(A) + r(B), w=vs(d, 4), c=c, note=note)
        op.mf = (d, A, B, ct)
        return self._m(op)
    def smf(self, d, A, B, abid=0, note=""):
        op = self.add(f"v_smfmac_f32_16x16x64_bf16 {v(d, 4)}, {v(A, 4)}, {v(B, 8)}, {v(IDX)}" + (" abid:1" if abid else ""), "SM", r=vs(A, 4) + vs(B, 8) + [v(IDX)], w=vs(d, 4), c=vs(d, 4), note=note)
        op.mf = (d, ("v", A), ("v", B), "x")
        return self._m(op)
    def m32(self, d, A, B, note=""):
        op = self.add(f"v_mfma_f32_32x32x16_bf16 {v(d, 16)}, {v(A, 4)}, {v(B, 4)}, 0", "M32", r=vs(A, 4) + vs(B, 4), w=vs(d, 16), note=note)
        op.mf = (d, ("v", A), ("v", B), "x")
        return self._m(op)
    def share(self):
        chains = []
        for o in self.ops:
            if o.kind not in MK: continue
            if o.kind == "M16" and chains and chains[-1][-1].kind == "M16" and chains[-1][-1].mf[0] == o.mf[0] and o.mf[3] != "0": chains[-1].append(o)
            else: chains.append([o])
        def opts(c):
            st = [(o.mf[1], o.mf[2]) for o in c]
            if len(st) == 1: return [(0, 0, st)]
            return [(i, j, [st[i]] + [x for k, x in enumerate(st) if k not in (i, j)] + [st[j]]) for i, j in itertools.permutations(range(len(st)), 2)]
        def gain(x, y): return int(x[0] == y[0]) + int(x[1] == y[1])
        allo = [opts(c) for c in chains]
        best = [[0.0 - 1e-3 * (i != 0) for (i, j, q) in allo[0]]]; back = [[None] * len(allo[0])]
        for n in range(1, len(chains)):
            b = []; k_ = []
            for (i, j, q) in allo[n]:
                sc = [best[-1][m] + gain(pq[-1], q[0]) for m, (_, _, pq) in enumerate(allo[n - 1])]
                m = max(range(len(sc)), key=lambda m: sc[m]); b.append(sc[m] - 1e-3 * (i != 0) - 1e-3 * (j != len(q) - 1)); k_.append(m)
            best.append(b); back.append(k_)
        m = max(range(len(best[-1])), key=lambda m: best[-1][m]); tot = best[-1][m]
        for n in range(len(chains) - 1, -1, -1):
            for o, (A, B) in zip(chains[n], allo[n][m][2]):
                if o.kind != "M16": continue
                d, _, _, ct = o.mf
                t = lambda x: (v if x[0] == "v" else a)(x[1], 4)
                r = lambda x: (vs if x[0] == "v" else as_)(x[1], 4)
                o.text = f"v_mfma_f32_16x16x32_bf16 {v(d, 4)}, {t(A)}, {t(B)}, {ct}"; o.r = r(A) + r(B); o.mf = (d, A, B, ct)
            m = back[n][m]
        return round(tot), len(chains)
    def dsr(self, dst, n, addr, off, pseudo=(), note="", ins=None):
        ins = ins or {4: "ds_read_b128", 2: "ds_read_b64", 1: "ds_read_b32"}[n]
        assert 0 <= off < 65536
        return self.add(f"{ins} {v(dst, n)}, {v(addr)} offset:{off}", "DR", r=[v(addr)] + list(pseudo), w=vs(dst, n), note=note)
    def dsw(self, addr, src, n, off, pw=(), pr=(), note="", ins=None):
        ins = ins or {4: "ds_write_b128", 2: "ds_write_b64", 1: "ds_write_b32"}[n]
        assert 0 <= off < 65536
        return self.add(f"{ins} {v(addr)}, {v(src, n)} offset:{off}", "DW", r=[v(addr)] + vs(src, n) + list(pr), w=list(pw), note=note, cost={4: 28, 2: 12, 1: 8}[n])
    def valu(self, text, r, w, kind="V", **k): return self.add(text, kind, r=r, w=w, **k)
    def op2(self, ins, d, x, y, note="", kind="V"):
        return self.valu(f"{ins} {v(d)}, {v(x)}, {v(y)}", [v(x), v(y)], [v(d)], kind=kind, note=note)
    def cvt(self, d, x, y, note=""): return self.op2("v_cvt_pk_bf16_f32", d, x, y, note)
    def exp(self, x, note=""): return self.valu(f"v_exp_f32 {v(x)}, {v(x)}", [v(x)], [v(x)], kind="T", note=note)
    def mov(self, d, val, note=""): return self.valu(f"v_mov_b32 {v(d)}, {val}", [], [v(d)], note=note)
    def mov2(self, d, val="0", note=""):
        o = self.valu(f"v_mov_b64 {v(d, 2)}, {val}", [], vs(d, 2), note=note); self.hold(o, CFG.get("zh", 6)); return o
    def hold(self, o, k):
        ms = [x for x in self.ops if x.kind in MK]
        if len(ms) > k: o.after = list(o.after) + [ms[-1 - k]]
    def salu(self, text, r=(), w=(), **k): return self.add(text, "S", r=list(r), w=list(w), **k)

class ESet:
    def __init__(self, P, t, pseudo, note, fixed=None, tag=None):
        self.fixed = fixed; self.fr = []
        for ks in range(4):
            q = P.alloc() if fixed is None else fixed[ks]
            o = P.dsr(q, 4, aE, t * TILE + ks * KSTEP, pseudo, note); self.fr.append(q)
            o.tag = (tag, ks); P.hold(o, CFG["eh"])
    def __getitem__(self, ks): return self.fr[ks]
def eload(P, t, pseudo, note="e", fixed=None, tag=None): return ESet(P, t, pseudo, note, fixed, tag)
def efree(P, e):
    if e.fixed is None:
        for q in e.fr: P.release(q)

def chain(P, W, mt, fr, e_is_A, d, note):
    for n_, ks in enumerate([3, 2, 1, 0] if mt & 1 else [0, 1, 2, 3]):
        w = ("a", W + (mt * 4 + ks) * 4)
        A, B = (("v", fr[ks]), w) if e_is_A else (w, ("v", fr[ks]))
        P.mfma(d, A, B, first=(n_ == 0), note=note)
def pchain(P, W, mt, fr, e_is_A, dst, note, dst1=None):
    d = P.alloc(); chain(P, W, mt, fr, e_is_A, d, note)
    P.cvt(dst, d, d + 1, note + "c"); P.cvt(dst + 1 if dst1 is None else dst1, d + 2, d + 3, note + "c"); P.release(d)
def kch(P, t, mt, fr): pchain(P, WK, mt, fr, False, K0 + 8 * t + 2 * mt, f"K{t}")
def qch(P, mt, fr, tau, qf=QF): pchain(P, WQ, mt, fr, False, qf + 2 * mt, f"Q{tau}")
def vch(P, t, mt, fr): pchain(P, WV, mt, fr, True, V0 + 16 * (t >> 1) + 4 * mt + 2 * (t & 1), f"V{t}")
def rch(P, mt, fr, tau): chain(P, WR, mt, fr, False, RES[tau & 1] + 4 * mt, f"R{tau}")
def MTO(k): return [3, 2, 1, 0] if k & 1 else [0, 1, 2, 3]

def sc(P, tau, gs, QF=QF):
    pb = PBUF[tau & 1]; n = f"X{tau}"
    for g in gs:
        d = P.alloc()
        if g < 6:
            for ks in range(2): P.mfma(d, ("v", K0 + 8 * g + 4 * ks), ("v", QF + 4 * ks), first=(ks == 0), note=f"S{tau}")
            for i in range(4): P.exp(d + i, n)
            dst = pb + 4 * (g >> 1) + 2 * (g & 1)
            P.cvt(dst, d, d + 1, n); P.cvt(dst + 1, d + 2, d + 3, n)
        else:
            for i in (0, 2): P.mov2(d + i, f"s[{sBias}:{sBias+1}]", n)
            P.smf(d, KRS, QF, note=f"S{tau}")
            for i in (0, 2): P.op2("v_add_f32", d + i, d + i, d + i + 1, n); P.exp(d + i, n)
            for i, sel in enumerate((SEL0, SEL1)):
                P.valu(f"v_perm_b32 {v(pb + 12 + i)}, {v(d + 2)}, {v(d)}, {v(sel)}", [v(d), v(d + 2), v(sel)], [v(pb + 12 + i)], note=n)
        P.release(d)
def lsum(P, tau):
    pb = PBUF[tau & 1]; n = f"L{tau}"
    d = P.alloc(); P.mov2(d, "0", n)
    P.smf(d, ONES, pb, note=n); P.smf(d, ONES, pb + 8, abid=1, note=n)
    P.op2("v_add_f32", d, d, d + 1, n)
    P.valu(f"v_rcp_f32 {v(INV)}, {v(d)}", [v(d)], [v(INV)], kind="T", note=n, early=CFG.get("fe", 100))
    P.valu(f"v_max3_f32 {v(CHK)}, {v(CHK)}, {v(d)}, {v(INV)}", [v(CHK), v(d), v(INV)], [v(CHK)], note=n)
    P.release(d)

def pack_half(P, r, half, note):
    b = r + 8 * half
    for k in range(4): P.cvt(b + k, b + 2 * k, b + 2 * k + 1, note)
    return [P.valu(f"v_pk_max_i16 {v(b+k)}, {v(b+k)}, 0", [v(b + k)], [v(b + k)], note=note) for k in range(4)]
def stores(P, r, sreg, vaddr, note, after=()):
    o = None
    for half in range(2):
        b = r + 8 * half
        o = P.add(f"buffer_store_dwordx4 {v(b, 4)}, {v(vaddr)}, {srd(sO)}, s{sreg} offen offset:{half * 64}{P.stpol}", "VS", r=vs(b, 4) + [v(vaddr), f"s{sreg}"], note=note, cost=(24, 4)[half],
                  after=list(after) if o is None else [o])
        o.urgent = True
        if half or (len(after) == 1 and after[0].kind == "M32"): o.glue = 1
    return o
def pv(P, tau, mts):
    pb = PBUF[tau & 1]; r = RES[tau & 1]
    for mt in mts:
        d = OBLK + 4 * mt
        for kp in range(3): P.mfma(d, ("v", V0 + 16 * kp + 4 * mt), ("v", pb + 4 * kp), note=f"PV{tau}")
        for i in range(4):
            x = r + 4 * mt + i
            P.valu(f"v_fmac_f32 {v(x)}, {v(d+i)}, {v(INV)}", [v(x), v(d + i), v(INV)], [v(x)], note=f"D{tau}")
        if mt & 1: P.fin.setdefault(tau, []).extend(pack_half(P, r, mt >> 1, f"D{tau}"))
def m32st(P, tau, prev=None, sbase=None, pre=None):
    o = None
    if prev is not None:
        st = (sT0, sT1)[prev & 1]
        s_ = P.salu(f"s_add_u32 s{st}, s{sbase}, {FT[prev] * 4096}", r=[f"s{sbase}"], w=[f"s{st}"])
    aft = P.fin.pop(prev) + [s_] if prev is not None else []
    if pre: aft += pre(P)
    if tau is not None:
        hk = P.hook; P.hook = None
        o = P.m32(OBLK, VR, PBUF[tau & 1] + 12, note=f"PV{tau}"); o.after = list(aft); aft = [o]
        P.hook = hk
    if prev is not None: o = stores(P, RES[prev & 1], st, aST, f"D{prev}", aft)
    return o

class Rem:
    def __init__(self, P): self.P = P
    def ld(self):
        P = self.P; self.a = P.alloc(); P.hold(P.dsr(self.a, 4, aQa, 0, ["L:Qtab"], "Srem"), 8)
    def s(self, par):
        P = self.P
        if par == 0:
            for t in range(6): P.mov2(OBLK + 2 * t, "0", "Xrem")
        for t in range(par, 6, 2): P.smf(OBLK + 2 * t, self.a, K0 + 8 * t, note="Srem")
        if par: P.release(self.a)
    def soft(self):
        P = self.P; n = "Xrem"; l = OBLK + 12
        for t in range(6):
            x = OBLK + 2 * t; P.op2("v_add_f32", x, x, x + 1, n); P.exp(x, n)
        P.op2("v_add_f32", l, OBLK, OBLK + 2, n)
        for t in range(2, 6): P.op2("v_add_f32", l, l, OBLK + 2 * t, n)
        for rot in (8, 4):
            P.valu(f"v_add_f32_dpp {v(l)}, {v(l)}, {v(l)} row_ror:{rot} row_mask:0xf bank_mask:0xf", [v(l)], [v(l)], kind="DPP", note=n)
        P.dsw(aLw, l, 1, 0, pw=["L:Qtab", "L:Ktab"], note=n)
        for kp in range(3):
            x = OBLK + 4 * kp; P.cvt(x + 1, x, x + 2, n)
            P.dsw(aPw, x + 1, 1, kp * CST, pw=["L:Ps"], note=n, ins="ds_write_b16")
            P.dsw(aPw, x + 1, 1, kp * CST + 4, pw=["L:Ps"], note=n, ins="ds_write_b16_d16_hi")
    def ldp(self):
        P = self.P; self.b = [P.alloc() for _ in range(3)]
        for kp in range(3): P.hold(P.dsr(self.b[kp], 4, aPr, kp * CST, ["L:Ps"], "PVrem"), 4)
    def pv(self):
        P = self.P; n = "PVrem"
        for s_ in range(2):
            d = P.alloc()
            for i in (0, 2): P.mov2(d + i, "0", n)
            for kp in ((0, 1, 2), (2, 1, 0))[s_]: P.smf(d, self.b[kp], V0 + 16 * kp + 8 * s_, note=n)
            for i in (0, 2): P.op2("v_add_f32", d + i, d + i, d + i + 1, n)
            P.add(f"ds_write2_b32 {v(aCw)}, {v(d)}, {v(d + 2)} offset0:{32 * s_} offset1:{32 * s_ + 16}", "DW", r=[v(aCw), v(d), v(d + 2)], w=["L:Qtab", "L:Ktab"], note=n, cost=12)
            P.release(d)
        for q in self.b: P.release(q)

def dma_setup(P, i, pr):
    o = [P.salu(f"s_add_u32 m0, s{sLn}, {2 * i * TILE}", r=[f"s{sLn}"] + pr, w=["m0"])]
    if i == 0: o.append(P.salu(f"s_mov_b32 s{sD}, s{sEn}", r=[f"s{sEn}"] + pr, w=[f"s{sD}"]))
    else: o.append(P.salu(f"s_add_u32 s{sD}, s{sD}, s{sSo}", r=[f"s{sD}", f"s{sSo}"] + pr, w=[f"s{sD}"]))
    for k in range(1, 4): o.append(P.salu(f"s_add_u32 s{sD+k}, s{sD+k-1}, s{sStr}", r=[f"s{sD+k-1}", f"s{sStr}"] + pr, w=[f"s{sD+k}"]))
    for x in o: x.early = 20000
    return o
def dma(P, k, pr, after, cost):
    o = P.add(f"buffer_load_dwordx4 {v(aDMA)}, {srd(sE)}, s{sD+k} offen offset:{k * BLK}{LDPOL} lds", "VL", r=[v(aDMA), "m0", f"s{sD+k}"] + pr, w=["dma"], note="dma", after=after, cost=cost)
    o.early = 20000; o.urgent = True; o.glue = 1
    return o
def dma_spread(P, i, ks, pr, gap=1):
    ks = list(ks)
    if ks[0] == 0:
        su = dma_setup(P, i, pr); del P.ops[-5:]; n_ = P.ops.index(P.lastm); P.ops[n_:n_] = su; P.lastm.after = list(P.lastm.after) + su
    n0 = P.nm
    def hook(P_):
        if (P_.nm - n0) % gap == 0:
            dma(P_, ks.pop(0), pr, [P_.lastm], 8)
            if not ks: P_.hook = None
    assert P.hook is None
    P.hook = hook; hook(P)

def remops(P):
    P.dsr(KRS, 4, aKr, 0, ["L:Ktab"], "KR")
    P.add(f"ds_read2_b32 {v(VR, 2)}, {v(aVr)} offset0:0 offset1:8", "DR", r=[v(aVr), "L:Vtab"], w=vs(VR, 2), note="VR")

def signal(P):
    q = P.alloc()
    P.hold(P.valu(f"v_mov_b32 {v(q)}, s{sCnt}", [f"s{sCnt}"], [v(q)], note="sig"), 2)
    P.dsw(aPw, q, 1, 3 * CST, pw=["Bs"], pr=["dma"], note="sig", ins="ds_write_b16").early = 500
    P.release(q)
def check(P):
    q = P.alloc()
    o = P.dsr(q, 1, aFl, 0, ["Bs"], "chk", ins="ds_read_u16"); o.delay = CFG.get("cd", 120); o.urgent = True
    P.valu(f"v_cmp_lt_u32 vcc, s{sCnt}, {v(q)}", [f"s{sCnt}", v(q)], ["vcc"], note="chk").urgent = True
    o = P.add("s_cbranch_vccnz L_spin\nL_back:", "S", r=["vcc", v(q), f"s{sCnt}"], w=["B"], note="chk", cost=4); o.ninst = 1
    P.release(q)

def run(P, order, pseudo=lambda t, n: ["B", "Bs"], fixed={}):
    toks = order.split(); E = {}; R = Rem(P); lastW = None; dirn = {}; late = False
    def tile(w): return int(w[1]) if w[0] in "KV" else FT[int(w[1])]
    for n, w in enumerate(toks):
        h, _, arg = w.partition(":")
        if w[0] in "KVQR":
            t = tile(w)
            if h not in dirn:
                dirn[h] = (1 - dirn[lastW]) if lastW and lastW[0] == h[0] else 0
            lastW = h
            for c in (arg or "0123"):
                mt = MTO(dirn[h])[int(c)]
                if h[0] == "K": kch(P, t, mt, E[t])
                elif h[0] == "V": vch(P, t, mt, E[t])
                elif h[0] == "Q": qch(P, mt, E[t], int(h[1]))
                else: rch(P, mt, E[t], int(h[1]))
            used = False
            for x in toks[n + 1:]:
                if x == f"e{t}": break
                if x[0] in "KVQR" and tile(x) == t: used = True
            if not used: efree(P, E.pop(t))
        elif w[0] == "e":
            t = int(w[1]); k = toks[:n].count(w)
            nxt = toks.index("cut") if "cut" in toks else -1
            across = n < nxt and w not in toks[n + 1:nxt] and any(x[0] in "KVQR" and tile(x) == t for x in itertools.takewhile(lambda y: y != w, toks[nxt:]))
            E[t] = eload(P, t, pseudo(t, k), tag="e4" if across else None, fixed=fixed.get(n))
        elif h == "sig":
            if CFG["sync"]:
                P.salu(f"s_sub_u32 s{sCnt}, s{sCnt}, 1", r=[f"s{sCnt}"], w=[f"s{sCnt}"]); signal(P)
        elif h == "rl": R.ld()
        elif h == "r0": R.s(0)
        elif h == "r1": R.s(1); R.soft()
        elif h == "pl": R.ldp()
        elif h == "pr": R.pv()
        elif h == "ko": remops(P)
        elif h == "cut": P.cut = len(P.ops); late = True
        elif w[0] == "s": sc(P, int(h[1]), [int(c) for c in arg])
        elif w[0] == "p": pv(P, int(h[1]), [int(c) for c in (arg or "0123")])
        elif w[0] == "l": lsum(P, int(h[1]))
        elif w[0] == "m":
            tau = int(h[1]); prev = (tau - 1) % 6
            nd = toks[n + 1] if n + 1 < len(toks) and toks[n + 1][0] == "d" else None
            pre = step if tau == 4 else ((lambda P_: dma_setup(P_, int(nd[1]), ["B"])) if nd and nd[3] == "0" else None)
            o = m32st(P, tau, prev, sStP if prev >= 4 else sStC, pre)
            if tau == 4: P.seam = o
            if nd:
                for c in nd[3:]: o = dma(P, int(c), ["B"], [o], 4)
        elif w[0] == "d":
            if toks[n - 1][0] != "m": dma_spread(P, int(h[1]), [int(c) for c in arg], ["B"])
        else: raise ValueError(w)
    assert not E, E

ORDERS = {
 0: """e0 s5:6012 K0:012 e1 K0:3 p4 s5:34 K1:012 e2 K1:3 m5 K2:012 e3 K2:3 s5:5 K3:012 e4 K3:3 K4:01 l5 K4:2 e5 K4:3 p5 K5 ko
       Q0:01 rl Q0:23 r0 R0:0 r1 R0:123 s0:601 V5:012 e1 V5:3 s0:23 V1:012 e0 V1:3 m0 s0:45 V0 Q1 l0 R1:01 e2 R1:23 s1:601 V2:012 e3 V2:3 s1:23 V3:012 e4 V3:3 V4 s1:45 cut
       p0 Q2:012 pl Q2:3 pr s2:6012 m1 R2:01 l1 R2:23 p1:01 e1 p1:23 s2:345 Q3:012 m2 Q3:3 R3:012 l2 R3:3 s3:6012 p2:01 e2 p2:23 s3:345 Q4:012 m3 Q4:3
       R4:012 l3 R4:3 s4:6012 p3:01 e3 p3:23 s4:345 Q5:012 m4 Q5:3 R5:012 l4 R5:3""",
 1: """e0 s5:601 K0:0 d0:01 K0:1 l4 K0:2 e1 K0:3 p4 s5:23 K1:012 e2 K1:3 K2:012 m5 d0:23 e3 K2:3 s5:45 K3:01 d1:01 K3:2 e4 K3:3 K4:012 e5 l5 K4:3 p5 K5 ko
       Q0:01 rl d1:23 Q0:23 r0 R0:0 r1 R0:123 s0:60 V5:012 e1 V5:3 s0:123 V1:012 e0 V1:3 m0 d2:0123 s0:45 V0 Q1 l0 R1:01 e2 R1:23 s1:601 V2:012 e3 V2:3 s1:23 V3:012 e4 V3:3 V4 s1:45 cut
       p0 Q2:012 pl Q2:3 pr s2:6012 m1 R2:01 l1 R2:23 p1:01 e1 p1:23 s2:345 Q3:012 m2 Q3:3 R3:012 l2 R3:3 s3:6012 p2:01 e2 p2:23 s3:345 Q4:012 m3 Q4:3
       R4 l3 s4:6012 p3:01 e3 p3:23 sig s4:345 Q5:012 m4 Q5:3 R5""",
}
ORDER = open(os.environ["ORDER"]).read() if os.environ.get("ORDER") else ORDERS[CFG.get("ord", 1)]

def body(P):
    if CFG["sync"]:
        o = P.add("s_nop 0", "S", cost=0); o.marker = True
        check(P)
    else: P.add("s_barrier", "BAR", r=["dma"], w=["B"])
    run(P, ORDER)
    assert P.hook is None and sum(o.kind == "VL" for o in P.ops[:P.cut]) == 12

def step(P):
    n0 = len(P.ops)
    P.valu(f"v_add_u32 {v(aE)}, s{sTog}, {v(aE)}", [v(aE), f"s{sTog}"], [v(aE)])
    P.salu(f"s_sub_u32 s{sLn}, s{sLn}, s{sTog}", r=[f"s{sLn}", f"s{sTog}"], w=[f"s{sLn}"])
    P.salu(f"s_sub_u32 s{sTog}, 0, s{sTog}", r=[f"s{sTog}"], w=[f"s{sTog}"])
    for x in (aKr, aVr, aQa, aCw, aLw):
        P.valu(f"v_add_u32 {v(x)}, {US}, {v(x)}", [v(x)], [v(x)])
    P.salu(f"s_mov_b32 s{sStP}, s{sStC}", r=[f"s{sStC}"], w=[f"s{sStP}"])
    P.salu(f"s_add_u32 s{sStC}, s{sStC}, {UB}", r=[f"s{sStC}"], w=[f"s{sStC}"])
    if not CFG["sync"]: P.salu(f"s_sub_u32 s{sCnt}, s{sCnt}, 1", r=[f"s{sCnt}"], w=[f"s{sCnt}"])
    P.salu(f"s_add_u32 s{sEn}, s{sEn}, {UB}", r=[f"s{sEn}"], w=[f"s{sEn}"])
    P.salu(f"s_bfe_i32 s{sM}, s{sBits}, 0x10000", r=[f"s{sBits}"], w=[f"s{sM}"])
    P.salu(f"s_lshr_b32 s{sBits}, s{sBits}, 1", r=[f"s{sBits}"], w=[f"s{sBits}"])
    P.salu(f"s_and_b32 s{sStr}, s{sM}, {UB - 1024}", r=[f"s{sM}"], w=[f"s{sStr}"])
    P.salu(f"s_lshl3_add_u32 s{sSo}, s{sStr}, 8192", r=[f"s{sStr}"], w=[f"s{sSo}"])
    P.salu(f"s_sub_u32 s{sStr}, s{sStr}, {BLK - 1024}", r=[f"s{sStr}"], w=[f"s{sStr}"])
    P.salu(f"s_and_b32 s{sT2}, s{sM}, s{sRd}", r=[f"s{sM}", f"s{sRd}"], w=[f"s{sT2}"])
    P.salu(f"s_sub_u32 s{sEn}, s{sEn}, s{sT2}", r=[f"s{sEn}", f"s{sT2}"], w=[f"s{sEn}"])
    for o in P.ops[n0:]: o.pin = True
    return P.ops[n0:]

def xor_in(P, dst, L, t, terms):
    for (off, w, sh) in terms:
        P.valu(f"v_bfe_u32 {v(t)}, {v(L)}, {off}, {w}", [v(L)], [v(t)])
        P.valu(f"v_lshlrev_b32 {v(t)}, {sh}, {v(t)}", [v(t)], [v(t)])
        P.valu(f"v_xor_b32 {v(dst)}, {v(t)}, {v(dst)}", [v(t), v(dst)], [v(dst)])
def lanemask(fn):
    m = 0
    for l in range(64):
        if fn(l): m |= 1 << l
    return m
def selc(P, dst, t, ctrue, cfalse, fn):
    P.mov(dst, cfalse); P.mov(t, ctrue); select(P, dst, t, dst, fn)

def unit0(P, e4regs, TQ):
    E = 1 << 20
    SV = WST; SQ = TAB0 - 16384; SK = SQ + 32768
    assert SV + 32768 <= SQ and SK + 32768 <= SCR0 and SV % 128 == 0 and SQ % 128 == 0
    ER = V0; KP = V0 + 32; QP = V0 + 40
    WQR = PBUF[0]; WRR = RES[0]
    L, t, vK0, vK1, vQ0, vQ1, y0, y1 = range(OBLK, OBLK + 8)
    aT = [OBLK + 8 + i for i in range(4)]; aV = [OBLK + 12, OBLK + 13]; vWr, vLin = OBLK + 14, OBLK + 15
    vV, aVw = TQ, TQ + 1; aTabW = [TQ + 2, TQ + 3]; aZw = KRS; aRw = INV
    sTab, sX = sT0, sT1
    o = P.salu(SRDTXT, r=["s4", "s5"], w=["srd"]); o.nb = CFG.get("knb", 200); o.urgent = True
    nld = [0]
    sp = CFG["lsp"]
    ARR = [1000] * 8 + [2400] * 12 + [CFG.get("tR", 3300)] * 4 + [CFG.get("tV", 3800)] * 8 + [CFG.get("tO", 5000)] * 8 + [CFG["tE1"]] * 4 + [CFG["tE2"]] * 4
    def timed(o):
        n = nld[0]; nld[0] += 1
        o.r = o.r + ["srd"]; o.nb = 350 + 25 * n if n < 20 else CFG.get("nb0", 1000) + sp * (n - 20); o.arrive = ARR[n]; o.urgent = True; o.early = E
        return o
    def V(text, r, w): return P.valu(text, r, w, early=E)
    lane_id(P, L)
    V(f"v_lshlrev_b32 {v(vLin)}, 4, {v(L)}", [v(L)], [v(vLin)])
    V(f"v_and_b32 {v(t)}, 16, {v(L)}", [v(L)], [v(t)])
    V(f"v_lshlrev_b32 {v(vV)}, 2, {v(t)}", [v(t)], [v(vV)])
    V(f"v_lshlrev_b32 {v(t)}, 1, {v(t)}", [v(t)], [v(t)])
    V(f"v_xor_b32 {v(vK0)}, {v(vLin)}, {v(t)}", [v(vLin), v(t)], [v(vK0)])
    V(f"v_xor_b32 {v(vV)}, {v(vLin)}, {v(vV)}", [v(vLin), v(vV)], [v(vV)])
    V(f"v_xor_b32 {v(vK1)}, 64, {v(vK0)}", [v(vK0)], [v(vK1)])
    P.salu(f"s_lshl_b32 s{sT2}, s{sW}, 13", r=[f"s{sW}"], w=[f"s{sT2}"], early=E)
    P.salu(f"s_add_u32 s{sM}, s{sT2}, 4096", r=[f"s{sT2}"], w=[f"s{sM}"], early=E)
    def wdma(srdn, lds, pw, vo):
        for j4 in range(2):
            so = (sT2, sM)[j4]
            P.salu(f"s_add_u32 m0, s{so}, {lds}", r=[f"s{so}"], w=["m0"], early=E).urgent = True
            for j in range(4):
                timed(P.add(f"buffer_load_dwordx4 {v(vo[j & 1])}, {srd(srdn)}, s{so} offen offset:{j*1024} lds", "VL", r=[v(vo[j & 1]), "m0", f"s{so}"], w=[pw, "ord"], note="wdma"))
    def gl(dst, srdn):
        for j in range(8):
            so = (sT2, sM)[j >> 2]
            timed(P.add(f"buffer_load_dwordx4 {v(dst + 4 * j, 4)}, {v(vLin)}, {srd(srdn)}, s{so} offen offset:{(j & 3) * 1024}", "VG", r=[v(vLin), f"s{so}"], w=vs(dst + 4 * j, 4) + ["ord"], note="gl"))
    def edma(js, src, pw, lb=sLn, sb=sT3, pr=[]):
        for j in js:
            P.salu(f"s_add_u32 m0, s{lb}, {j * RG}", r=[f"s{lb}"] + pr, w=["m0"], early=E).urgent = True
            P.salu(f"s_add_u32 s{sSo}, s{sb}, {src(j)}", r=[f"s{sb}"] + pr, w=[f"s{sSo}"], early=E).urgent = True
            timed(P.add(f"buffer_load_dwordx4 {v(aDMA)}, {srd(sE)}, s{sSo} offen{LDPOL} lds", "VL", r=[v(aDMA), "m0", f"s{sSo}"] + pr, w=[pw, "ord"], note="dma"))
    lane_expr(P, aDMA, L, t, [(0, 2, 16), (4, 2, 64), (2, 2, 256)])
    P.salu(f"s_lshl_b32 s{sT3}, s{sH}, 10", r=[f"s{sH}"], w=[f"s{sT3}"])
    P.salu(f"s_add_u32 s{sT3}, s{sT3}, s{sB0}", r=[f"s{sT3}", f"s{sB0}"], w=[f"s{sT3}"])
    P.salu(f"s_lshl_b32 s{sEn}, s{sH}, 12\ns_add_u32 s{sEn}, s{sEn}, s{sB0}\ns_add_u32 s{sEn}, s{sEn}, {UB}", r=[f"s{sH}", f"s{sB0}"], w=[f"s{sEn}"])
    P.salu(f"s_mul_i32 s{sLn}, s{sP}, {BUFSZ}\ns_mul_i32 s{sX}, s{sH}, {BLK}\ns_add_u32 s{sLn}, s{sLn}, s{sX}", r=[f"s{sP}", f"s{sH}"], w=[f"s{sLn}", f"s{sX}"])
    P.salu(f"s_mov_b32 s{sStr}, {1024 - BLK}", w=[f"s{sStr}"])
    P.salu(f"s_mul_i32 s{sRb}, s{sH}, {UB}\ns_add_u32 s{sRb}, s{sRb}, s{sB0}\ns_add_u32 s{sRb}, s{sRb}, {96 * 256}\ns_mul_i32 s{sRd}, s{sH}, {4096 - 4 * UB}\ns_add_u32 s{sRd}, s{sRd}, {8 * UB - 96 * 256}",
           r=[f"s{sH}", f"s{sB0}"], w=[f"s{sRb}", f"s{sRd}"])
    gl(WQR, sWQ)
    edma([10, 11, 0, 1], lambda j: j * 2048, "dK")
    wdma(sWK, SK, "dK", (vK0, vK1))
    edma(range(6, 10), lambda j: (j - 6) * 2 * UB, "dR", sb=sRb)
    wdma(sWV, SV, "dV", (vV, vV))
    gl(WRR, sWR)
    edma(range(2, 6), lambda j: j * 2048, "dE1")
    P.salu(f"s_lshl_b32 s{sX}, s{sH}, 14", r=[f"s{sH}"], w=[f"s{sX}"])
    lane_expr(P, aT[0], L, t, [(4, 2, 1024), (2, 2, 128), (3, 1, 32), (4, 1, 64), (0, 2, 8)], const=SQ, sconst=sX)
    for mt in range(1, 4): P.valu(f"v_xor_b32 {v(aT[mt])}, {mt * 32}, {v(aT[0])}", [v(aT[0])], [v(aT[mt])])
    lane_expr(P, aV[0], L, t, [(4, 2, 1024), (2, 2, 128), (3, 1, 64), (0, 2, 16)], const=SV, sconst=sX)
    P.valu(f"v_xor_b32 {v(aV[1])}, 64, {v(aV[0])}", [v(aV[0])], [v(aV[1])])
    P.salu(f"s_mul_i32 s{sX}, s{sP}, {BUFSZ}", r=[f"s{sP}"], w=[f"s{sX}"])
    lane_expr(P, aE, L, t, [(2, 2, BLK), (0, 2, 64), (4, 2, 16)], sconst=sX)
    P.salu(f"s_add_u32 s{sX}, s{sT2}, {SQ}", r=[f"s{sT2}"], w=[f"s{sX}"])
    P.valu(f"v_add_u32 {v(vQ0)}, s{sX}, {v(vK0)}", [v(vK0), f"s{sX}"], [v(vQ0)])
    P.valu(f"v_add_u32 {v(vQ1)}, s{sX}, {v(vK1)}", [v(vK1), f"s{sX}"], [v(vQ1)])
    P.salu(f"s_lshl_b32 s{sX}, s{sW}, 12", r=[f"s{sW}"], w=[f"s{sX}"])
    lane_expr(P, vWr, L, t, [(3, 1, 16384), (4, 2, 128), (2, 1, 64), (5, 1, 32), (0, 2, 8)], const=SV, sconst=sX)
    P.salu(f"s_lshl_b32 s{sX}, s{sH}, 7", r=[f"s{sH}"], w=[f"s{sX}"])
    lane_expr(P, aST, L, t, [(0, 4, 256), (4, 2, 16)], sconst=sX)
    P.salu(f"s_mul_i32 s{sTab}, s{sW}, {TABSZ}\ns_add_u32 s{sTab}, s{sTab}, {TAB0}", r=[f"s{sW}"], w=[f"s{sTab}"])
    lane_expr(P, aVr, L, t, [(3, 2, 128), (2, 1, 64), (0, 2, 8), (5, 1, 4)], const=VOFF, sconst=sTab)
    lane_expr(P, aKr, L, t, [(3, 1, 256), (1, 1, 128), (0, 1, 64), (4, 2, 16)], sconst=sTab); xor_in(P, aKr, L, t, [(3, 1, 5), (1, 1, 4)])
    lane_expr(P, aQa, L, t, [(2, 2, 128), (0, 1, 64), (4, 2, 16)], const=512, sconst=sTab); xor_in(P, aQa, L, t, [(2, 2, 4)])
    lane_expr(P, y0, L, t, [], const=ZOFF, sconst=sTab)
    select(P, aQa, aQa, y0, lambda l: (l & 2) == 0)
    lane_expr(P, aLw, L, t, [(4, 2, CST), (0, 2, 4)], const=256, sconst=sTab)
    lane_expr(P, aCw, L, t, [(4, 2, CST), (0, 4, 4)], sconst=sTab)
    lane_expr(P, aZw, L, t, [(0, 3, US)], const=ZOFF, sconst=sTab)
    lane_expr(P, aTabW[0], L, t, [(2, 2, US), (0, 2, 128), (5, 1, 16), (4, 1, 8)], sconst=sTab); xor_in(P, aTabW[0], L, t, [(0, 2, 4)])
    P.valu(f"v_xor_b32 {v(aTabW[1])}, 32, {v(aTabW[0])}", [v(aTabW[0])], [v(aTabW[1])])
    lane_expr(P, aVw, L, t, [(4, 2, US), (0, 4, 8)], const=VOFF, sconst=sTab)
    P.salu(f"s_mul_i32 s{sX}, s{sW}, {SCRSZ}\ns_add_u32 s{sX}, s{sX}, {SCR0}", r=[f"s{sW}"], w=[f"s{sX}"])
    lane_expr(P, aPw, L, t, [(4, 2, 64), (1, 1, 32), (2, 2, 8), (0, 1, 2)], sconst=sX)
    lane_expr(P, aPr, L, t, [(2, 2, 64), (0, 1, 32), (4, 1, 16)], sconst=sX)
    lane_expr(P, y0, L, t, [], const=256, sconst=sX)
    select(P, aPr, aPr, y0, lambda l: ((l >> 1) & 1) == (l >> 5))
    for i in range(4): P.mov(VR + i, 0)
    lane_expr(P, y0, L, t, [(0, 2, CST)], const=256, sconst=sX)
    P.dsw(y0, VR, 4, 0, pw=["L:Ps"])
    P.mov(y0, 64); P.dsw(aPw, y0, 1, 3 * CST, pw=["dz"], ins="ds_write_b16")
    P.salu(f"s_xor_b32 s{sX}, s{sW}, 1\ns_mul_i32 s{sX}, s{sX}, {SCRSZ}", r=[f"s{sW}"], w=[f"s{sX}"])
    lane_expr(P, aFl, L, t, [], const=SCR0 + 3 * CST, sconst=sX)
    P.salu(f"s_lshl_b32 s{sX}, s{sW}, 9", r=[f"s{sW}"], w=[f"s{sX}"])
    lane_expr(P, aRw, L, t, [(0, 4, 16)], const=RR0, sconst=sX)
    selc(P, ONES, t, "0x3f803f80", 0, lambda l: (l & 2) == 0)
    for i in range(1, 4): P.valu(f"v_mov_b32 {v(ONES + i)}, {v(ONES)}", [v(ONES)], [v(ONES + i)])
    selc(P, IDX, t, "0xeeeeeeee", "0x44444444", lambda l: l & 1)
    P.mov(t, "0xe4eeeeee"); select(P, IDX, t, IDX, lambda l: (l & 1) and l >= 32)
    selc(P, SEL0, t, "0x07060302", "0x0c0c0c0c", lambda l: not (l & 16))
    selc(P, SEL1, t, "0x07060302", "0x0c0c0c0c", lambda l: (l & 16))
    P.mov(CHK, 0)
    def bar(r, w):
        o = P.add("s_barrier", "BAR", r=r, w=w + ["barorder"], early=E); o.urgent = True; return o
    def trload(W, base, vpat, pseudo, e=0):
        for mt in range(4):
            for ks in range(4):
                for jh in range(2):
                    o = W + (mt * 4 + ks) * 4 + 2 * jh
                    addr = aV[mt >> 1] if vpat else aT[mt]
                    off = base + ks * 4096 + jh * 512 + ((mt & 1) * 8 if vpat else 0)
                    P.add(f"ds_read_b64_tr_b16 {a(o, 2)}, {v(addr)} offset:{off}", "DR", r=[v(addr)] + pseudo, w=as_(o, 2), note="tr", early=e)
    for j in range(8):
        for i in range(4):
            x = WQR + 4 * j + i; y = (y0, y1)[i & 1]
            P.valu(f"v_and_b32 {v(y)}, 0xffff0000, {v(x)}", [v(x)], [v(y)])
            P.valu(f"v_lshlrev_b32 {v(x)}, 16, {v(x)}", [v(x)], [v(x)])
            P.valu(f"v_mul_f32 {v(y)}, s{sC}, {v(y)}", [v(y), f"s{sC}"], [v(y)])
            P.valu(f"v_mul_f32 {v(x)}, s{sC}, {v(x)}", [v(x), f"s{sC}"], [v(x)])
            P.cvt(x, x, y)
        P.dsw((vQ0, vQ1)[j & 1], WQR + 4 * j, 4, j * 1024, pw=["dz"])
    for x in [pb + 14 + i for pb in PBUF for i in range(2)]: P.mov(x, 0)
    bar(["dK", "dz"], ["B1"])
    trload(WK, 32768, False, ["B1", "L:k"], E)
    trload(WQ, 0, False, ["B1", "L:k"])
    for mt in range(4): P.valu(f"v_subrev_u32 {v(aT[mt])}, {SQ - SV}, {v(aT[mt])}", [v(aT[mt])], [v(aT[mt])])
    e0 = eload(P, 0, ["B1"]); e5 = eload(P, 5, ["B1"], fixed=e4regs)
    for mt in range(4): kch(P, 0, mt, e0)
    efree(P, e0)
    for mt in MTO(1): kch(P, 5, mt, e5)
    for mt in range(4): qch(P, mt, e5, 0)
    bar(["dR"], ["L:k", "B2"])
    er = [[ER + 16 * z + 4 * ks for ks in range(4)] for z in range(2)]
    for z in range(2):
        for ks in range(4): P.dsr(er[z][ks], 4, aE, (3 + z) * TILE + ks * KSTEP, ["B2", "L:r"], "Erem").early = E
    bar(["dV"], ["L:r", "B3"])
    edma(range(6, 10), lambda j: j * 2048, "dE2", pr=["B3"])
    P.salu(f"s_mul_i32 s{sSo}, s{sH}, {TILE - BLK}\ns_add_u32 s{sLn}, s{sLn}, s{sSo}\ns_add_u32 s{sLn}, s{sLn}, {2*BUFSZ}\ns_mov_b32 s{sSo}, 8192", r=[f"s{sLn}", f"s{sH}"], w=[f"s{sLn}", f"s{sSo}"])
    trload(WV, 0, True, ["B3", "L:v"])
    P.dsw(aZw, VR, 4, 0, pw=["L:Qtab"], pr=["B2"])
    sc(P, 0, [0, 5])
    mrr = lanemask(lambda l: (l >> 4) == ((l >> 2) & 3))
    for z in range(2):
        for (W, X, off, pw, nt) in ((WK, KP, 0, "L:Ktab", "Krem"), (WQ, QP, 512, "L:Qtab", "Qrem"))[::(1, -1)[z]]:
            for mt in MTO(z + (W == WQ)):
                b = X + 4 * (mt >> 1) + (mt & 1)
                pchain(P, W, mt, er[z], False, b, nt, dst1=b + 2)
            for ks in range(2):
                for hf in range(2): P.dsw(aTabW[ks], X + 4 * ks + 2 * hf, 2, z * 4 * US + off + hf * 64, pw=[pw], pr=["B2"])
        if z == 0: P.dsr(KRS, 4, aKr, 0, ["L:Ktab"], "KR")
        else: bar([], ["L:v", "B4"])
        for mt in MTO(z):
            d = P.alloc(); chain(P, WV, mt, er[z], True, d, "Vrem")
            P.cvt(d, d, d + 1); P.cvt(d + 1, d + 2, d + 3)
            P.dsw(aVw, d, 2, z * 4 * US + mt * 128, pw=["L:Vtab"], pr=["B2"]); P.release(d)
            if mt == MTO(z)[0]:
                d = P.alloc()
                for ks in range(2): P.mfma(d, ("v", KP + 4 * ks), ("v", QP + 4 * ks), first=(ks == 0), note="Srr")
                for i in range(4): P.exp(d + i)
                P.op2("v_add_f32", y0, d, d + 1); P.op2("v_add_f32", y1, d + 2, d + 3)
                P.cvt(d, d, d + 1); P.cvt(d + 1, d + 2, d + 3); P.op2("v_add_f32", d + 2, y0, y1)
                P.add(f"s_mov_b32 exec_lo, 0x{mrr & 0xffffffff:x}\ns_mov_b32 exec_hi, 0x{mrr >> 32:x}\nds_write_b96 {v(aRw)}, {v(d, 3)} offset:{z * 256}\ns_mov_b64 exec, -1", "DW",
                      r=[v(aRw)] + vs(d, 3), w=["L:rr"], cost=32)
                P.release(d)
        if z == 0: sc(P, 0, [6])
    wr = [vWr, aV[0], aV[1], vLin]
    for k in range(1, 4): P.valu(f"v_xor_b32 {v(wr[k])}, {k * 32}, {v(vWr)}", [v(vWr)], [v(wr[k])])
    for j in range(8):
        for u_ in range(2): P.dsw(wr[u_ + 2 * ((j >> 1) & 1)], WRR + 4 * j + 2 * u_, 2, j * 512, pw=["wO"], pr=["B4"])
    bar(["wO"], ["B5"])
    trload(WR, 0, False, ["B5", "L:w"])
    e0 = eload(P, 0, ["B1"])
    for mt in range(4): vch(P, 0, mt, e0)
    efree(P, e0)
    for mt in MTO(1): vch(P, 5, mt, e5)
    for mt in range(4): rch(P, mt, e5, 0)
    bar(["dE1"], ["L:w", "B6", "B"])
    P.add(f"ds_read2_b32 {v(VR, 2)}, {v(aVr)} offset0:0 offset1:8", "DR", r=[v(aVr), "L:Vtab"], w=vs(VR, 2), note="VR")
    e1 = eload(P, 1, ["B6"]); e2 = eload(P, 2, ["B6"], fixed=e4regs)
    for mt in range(4): kch(P, 1, mt, e1)
    efree(P, e1)
    bar(["dE2"], ["B7"])
    e3 = eload(P, 3, ["B7"])
    for mt in MTO(1): kch(P, 2, mt, e2)
    for mt in range(4): vch(P, 2, mt, e2)
    cnt = [0]; nm0 = P.nm + CFG.get("u0d", 2)
    def hook(P_):
        if P_.nm >= nm0 and (P_.nm - nm0) % (2 * CFG["u0s"]) < 2 and cnt[0] < 12:
            j = cnt[0]; cnt[0] += 1
            if j % 4 == 0: dma_setup(P_, j // 4, ["B7"])
            dma(P_, j % 4, ["B7"], [P_.lastm], 8)
    P.hook = hook
    sc(P, 0, [1, 2])
    e4 = eload(P, 4, ["B7"], fixed=e4regs)
    for mt in range(4): kch(P, 3, mt, e3)
    efree(P, e3)
    for n_, mt in enumerate(MTO(1)):
        kch(P, 4, mt, e4)
        if n_ == 1: e0 = eload(P, 0, ["B7"])
    R = Rem(P)
    for mt in range(4):
        rch(P, mt, e0, 1)
        if mt == 0: sc(P, 0, [3, 4])
    for mt in range(4): qch(P, mt, e0, 1)
    efree(P, e0)
    R.ld()
    for mt in range(4):
        vch(P, 4, mt, e4)
        if mt == 0: sc(P, 1, [6, 0, 1])
        if mt == 1: R.s(0)
        if mt == 2: R.s(1); R.soft()
    lsum(P, 0)
    e3 = eload(P, 3, ["B7"])
    sc(P, 1, [2, 3])
    for mt in range(4): vch(P, 3, mt, e3)
    efree(P, e3)
    e1 = eload(P, 1, ["B7"])
    m32st(P, 0)
    sc(P, 1, [4])
    for mt in range(4): vch(P, 1, mt, e1)
    efree(P, e1)
    sc(P, 1, [5])
    P.hook = None
    assert cnt[0] == 12, cnt
    P.share()

class Lanes:
    def __init__(self, P, L, regs, sregs):
        self.P = P; self.L = L; self.regs = list(regs); self.F = {}; self.sregs = collections.deque(sregs); self.mul = {}
    def field(self, off, w):
        if (off, w) not in self.F:
            r = self.F[(off, w)] = self.regs.pop(0)
            if off == 0: self.P.valu(f"v_and_b32 {v(r)}, {(1 << w) - 1}, {v(self.L)}", [v(self.L)], [v(r)])
            elif off + w == 6: self.P.valu(f"v_lshrrev_b32 {v(r)}, {off}, {v(self.L)}", [v(self.L)], [v(r)])
            else: self.P.valu(f"v_bfe_u32 {v(r)}, {v(self.L)}, {off}, {w}", [v(self.L)], [v(r)])
        return self.F[(off, w)]
    def __call__(self, dst, terms, const=0, sconst=None, xor=()):
        P = self.P; base = None
        terms = sorted(terms, key=lambda x: x[2] & (x[2] - 1) != 0)
        if sconst is not None and not const: base = f"s{sconst}"
        elif sconst is not None or const:
            self.sregs.rotate(-1); x = self.sregs[0]; base = f"s{x}"
            if sconst is not None: P.salu(f"s_add_u32 s{x}, s{sconst}, {const}", r=[f"s{sconst}"], w=[base])
            else: P.salu(f"s_mov_b32 s{x}, {const}", w=[base])
        if not terms or terms[0][2] & (terms[0][2] - 1):
            P.valu(f"v_mov_b32 {v(dst)}, {base or 0}", [base] if base else [], [v(dst)]); base = v(dst)
        for (off, w, mult) in terms:
            f = self.field(off, w)
            if mult & (mult - 1) == 0:
                sh = int(math.log2(mult))
                if base is None: P.valu(f"v_lshlrev_b32 {v(dst)}, {sh}, {v(f)}", [v(f)], [v(dst)])
                else: P.valu(f"v_lshl_add_u32 {v(dst)}, {v(f)}, {sh}, {base}", [v(f), base], [v(dst)])
            else:
                if mult not in self.mul:
                    x = self.mul[mult] = self.sregs.pop(); P.salu(f"s_mov_b32 s{x}, {mult}", w=[f"s{x}"])
                P.valu(f"v_mad_u32_u24 {v(dst)}, {v(f)}, s{self.mul[mult]}, {base}", [v(f), base, f"s{self.mul[mult]}"], [v(dst)])
            base = v(dst)
        for (off, w, sh) in xor:
            if (off, w, sh) not in self.F:
                f = self.field(off, w); r = self.F[(off, w, sh)] = self.regs.pop(0)
                P.valu(f"v_lshlrev_b32 {v(r)}, {sh}, {v(f)}", [v(f)], [v(r)])
            P.valu(f"v_xor_b32 {v(dst)}, {v(self.F[(off, w, sh)])}, {v(dst)}", [v(self.F[(off, w, sh)]), v(dst)], [v(dst)])

def unit0b(P, e4regs):
    E = 1 << 20
    SV = 3 * BUFSZ - 16384; SQ = TILE; SK = TAB0
    assert SK + BUFSZ + 16384 <= SCR0 and SV % 128 == 0 and SQ % 128 == 0 and BUFSZ % 128 == 0 and SV >= 2 * BUFSZ + 2 * TILE and SQ + 16384 <= 5 * TILE
    ER = V0; KP = (RES[0], K0 + 24); QP = (RES[0] + 8, K0 + 32); VP = (K0 + 16, K0 + 8); Q1 = RES[1]
    WQR = PBUF[0]
    L, t, vK0, vK1, vQ0, vQ1, vWr, vLin = range(OBLK, OBLK + 8)
    aT = [OBLK + 8 + i for i in range(4)]; aV = [OBLK + 14, OBLK + 15]; vV, aVw = OBLK + 12, OBLK + 13
    Y = [RES[1] + 8 + i for i in range(4)]; y0, y1 = Y[:2]; aTabW = [RES[1] + 12, RES[1] + 13]; aZw = RES[1] + 14; aRw = RES[1] + 15
    sTab, sX, sV = sT0, sT1, sD
    T = lambda k, d: CFG.get(k, d)
    o = P.salu("s_waitcnt lgkmcnt(0)", w=["srd"], early=E); o.nb = T("knb", 120); o.cost = T("kw", 450); o.urgent = True
    nld = [0]
    def timed(o, arr, nb=0, cost=20):
        nld[0] += 1
        o.r = o.r + ["srd"]; o.nb = nb; o.arrive = arr; o.urgent = True; o.early = E; o.cost = cost
        return o
    def V(text, r, w): return P.valu(text, r, w, early=E)
    def S(text, r, w):
        o = P.salu(text, r=r, w=w, early=E); o.urgent = True; return o
    n0 = len(P.ops)
    V(f"v_and_b32 {v(L)}, 63, v0", [], [v(L)])
    V(f"v_lshlrev_b32 {v(vLin)}, 4, {v(L)}", [v(L)], [v(vLin)])
    S(f"s_lshl_b32 s{sT2}, s{sW}, 13", [f"s{sW}"], [f"s{sT2}"])
    S(f"s_add_u32 s{sM}, s{sT2}, 4096", [f"s{sT2}"], [f"s{sM}"])
    V(f"v_and_b32 {v(aDMA)}, 48, {v(vLin)}", [v(vLin)], [v(aDMA)])
    V(f"v_and_b32 {v(t)}, 48, {v(L)}", [v(L)], [v(t)])
    V(f"v_lshl_add_u32 {v(aDMA)}, {v(t)}, 2, {v(aDMA)}", [v(t), v(aDMA)], [v(aDMA)])
    V(f"v_and_b32 {v(t)}, 12, {v(L)}", [v(L)], [v(t)])
    V(f"v_lshl_add_u32 {v(aDMA)}, {v(t)}, 6, {v(aDMA)}", [v(t), v(aDMA)], [v(aDMA)])
    S(f"s_lshl_b32 s{sT3}, s{sH}, 10\ns_add_u32 s{sT3}, s{sT3}, s{sB0}", [f"s{sH}", f"s{sB0}"], [f"s{sT3}"])
    S(f"s_mul_i32 s{sLn}, s{sP}, {BUFSZ}\ns_mul_i32 s{sX}, s{sH}, {BLK}\ns_add_u32 s{sLn}, s{sLn}, s{sX}", [f"s{sP}", f"s{sH}"], [f"s{sLn}", f"s{sX}"])
    P.ops.append(P.ops.pop(n0 - 1)); P.ops[-1].after = P.ops[n0 - 1:-1]
    def wdma(srdn, lds, pw, vo, arr, pr=[]):
        def f(n_):
            j4, j = divmod(n_, 4); so = (sT2, sM)[j4]
            if j == 0: S(f"s_add_u32 m0, s{lds[0]}, {lds[1] + 4096 * j4}", [f"s{lds[0]}"], ["m0"])
            return timed(P.add(f"buffer_load_dwordx4 {v(vo[j & 1])}, {srd(srdn)}, s{so} offen offset:{j*1024} lds", "VL", r=[v(vo[j & 1]), "m0", f"s{so}"] + pr, w=[pw, "ord"], note="wdma"), arr, 0, 8)
        return [lambda n_=n_: f(n_) for n_ in range(8)]
    def edma(js, src, pw, arr, sb=sT3, pr=[], lo=0):
        def f(n_, j):
            so = sD + 1 + n_ % 2
            if n_ % 2 == 0: S(f"s_add_u32 m0, s{sLn}, {lo + j * RG}", [f"s{sLn}"], ["m0"])
            S(f"s_add_u32 s{so}, s{sb}, {src(j) - (n_ % 2) * RG}", [f"s{sb}"], [f"s{so}"])
            return timed(P.add(f"buffer_load_dwordx4 {v(aDMA)}, {srd(sE)}, s{so} offen offset:{(n_ % 2) * RG}{LDPOL} lds", "VL", r=[v(aDMA), "m0", f"s{so}"] + pr, w=[pw, "ord"], note="dma"), arr, 0, 8)
        return [lambda n_=n_, j=j: f(n_, j) for n_, j in enumerate(js)]
    def mix(x, y, first, per):
        x = list(x); y = list(y); r = []
        for n_ in range(1000):
            if y and n_ >= first and (n_ - first) % per == 0: r += [y.pop(0), y.pop(0)]
            if not x and not y: return r
            r.append(x.pop(0) if x else None)
    def edma1(js, src, pw, arr, cost):
        for j in js:
            S(f"s_add_u32 m0, s{sLn}, {j * RG}", [f"s{sLn}"], ["m0"])
            S(f"s_add_u32 s{sSo}, s{sT3}, {src(j)}", [f"s{sT3}"], [f"s{sSo}"])
            timed(P.add(f"buffer_load_dwordx4 {v(aDMA)}, {srd(sE)}, s{sSo} offen{LDPOL} lds", "VL", r=[v(aDMA), "m0", f"s{sSo}"], w=[pw, "ord"], note="dma"), arr, 0, cost)
    tQ, tE0, tK, tR, tV, tE1, tE2, tO = T("tQ", 1350), T("tE0", 2400), T("tK", 2800), T("tR", 4000), T("tV", 4400), T("tE1b", 5700), T("tE2b", 6800), T("tO", 7600)
    for j in range(8):
        so = (sT2, sM)[j >> 2]
        timed(P.add(f"buffer_load_dwordx4 {v(WQR + 4 * j, 4)}, {v(vLin)}, {srd(sWQ)}, s{so} offen offset:{(j & 3) * 1024}", "VG", r=[v(vLin), f"s{so}"], w=vs(WQR + 4 * j, 4) + ["ord"], note="gl"), tQ + 50 * j, 0, 60)
    edma1([10, 11, 0, 1], lambda j: j * 2048, "dE0", tE0, 60)
    first = P.ops[-1]; n1 = len(P.ops)
    LE = Lanes(P, L, list(range(V0 + 32, V0 + 48)) + list(range(K0 + 16, K0 + 24)), range(6, 16))
    V(f"v_and_b32 {v(t)}, 16, {v(L)}", [v(L)], [v(t)])
    V(f"v_lshlrev_b32 {v(vV)}, 2, {v(t)}", [v(t)], [v(vV)])
    V(f"v_lshlrev_b32 {v(t)}, 1, {v(t)}", [v(t)], [v(t)])
    V(f"v_xor_b32 {v(vK0)}, {v(vLin)}, {v(t)}", [v(vLin), v(t)], [v(vK0)])
    V(f"v_xor_b32 {v(vK1)}, 64, {v(vK0)}", [v(vK0)], [v(vK1)])
    S(f"s_mul_i32 s{sV}, s{sP}, {BUFSZ}\ns_lshl_b32 s{sX}, s{sH}, 13\ns_add_u32 s{sV}, s{sV}, s{sX}", [f"s{sH}", f"s{sP}"], [f"s{sV}", f"s{sX}"])
    S(f"s_add_u32 s{sX}, s{sV}, {SQ}", [f"s{sV}"], [f"s{sX}"])
    V(f"v_add_u32 {v(vQ0)}, s{sX}, {v(vK0)}", [v(vK0), f"s{sX}"], [v(vQ0)])
    V(f"v_add_u32 {v(vQ1)}, s{sX}, {v(vK1)}", [v(vK1), f"s{sX}"], [v(vQ1)])
    LE(vWr, [(3, 3, 256), (0, 3, 16)])
    P.valu(f"v_xor_b32 {v(vWr)}, {v(vWr)}, {v(vV)}", [v(vWr), v(vV)], [v(vWr)])
    P.valu(f"v_xor_b32 {v(vV)}, {v(vLin)}, {v(vV)}", [v(vLin), v(vV)], [v(vV)])
    P.salu(f"s_mul_i32 s{sX}, s{sH}, {BUFSZ}", r=[f"s{sH}"], w=[f"s{sX}"])
    LE(aT[0], [(4, 2, 1024), (2, 2, 128), (3, 1, 32), (4, 1, 64), (0, 2, 8)], const=SQ, sconst=sX)
    for mt in range(1, 4): P.valu(f"v_xor_b32 {v(aT[mt])}, {mt * 32}, {v(aT[0])}", [v(aT[0])], [v(aT[mt])])
    P.salu(f"s_mul_i32 s{sX}, s{sP}, {BUFSZ}", r=[f"s{sP}"], w=[f"s{sX}"])
    LE(aE, [(2, 2, BLK), (0, 2, 64), (4, 2, 16)], sconst=sX)
    P.salu(f"s_mul_i32 s{sRb}, s{sH}, {UB}\ns_add_u32 s{sRb}, s{sRb}, s{sB0}\ns_add_u32 s{sRb}, s{sRb}, {96 * 256}\ns_mul_i32 s{sRd}, s{sH}, {4096 - 4 * UB}\ns_add_u32 s{sRd}, s{sRd}, {8 * UB - 96 * 256}",
           r=[f"s{sH}", f"s{sB0}"], w=[f"s{sRb}", f"s{sRd}"])
    P.salu(f"s_mul_i32 s{sX}, s{sW}, {SCRSZ}\ns_add_u32 s{sX}, s{sX}, {SCR0}", r=[f"s{sW}"], w=[f"s{sX}"])
    LE(aPw, [(4, 2, 64), (1, 1, 32), (2, 2, 8), (0, 1, 2)], sconst=sX)
    LE(aPr, [(2, 2, 64), (0, 1, 32), (4, 1, 16)], sconst=sX)
    LE(aZw, [], const=256, sconst=sX)
    select(P, aPr, aPr, aZw, lambda l: ((l >> 1) & 1) == (l >> 5))
    for i in range(4): P.mov(VR + i, 0)
    LE(aZw, [(0, 2, CST), (2, 2, 4)], const=256, sconst=sX)
    P.dsw(aZw, VR, 1, 0, pw=["L:Ps"])
    P.mov(aZw, 64); P.dsw(aPw, aZw, 1, 3 * CST, pw=["dF"], ins="ds_write_b16")
    for o in P.ops[n1:]: o.after = list(o.after) + [first]
    def bar(r, w):
        o = P.add("s_barrier", "BAR", r=r, w=w + ["barorder"], early=E); o.urgent = True; return o
    def trload(W, base, vpat, pseudo, rev=0):
        def f(mt, ks, jh):
            o = W + (mt * 4 + ks) * 4 + 2 * jh
            addr = aV[mt >> 1] if vpat else aT[mt]
            if W == WK and ks == 0 and jh == 0: V(f"v_add_u32 {v(addr)}, {SK - SQ}, {v(addr)}", [v(addr)], [v(addr)])
            off = base + ks * 4096 + jh * 512 + ((mt & 1) * 8 if vpat else 0)
            return P.add(f"ds_read_b64_tr_b16 {a(o, 2)}, {v(addr)} offset:{off}", "DR", r=[v(addr)] + pseudo, w=as_(o, 2), note="tr", early=E)
        return [lambda mt=mt, ks=ks, jh=jh: f(mt, ks, jh) for mt in MTO(rev) for ks in range(4) for jh in range(2)]
    def qbar(r, w): return [lambda: bar(r, w)]
    gate = []
    for j in range(8):
        for i in range(4):
            x = WQR + 4 * j + i; y = Y[i]
            V(f"v_and_b32 {v(y)}, 0xffff0000, {v(x)}", [v(x)], [v(y)])
            V(f"v_lshlrev_b32 {v(x)}, 16, {v(x)}", [v(x)], [v(x)])
            V(f"v_mul_f32 {v(y)}, s{sC}, {v(y)}", [v(y), f"s{sC}"], [v(y)])
            V(f"v_mul_f32 {v(x)}, s{sC}, {v(x)}", [v(x), f"s{sC}"], [v(x)])
            P.cvt(x, x, y).early = E
        o = P.dsw((vQ0, vQ1)[j & 1], WQR + 4 * j, 4, j * 1024, pw=["dz"]); o.early = E; o.urgent = True; gate.append(o)
    for j, f in enumerate(wdma(sWK, (sV, SK), "dK", (vK0, vK1), tK)): f().after = [gate[j // T("kg", 4)]]
    for f in edma(range(4), lambda j: j * 2 * UB, "dR", tR, sb=sRb, lo=2 * BUFSZ): f().after = [gate[T("rg", 7)]]
    bar(["dz", "dE0", "ord"], ["B0", "B1"])
    e5 = eload(P, 5, ["B1"], fixed=e4regs); e0 = eload(P, 0, ["B1"])
    for o in P.ops[-8:]: o.urgent = True
    tq = trload(WQ, 0, False, ["B0", "L:q"])
    lead = [f() for f in tq[:T("lead", 20)]]
    for o in lead: o.urgent = True
    n1 = len(P.ops)
    for x in [pb + 14 + i for pb in PBUF for i in range(2)]: P.mov(x, 0)
    P.salu(f"s_mul_i32 s{sX}, s{sH}, {BUFSZ}", r=[f"s{sH}"], w=[f"s{sX}"])
    LE(aV[0], [(4, 2, 1024), (2, 2, 128), (3, 1, 64), (0, 2, 16)], const=SV, sconst=sX)
    P.valu(f"v_xor_b32 {v(aV[1])}, 64, {v(aV[0])}", [v(aV[0])], [v(aV[1])])
    P.salu(f"s_lshl_b32 s{sX}, s{sH}, 7", r=[f"s{sH}"], w=[f"s{sX}"])
    LE(aST, [(0, 4, 256), (4, 2, 16)], sconst=sX)
    P.salu(f"s_mul_i32 s{sTab}, s{sW}, {TABSZ}\ns_add_u32 s{sTab}, s{sTab}, {TAB0}", r=[f"s{sW}"], w=[f"s{sTab}"])
    LE(aVr, [(3, 2, 128), (2, 1, 64), (0, 2, 8), (5, 1, 4)], const=VOFF, sconst=sTab)
    LE(aKr, [(3, 1, 256), (1, 1, 128), (0, 1, 64), (4, 2, 16)], sconst=sTab, xor=[(3, 1, 5), (1, 1, 4)])
    LE(aQa, [(2, 2, 128), (0, 1, 64), (4, 2, 16)], const=512, sconst=sTab, xor=[(2, 2, 4)])
    LE(aZw, [], const=ZOFF, sconst=sTab)
    select(P, aQa, aQa, aZw, lambda l: (l & 2) == 0)
    LE(aLw, [(4, 2, CST), (0, 2, 4)], const=256, sconst=sTab)
    LE(aCw, [(4, 2, CST), (0, 4, 4)], sconst=sTab)
    LE(aZw, [(0, 3, US), (3, 2, 4)], const=ZOFF, sconst=sTab)
    LE(aTabW[0], [(2, 2, US), (0, 2, 128), (5, 1, 16), (4, 1, 8)], sconst=sTab, xor=[(0, 2, 4)])
    P.valu(f"v_xor_b32 {v(aTabW[1])}, 32, {v(aTabW[0])}", [v(aTabW[0])], [v(aTabW[1])])
    LE(aVw, [(4, 2, US), (0, 4, 8)], const=VOFF, sconst=sTab)
    P.salu(f"s_xor_b32 s{sX}, s{sW}, 1\ns_mul_i32 s{sX}, s{sX}, {SCRSZ}", r=[f"s{sW}"], w=[f"s{sX}"])
    LE(aFl, [], const=SCR0 + 3 * CST, sconst=sX)
    P.salu(f"s_lshl_b32 s{sX}, s{sW}, 9", r=[f"s{sW}"], w=[f"s{sX}"])
    LE(aRw, [(0, 4, 16)], const=RR0, sconst=sX)
    P.mov(t, DUMP); select(P, aRw, aRw, t, lambda l: (l >> 4) == ((l >> 2) & 3))
    selc(P, ONES, t, "0x3f803f80", 0, lambda l: (l & 2) == 0)
    for i in range(1, 4): P.valu(f"v_mov_b32 {v(ONES + i)}, {v(ONES)}", [v(ONES)], [v(ONES + i)])
    selc(P, IDX, t, "0xeeeeeeee", "0x44444444", lambda l: l & 1)
    P.mov(t, "0xe4eeeeee"); select(P, IDX, t, IDX, lambda l: (l & 1) and l >= 32)
    selc(P, SEL0, t, "0x07060302", "0x0c0c0c0c", lambda l: not (l & 16))
    selc(P, SEL1, t, "0x07060302", "0x0c0c0c0c", lambda l: (l & 16))
    P.mov(CHK, 0)
    P.salu(f"s_lshl_b32 s{sEn}, s{sH}, 12\ns_add_u32 s{sEn}, s{sEn}, s{sB0}\ns_add_u32 s{sEn}, s{sEn}, {UB}", r=[f"s{sH}", f"s{sB0}"], w=[f"s{sEn}"])
    P.salu(f"s_mov_b32 s{sStr}, {1024 - BLK}", w=[f"s{sStr}"])
    for o in P.ops[n1:]: o.after = list(o.after) + [first]
    G = T("lg", 96)
    tk = trload(WK, 0, False, ["B2", "L:k"])
    P.queue.extend(tq[len(lead):] + qbar(["dK"], ["B2"]) + mix(tk, wdma(sWV, (sV, SV), "dV", (vV, vV), tV), T("m1", 10), T("m2", 11)))
    for mt in range(4):
        for x in ((0, 1), (1, 0))[mt & 1]:
            if x == 0: qch(P, mt, e5, 0)
            else: qch(P, mt, e0, 1, Q1)
    [o for o in P.ops if o.kind == "M16"][0].after = lead
    for mt in range(4):
        for x in ((0, 1), (1, 0))[mt & 1]:
            if x == 0: kch(P, 5, mt, e5)
            else: kch(P, 0, mt, e0)
    efree(P, e0)
    sc(P, 0, [0, 5]); sc(P, 1, [5, 0], Q1)
    assert not P.queue
    bar(["dR", "dF"], ["L:k", "L:q", "B3"])
    er = [[ER + 16 * z + 4 * ks for ks in range(4)] for z in range(2)]
    for z in range(2):
        for ks in range(4):
            o = P.dsr(er[z][ks], 4, aE, 2 * BUFSZ + z * TILE + ks * KSTEP, ["B3", "L:r"], "Erem"); o.early = E; o.urgent = True
    P.queue.extend(mix([], edma(range(2, 6), lambda j: j * 2048, "dE1", tE1, pr=["B3"]) + edma(range(6, 10), lambda j: j * 2048, "dE2", tE2, pr=["B3"]), 0, T("q34", 5)) + [None] * T("qv", 2) + qbar(["dV"], ["L:r", "B4"]) + trload(WV, 0, True, ["B4", "L:v"], 1))
    P.dsw(aZw, VR, 1, 0, pw=["L:Qtab"], pr=["B3"])
    def dsw2(addr, src, off, pw):
        for i in range(2):
            o = P.dsw(addr, src + i, 1, off + 4 * i, pw=[pw], pr=["B3"]); o.lazy = True
    mrr = lanemask(lambda l: (l >> 4) == ((l >> 2) & 3))
    def srr(z):
        d = P.alloc()
        for ks in range(2): P.mfma(d, ("v", KP[z] + 4 * ks), ("v", QP[z] + 4 * ks), first=(ks == 0), note="Srr")
        for i in range(4): P.exp(d + i)
        P.op2("v_add_f32", y0, d, d + 1); P.op2("v_add_f32", y1, d + 2, d + 3)
        P.cvt(d, d, d + 1); P.cvt(d + 1, d + 2, d + 3); P.op2("v_add_f32", d + 2, y0, y1)
        for i in range(3):
            o = P.dsw(aRw, d + i, 1, z * 256 + 4 * i, pw=["L:rr"]); o.cost = 8; o.early = 6000
        P.release(d)
    for z in range(2):
        for k_, (W, X, off, pw, nt) in enumerate(((WK, KP[z], 0, "L:Ktab", "Krem"), (WQ, QP[z], 512, "L:Qtab", "Qrem"))[::(1, -1)[z]]):
            for n_, mt in enumerate(MTO(z + (W == WQ))):
                if z == 1 and k_ == 0 and n_ == 1: srr(0); sc(P, 0, [6]); sc(P, 1, [6], Q1)
                b = X + 4 * (mt >> 1) + (mt & 1)
                pchain(P, W, mt, er[z], False, b, nt, dst1=b + 2)
            for ks in range(2):
                for hf in range(2): dsw2(aTabW[ks], X + 4 * ks + 2 * hf, z * 4 * US + off + hf * 64, pw)
            if z == 0 and k_ == 0: P.dsr(KRS, 4, aKr, 0, ["L:Ktab"], "KR")
    for z in (1, 0):
        for n_, mt in enumerate(MTO(z)):
            pchain(P, WV, mt, er[z], True, VP[z] + 2 * mt, "Vrem")
            dsw2(aVw, VP[z] + 2 * mt, z * 4 * US + mt * 128, "L:Vtab")
            if z == 1 and n_ == 0: srr(1)
    e0 = eload(P, 0, ["B1"])
    for mt in MTO(1): vch(P, 5, mt, e5)
    P.add(f"ds_read2_b32 {v(VR, 2)}, {v(aVr)} offset0:0 offset1:8", "DR", r=[v(aVr), "L:Vtab"], w=vs(VR, 2), note="VR")
    for mt in range(2): vch(P, 0, mt, e0)
    bar(["dE1"], ["L:v", "B5"])
    e1 = eload(P, 1, ["B5"], fixed=e4regs)
    S(f"s_lshl_b32 s{sM}, s{sH}, 14\ns_lshl_b32 s{sX}, s{sP}, 7\ns_add_u32 s{sM}, s{sM}, s{sX}", [f"s{sH}", f"s{sP}"], [f"s{sM}", f"s{sX}"])
    def fr(j):
        so = sD + 1 + j % 2
        if j % 4 == 0: S(f"s_add_u32 m0, s{sV}, {SV + j * 1024}", [f"s{sV}"], ["m0"])
        S(f"s_add_u32 s{so}, s{sM}, {j * 2048 - (j % 4) * 1024}", [f"s{sM}"], [f"s{so}"])
        return timed(P.add(f"buffer_load_dwordx4 {v(vWr)}, {srd(sWR)}, s{so} offen offset:{(j % 4) * 1024} lds", "VL", r=[v(vWr), "m0", f"s{so}", "B5"], w=["dO", "ord"], note="wdma"), tO, 0, 8)
    assert not P.queue
    P.queue.extend(mix([], [lambda j=j: fr(j) for j in range(8)], 4, T("qo", 6)))
    P.salu(f"s_mul_i32 s{sSo}, s{sH}, {TILE - BLK}\ns_add_u32 s{sLn}, s{sLn}, s{sSo}\ns_add_u32 s{sLn}, s{sLn}, {2*BUFSZ}\ns_mov_b32 s{sSo}, 8192", r=[f"s{sLn}", f"s{sH}"], w=[f"s{sLn}", f"s{sSo}"])
    for mt in range(2, 4): vch(P, 0, mt, e0)
    efree(P, e0)
    g_ = T("u0g", 1)
    def kv(t_, e, hooks):
        for mt in range(4): kch(P, t_, mt, e); hooks.get(mt, lambda: 0)()
        for mt in range(4):
            vch(P, t_, mt, e)
            if mt == 0: sc(P, 0, [t_]); sc(P, 1, [t_], Q1)
            hooks.get(4 + mt, lambda: 0)()
        efree(P, e)
    X = {}; R = Rem(P)
    def h2(): X[2] = eload(P, 2, ["B5"])
    def h4(): bar(["dE2"], ["B6"]); X[4] = eload(P, 4, ["B6"], fixed=e4regs)
    def h3(): X[3] = eload(P, 3, ["B6"])
    def hw():
        x = trload(WR, 0, True, ["B7", "L:w"])
        P.queue.extend(qbar(["dO"], ["B7"]) + x[:18] + [None] * 10 + x[18:])
    def h5(): X[5] = eload(P, 5, ["B1"], fixed=[RES[1] + 4 * i for i in range(4)]); R.s(1); R.soft()
    kv(1, e1, {6: h2})
    kv(2, X[2], {5: h4})
    kv(4, X[4], {0: lambda: dma_spread(P, 0, [0, 1], ["B6"], g_), 2: lambda: dma_spread(P, 0, [2, 3], ["B6"], g_), 6: h3, 7: hw})
    kv(3, X[3], {3: R.ld, 5: lambda: R.s(0), 6: h5})
    lsum(P, 0)
    e0 = eload(P, 0, ["B1"])
    for mt in range(4):
        rch(P, mt, X[5], 0)
        if mt == 1: bar([], ["L:w", "B8", "B"])
        if mt >= 2: dma_spread(P, 1, [2 * mt - 4, 2 * mt - 3], ["B8"], g_)
    for n_, mt in enumerate(MTO(1)):
        rch(P, mt, e0, 1)
        if n_ == 0: m32st(P, 0)
        if n_ in (1, 2): dma_spread(P, 2, [2 * n_ - 2, 2 * n_ - 1], ["B8"], g_)
    efree(P, e0)
    assert P.hook is None and not P.queue
    P.share()
    seen = set()
    for o in P.ops:
        for x in o.r:
            assert x in seen or not (x[0] == "a" and x[1:].isdigit() or x[0] == "B"), (x, o)
        seen.update(o.w)

def epilogue(P):
    if CFG.get("epol") is not None: P.stpol = ["", " nt", " sc1", " sc0 sc1"][CFG["epol"]]
    P.add("s_barrier", "BAR", r=["dma"], w=["B"])
    L, t, aCr, aSr, aVa, aRr, aLr = aKr, aVr, aQa, aPw, aPr, aCw, aLw
    RA = K0; VA = K0 + 32; PR = QF
    lane_id(P, L)
    P.salu(f"s_mul_i32 s{sT2}, s{sW}, {TABSZ}\ns_add_u32 s{sT2}, s{sT2}, {TAB0}", r=[f"s{sW}"], w=[f"s{sT2}"])
    lane_expr(P, aCr, L, t, [(2, 2, US), (0, 2, CST), (4, 2, 16)], sconst=sT2)
    lane_expr(P, aLr, L, t, [(2, 2, US), (0, 2, CST)], const=256, sconst=sT2)
    lane_expr(P, aVa, L, t, [(4, 2, US), (0, 4, 8)], const=VOFF, sconst=sT2)
    P.salu(f"s_lshl_b32 s{sT3}, s{sW}, 9", r=[f"s{sW}"], w=[f"s{sT3}"])
    lane_expr(P, aRr, L, t, [(0, 4, 16)], const=RR0, sconst=sT3)
    lane_expr(P, aSr, L, t, [(0, 2, 256), (2, 2, UB), (4, 2, 16)], const=96 * 256)
    mrr = lanemask(lambda l: (l >> 4) == ((l >> 2) & 3))
    def mark(n0, e):
        for o in P.ops[n0:]:
            if o.kind == "VS": o.early = e
    def rem_ld():
        for mt in range(4):
            for z in range(2): P.dsr(VA + 4 * mt + 2 * z, 2, aVa, z * 4 * US + mt * 128, ["L:Vtab"], "ctx")
        for z in range(2): P.dsr(PR + 4 * z, 2, aRr, z * 256, ["L:rr"], "ctx")
        P.mov2(PR + 2)
        P.salu(f"s_mov_b32 vcc_lo, 0x{mrr & 0xffffffff:x}\ns_mov_b32 vcc_hi, 0x{mrr >> 32:x}", w=["vcc"])
        for x in (PR, PR + 1, PR + 4, PR + 5): P.valu(f"v_cndmask_b32 {v(x)}, 0, {v(x)}, vcc", [v(x), "vcc"], [v(x)])
    def rem_final(z, r):
        c = [P.alloc() for _ in range(5)]; ls = c[4]
        for mt in range(4): P.dsr(c[mt], 4, aCr, z * 4 * US + 64 * mt, ["L:Qtab"], "ctx")
        P.dsr(ls, 4, aLr, z * 4 * US, ["L:Qtab"], "lsum"); P.dsr(PR + 6 + z, 1, aRr, z * 256 + 8, ["L:rr"], "lsum")
        P.op2("v_add_f32", ls, ls, ls + 1); P.op2("v_add_f32", ls + 2, ls + 2, ls + 3); P.op2("v_add_f32", ls, ls, PR + 6 + z); P.op2("v_add_f32", ls, ls, ls + 2)
        P.valu(f"v_rcp_f32 {v(ls + 1)}, {v(ls)}", [v(ls)], [v(ls + 1)], kind="T")
        P.valu(f"v_max3_f32 {v(CHK)}, {v(CHK)}, {v(ls)}, {v(ls + 1)}", [v(CHK), v(ls), v(ls + 1)], [v(CHK)])
        fin = []
        for mt in range(4):
            P.mfma(c[mt], ("v", VA + 4 * mt), ("v", PR + 2 * z), note="PVrr")
        for mt in range(4):
            for i in range(4):
                x = r + 4 * mt + i
                P.valu(f"v_fmac_f32 {v(x)}, {v(c[mt] + i)}, {v(ls + 1)}", [v(x), v(c[mt] + i), v(ls + 1)], [v(x)])
            if mt & 1: fin += pack_half(P, r, mt >> 1, "Drem")
        for q in c: P.release(q)
        st = (sSo, sStr)[z]
        P.salu(f"s_lshl_b32 s{st}, s{sH}, 7\ns_add_u32 s{st}, s{st}, s{sB0}\ns_add_u32 s{st}, s{st}, {z * 4 * UB}", r=[f"s{sH}", f"s{sB0}"], w=[f"s{st}"])
        stores(P, r, st, aSr, "Drem", fin)
    e0 = ESet(P, 0, ["B"], "Erem")
    sc(P, 5, [6, 0, 1, 2])
    if ORDER.split().index("l4") < ORDER.split().index("cut"): lsum(P, 4)
    n0 = len(P.ops)
    for mt in range(4):
        pv(P, 4, [mt])
        if mt < 3: sc(P, 5, [3 + mt])
    rem_ld()
    for mt in range(4): chain(P, WR, mt, e0, False, RA + 4 * mt, "Rrem")
    efree(P, e0)
    m32st(P, 5, 4, sStP)
    mark(n0, 1500)
    e1 = ESet(P, 1, ["B"], "Erem")
    n0 = len(P.ops); rem_final(0, RA); mark(n0, 700)
    lsum(P, 5)
    for mt in range(4): chain(P, WR, mt, e1, False, RA + 16 + 4 * mt, "Rrem")
    efree(P, e1)
    n0 = len(P.ops)
    pv(P, 5, range(4))
    m32st(P, None, 5, sStP)
    mark(n0, 300)
    n0 = len(P.ops); rem_final(1, RA + 16); mark(n0, 0)
    for o in P.ops:
        if o.kind == "DR" and o.note in ("lsum", "ctx"): o.urgent = True

def program():
    tag = "f"
    sched.CRIT_WIN = CFG["cw"]; sched.BACKPACK = bool(CFG["bp"]); sched.DS_LAT = CFG.get("dl", 84); sched.DS_COV = CFG.get("dc", 200); sched.DS_FINE = True; sched.NOISE[:] = [CFG["noise"], CFG["seed"]]
    old.CFG["stamps"] = CFG["stamps"]
    init = [f"s_mov_b32 s{sCnt}, {5 if CFG.get('lst') or CFG.get('sst') else 8}", f"s_mov_b32 s{sBits}, 64", f"s_mov_b32 s{sStC}, s{sB0}", f"s_mov_b32 s{sStP}, 0x7ff00000", f"s_mov_b32 s{sTog}, {2*BUFSZ}",
            f"s_mov_b32 s{sBias}, {f32(math.log2(1 + 2 ** -8.5))}", f"s_mov_b32 s{sBias+1}, 0"]
    drain = [Item(nop=8), Item(lgkm=0)]
    rep = bool(CFG.get("report"))
    def mk():
        P = Prog(); body(P); assert len(P.free) == NPOOL
        mk.shr = P.share()
        for i_, o in enumerate(P.ops): o.late = i_ >= P.cut
        for o in P.ops:
            if o.kind in ("VL", "DW"): o.pin = True
        if CFG["seam"]:
            P.seam.pin = True; P.ops[0].urgent = True; P.ops[0].early = 20000; P.ops[0].glue = 99
            for o in P.ops[1:]: o.after = list(o.after) + [P.ops[0]]
        else: [o for o in P.ops if o.kind in MK][-1 - CFG.get("cutm", 8)].pin = True
        return P.ops
    P2 = Prog(); body(P2)
    pre3 = []
    br = [Item(raw=f"s_cmp_lg_u32 s{sCnt}, 0"), Item(raw=f"s_cbranch_scc1 L_loop{tag}")]
    i2, left, t2, e2 = schedule_loop(alloc_loop(mk, POOL), report=rep)
    k_ = max(it.op.it for it in i2 if it.op is not None)
    if CFG["seam"] == 2:
        assert i2[-1].op.kind == "VS" and i2[-2].op.kind == "VS"
        assert i2[0].op.marker if CFG["sync"] else (i2[0].vm is not None and i2[0].lgkm is None and i2[1].op.kind == "BAR")
        s2 = i2.pop(); s2.op.it = k_ - 1; wt = i2.pop(0); i2.insert(0, s2)
        c = copy.copy(s2.op); Op._n += 1; c.id = Op._n; c.after = []; pre3 = [Item(op=c)]
        m = max(n for n, it in enumerate(i2) if it.op is not None and it.op.kind == "M32")
        assert m == len(i2) - 2
        i2.insert(m + 1, br.pop(0))
        n = m - CFG.get("wb", 12)
        while not (i2[n].op is not None and i2[n].op.kind == "M16" and i2[n + 1].op is not None and i2[n + 1].op.kind != "S"): n -= 1
        if not CFG["sync"]: i2.insert(n + 1, Item(vm=wt.vm - 2))
    i2 = fix_items(i2 + br, i2)
    cur = [(n, it.op) for n, it in enumerate(i2) if it.op is not None and it.op.it == k_]
    X = max(n for n, o in cur if not o.late) + 1
    assert all(it.op is None or it.op.it == k_ for it in i2[X:])
    e4regs = [None] * 4
    for n, o in cur:
        tg = getattr(o, "tag", None)
        if tg and tg[0] == "e4": e4regs[tg[1]] = int(o.w[0][1:])
    rest = [q for q in POOL if q not in e4regs]
    head = []
    for n, o in cur:
        if n < X and o.late:
            c = copy.copy(o); Op._n += 1; c.id = Op._n; c.after = []; c.early = None; c.r = c.r + ["B"]; head.append(c)
    if CFG["u0"] == 2:
        P1 = Prog(); P1.free = collections.deque([0] * len(rest)); unit0b(P1, e4regs)
        ia, _, _ = schedule2(P1.ops, strict_m=True, pool=rest)
    else:
        P1 = Prog(); P1.free = collections.deque([0] * (len(rest) - 1)); unit0(P1, e4regs, rest[-1])
        ia, _, _ = schedule2(P1.ops, strict_m=True, pool=rest[:-1])
    i1, t1, e1 = schedule2(bind([it.op for it in ia if it.op is not None], schedule2.vmap) + head, strict_m=True, report=rep)
    i1 = i1 + drain + [Item(raw=f"s_branch L_entry{tag}")]
    print("   entry at window item", X, "of", len(i2), "model t", i2[X].op.issue if i2[X].op else None, "head ops", len(head), file=sys.stderr)
    print("   shared turns / chains:", mk.shr, file=sys.stderr)
    P3 = Prog(); epilogue(P3); P3.share()
    busy = {int(x[1:]) // 4 * 4 for o in left for x in o.r + o.w + o.c if x[0] == "v" and x[1:].isdigit()}
    pool3 = [q for q in POOL if q not in busy] + [q for q in POOL if q in busy]
    ia, _, _ = schedule2(P3.ops, strict_m=True, pool=POOL)
    vm_ = {k: pool3[POOL.index(p_)] for k, p_ in schedule2.vmap.items()}
    i3, t3, e3 = schedule2(left + bind([it.op for it in ia if it.op is not None], vm_), strict_m=True, report=rep); i3 = fix_items(i2 + br, pre3 + old.stamp_q() + i3)
    kinds = collections.Counter(o.kind for o in P2.ops)
    print(f"[{tag}] model: prologue {t1} (mfma {e1})  loop {t2} (mfma {e2})  epilogue {t3} (mfma {e3})  {dict(kinds)}", file=sys.stderr)
    bad = verify(i1 + i2[X:] + br + i2 + br + i3)
    i2 = i2[:X] + [Item(raw=f'L_entry{tag}:')] + old.stamp_q() + i2[X:]
    print("verify problems:", bad, file=sys.stderr)
    def filt(items):
        r = []
        for it in items:
            if it.op is not None:
                if CFG["nostore"] and it.op.kind == "VS": it = Item(nop=1)
                elif CFG["nodma"] and it.op.kind == "VL": it = Item(nop=1)
            r.append(it)
        return r
    an = CFG["annotate"]
    if CFG.get("lst"):
        r = []; nm = 0; mt_ = []
        for it in i2:
            r.append(it)
            if it.op is not None and it.op.kind in MK:
                k, rem_ = divmod(nm - CFG.get("lst0", 0), CFG["lst"])
                if rem_ == 0 and k == 14: r.append(Item(raw="s_mov_b32 s90, s88"))
                if rem_ == 0 and 0 <= k < 15:
                    r.append(Item(raw=f"s_memtime s[{60+2*k}:{61+2*k}]")); mt_.append((it.op.issue, it.op.note))
                nm += 1
        i2 = r
        print("model stamps:", [x[0] - mt_[0][0] for x in mt_], [x[1] for x in mt_], file=sys.stderr)
    if CFG.get("sst"):
        T = lambda k: Item(raw=f"s_memtime s[{60+2*k}:{61+2*k}]")
        ms = [n for n, it in enumerate(i2) if it.op is not None and it.op.kind in MK]
        ins = {ms[-4]: T(20 - 8), ms[-2]: T(21 - 8), len(i2) - 1: T(22 - 8), 0: T(4), 1: T(5), ms[0]: T(6), ms[1]: T(7), ms[2]: T(8), ms[4]: T(9), ms[8]: T(10), ms[12]: T(11)}
        r = [T(3)]
        for n, it in enumerate(i2):
            r.append(it)
            if n in ins: r.append(ins[n])
            if n == ms[200]: r += [Item(raw=f"s_mov_b32 s{60+2*k}, s{84+2*k}") for k in range(3)]
        i2 = r
    if CFG.get("pst"):
        nb = [n for n, it in enumerate(i1) if it.op is not None and it.op.kind == "BAR"]
        if CFG["pst"] == 1:
            marks = []
            for b_ in nb:
                x = b_
                while i1[x - 1].op is None: x -= 1
                marks += [x, b_ + 1]
            marks = marks[:14] + [len(i1) - 1]
        else:
            ms = [n + 1 for n, it in enumerate(i1) if it.op is not None and it.op.kind in MK]
            marks = ms[CFG.get("pst0", 0)::CFG["pst"]][:15]
        print("pst model:", [(i1[n].op or i1[n - 1].op or i1[n - 2].op).issue for n in marks[:-1]], file=sys.stderr)
        r = []
        for n, it in enumerate(i1):
            if n in marks:
                k = marks.index(n) + 1; r.append(Item(raw=f"s_memtime s[{60+2*k}:{61+2*k}]"))
            r.append(it)
        i1 = r
    nvm = [n for n, it in enumerate(i1) if it.op is not None and it.op.kind in ("VL", "VG")][11] + 1 if CFG["u0"] == 2 else 0
    i1 = i1[:nvm] + [Item(raw=x) for x in program.pre2 + init] + i1[nvm:]
    out = []
    for it in i1: out += it.lines(an)
    if CFG["sync"]:
        rd, cp = [[it.op.text for it in i2 if it.op is not None and it.op.note == "chk" and it.op.kind == k][0] for k in ("DR", "V")]
        out += ["L_spin:", rd, "s_waitcnt lgkmcnt(0)", cp, "s_nop 1", "s_cbranch_vccnz L_spin", "s_branch L_back"]
    out += [".p2align 6", f"L_loop{tag}:"]
    for it in filt(i2) + br + filt(i3): out += it.lines(an)
    return out

def main():
    out = []
    for l in open("/code/" + NAME + ".s.ref").read().split("\n"):
        if l.startswith("; @launch"): break
        if l.startswith(";"): out.append(l)
    out.append(f"; @launch grid=(256,1,1) block=(256,1,1) lds={LDS_TOTAL}")
    out += """; GENERATED by gen/gen6.py (own generator + list scheduler gen/sched.py) - do not edit by hand
; One workgroup (4 waves, 512 registers each) per CU; wave = (batch stream p, head h); 8 batches per stream.
; Weights of the head live in the 256 AGPRs as 16x16x32 MFMA fragments (Wq pre-multiplied by 0.125*log2(e)).
; e is streamed through an LDS double buffer (LDS-DMA); K^T,Q^T,V -> S^T -> P -> ctx^T chain stays in registers.
; Rows 96..99 of the 8 batches are projected together (two packed 16-row tiles, tables in LDS); every product with
; those 4 rows and the softmax row sums use the sparse MFMA (two output rows per dot product, one half each).
; Softmax guard: the fast path evaluates exp2(s) without a shift and tracks max(l, 1/l) of EVERY row sum l.
; If any row sum of the workgroup leaves [2^-40, 2^40] (so a shift could matter), the workgroup recomputes all
; of its batches in the second copy of the program (after L_fast_end), which subtracts the true row maximum.""".split("\n")
    out += ['.amdgcn_target "amdgcn-amd-amdhsa--gfx950"', ".text", f".globl {NAME}_kernel", ".p2align 8", f".type {NAME}_kernel,@function", f"{NAME}_kernel:"]
    if CFG["stamps"]: out += ["s_memtime s[60:61]", "s_memrealtime s[62:63]"]
    if CFG.get("pst"): out += ["s_memtime s[60:61]"]
    out += ["s_cmp_ge_u32 s2, 256", "s_cbranch_scc1 L_end"]
    if CFG["u0"] == 2: out += [f"s_load_dwordx2 s[{r_}:{r_+1}], s[0:1], {o_}" for r_, o_ in ((sWQ, 8), (sE, 0), (sWK, 16), (sWV, 24), (sWR, 32), (sO, 40))]
    else: out += ["s_load_dwordx8 s[4:11], s[0:1], 0", "s_load_dwordx4 s[12:15], s[0:1], 32"]
    if CFG["pf"] == 1:
        out += ["s_getpc_b64 s[58:59]", "L_pc:", "v_lshlrev_b32 v2, 7, v0", "v_min_u32 v2, L_fast_end-L_pc-4, v2", f"global_load_dword v{QF}, v2, s[58:59]"]
    elif CFG["pf"] == 2:
        out += ["s_getpc_b64 s[58:59]", "L_pc:", "s_lshl_b32 s3, s2, 9", "s_and_b32 s3, s3, 0x7000", "v_lshrrev_b32 v2, 3, v0", "v_lshl_add_u32 v2, v2, 7, s3",
                "v_min_u32 v2, L_fast_end-L_pc-4, v2", f"global_load_dword v{QF}, v2, s[58:59]"]
    pre = f"""
v_lshrrev_b32 v1, 6, v0
s_mov_b32 s{sE+3}, 0x20000
v_readfirstlane_b32 s{sW}, v1
s_mov_b32 s{sE+2}, {NB * BBATCH}
s_mov_b32 s{sWQ+2}, 32768
s_mov_b32 s{sWQ+3}, s{sE+3}
s_lshr_b32 s{sP}, s{sW}, 1
s_and_b32 s{sH}, s{sW}, 1
s_lshl1_add_u32 s{sB0}, s2, s{sP}
s_mul_i32 s{sB0}, s{sB0}, {BBATCH}
"""
    pre2 = f"""
s_mov_b32 s{sC}, {f32(0.125 * math.log2(math.e))}
s_mov_b32 s{sO+2}, s{sE+2}
s_mov_b32 s{sO+3}, s{sE+3}
s_mov_b32 s{sWK+2}, s{sWQ+2}
s_mov_b32 s{sWK+3}, s{sE+3}
s_mov_b32 s{sWV+2}, s{sWQ+2}
s_mov_b32 s{sWV+3}, s{sE+3}
s_mov_b32 s{sWR+2}, s{sWQ+2}
s_mov_b32 s{sWR+3}, s{sE+3}
"""
    out += [l for l in pre.split("\n") if l]
    program.pre2 = [l for l in pre2.split("\n") if l]
    out += program()
    if CFG["stamps"]:
        for it in [Item(vm=0)] + old.stamp_q() + old.stamp_dump(): out += it.lines()
    if CFG.get("lst") or CFG.get("sst") or CFG.get("pst"):
        out += ["s_load_dwordx2 s[92:93], s[0:1], 56", "s_waitcnt lgkmcnt(0)", "s_mov_b32 s94, 0x100000", "s_mov_b32 s95, 0x20000",
                "s_lshl_b32 s3, s2, 2", f"s_add_u32 s3, s3, s{sW}", "s_lshl_b32 s3, s3, 8", "v_mov_b32 v2, 0", "s_mov_b64 exec, 1"]
        for n in range(16):
            out += [f"v_mov_b32 v{4+2*n}, s{60+2*n}", f"v_mov_b32 v{5+2*n}, s{60+2*n}", f"buffer_store_dwordx2 v[{4+2*n}:{5+2*n}], v2, s[92:95], s3 offen offset:{8*n}"]
        out += ["s_mov_b64 exec, -1"]
    if CFG["fallback"]:
        out += [f"v_mov_b32 v1, {f32(2.0 ** CFG['thr'])}", f"v_cmp_nle_f32 vcc, {v(CHK)}, v1", f"s_lshl_b32 s{sT0}, s{sW}, 2", f"s_add_u32 s{sT0}, s{sT0}, {FLAG}",
                "s_or_b32 s3, vcc_lo, vcc_hi", f"v_mov_b32 v2, s{sT0}", "v_mov_b32 v3, s3", "ds_write_b32 v2, v3", f"v_mov_b32 v2, {FLAG}", "s_waitcnt lgkmcnt(0)", "s_barrier",
                "ds_read_b128 v[4:7], v2", "s_waitcnt lgkmcnt(0)", "v_or_b32 v4, v4, v5", "v_or3_b32 v4, v4, v6, v7", "s_nop 0", "v_readfirstlane_b32 s3, v4", "s_nop 3",
                "s_cmp_eq_u32 s3, 0", "s_cbranch_scc1 L_end", "L_fast_end:", "s_waitcnt vmcnt(0)", "s_barrier"]
        old.CFG["stamps"] = 0
        sched.CRIT_WIN = old.CFG["cw"]; sched.BACKPACK = bool(old.CFG["bp"]); sched.DS_LAT = 84; sched.DS_COV = 0; sched.DS_FINE = False; sched.NOISE[:] = [old.CFG["noise"], old.CFG["seed"]]
        out += old.program(True, "s")
    else:
        out += ["L_fast_end:"]
    out += ["L_end:", "s_endpgm", '.section .rodata,"a"', ".p2align 6", f".amdhsa_kernel {NAME}_kernel",
            "  .amdhsa_next_free_vgpr 512", "  .amdhsa_next_free_sgpr 102", "  .amdhsa_accum_offset 256", "  .amdhsa_group_segment_fixed_size 0",
            "  .amdhsa_kernarg_size 64", "  .amdhsa_user_sgpr_count 2", "  .amdhsa_user_sgpr_kernarg_segment_ptr 1", "  .amdhsa_system_sgpr_workgroup_id_x 1",
            ".end_amdhsa_kernel"]
    open(sys.argv[1], "w").write("\n".join(out) + "\n")

if __name__ == "__main__":
    main()
```

```python
import os, sys, math, struct, collections, copy, itertools
ARGV = sys.argv[:]; sys.argv = sys.argv[:2]
import gen5 as old
sys.argv = ARGV
import sched
from sched import Op, Item, schedule2, schedule_loop, alloc_loop, fix_items, verify, bind
from gen5 import v, a, vs, as_, srd, f32, lane_expr, lane_id, select, SRDTXT
from gen5 import sE, sO, sWQ, sWK, sWV, sWR, sC, sW, sP, sH, sB0, sCnt, sStC, sStP, sSo, sLn, sEn, sStr, sT0, sT1, sT2, sT3, sTog, sM, sBits, sRb, sRd
from gen5 import BBATCH, NB, UB, BLK, RG, TILE, BUFSZ, KSTEP, WQ, WK, WV, WR, FT, NAME

CFG = dict(lsp=145, tE1=5700, tE2=6100, u0s=8, lp=2, lpk=2, lp2=1, eh=8, cw=20, bp=0, noise=10, seed=1, annotate=0, stamps=0, nostore=0, nodma=0, ldnt=1, stpol=1,
           fallback=1, pf=2, thr=40, ga=3, gb=3, mq=2, mk=3, m0=3, seam=2, sync=1, u0=2, d0=12, dgap=20, dm=0)
for a_ in sys.argv[2:]:
    k_, v_ = a_.split("="); CFG[k_] = int(v_)
STPOL = ["", " nt", " sc1", " sc0 sc1", " sc0 nt", " sc1 nt", " sc0 sc1 nt"][CFG["stpol"]]; LDPOL = ["", " nt", " sc1 nt", " sc0 sc1 nt", " sc1", " sc0 nt"][CFG["ldnt"]]
TAB0 = 4 * BUFSZ; US = 1600; TABSZ = 8 * US; ZOFF = 1072; VOFF = 1088; CST = 272
SCR0 = TAB0 + 4 * TABSZ; SCRSZ = 4 * CST
RR0 = SCR0 + 4 * SCRSZ
FLAG = RR0 + 4 * 512; DUMP = FLAG + 16
LDS_TOTAL = 163840
assert DUMP + 512 <= LDS_TOTAL and TAB0 % 128 == 0 and TABSZ % 64 == 0 and SCR0 % 16 == 0
WST = 2 * BUFSZ
K0 = 0; V0 = 48; KRS = 96; VR = 100; QF = 104; PBUF = (112, 128); RES = (144, 160); OBLK = 176; ONES = 192; POOL0 = 196; NPOOL = 11
aE, aDMA, aST, aKr, aVr, aQa, aPw, aPr, aCw, aLw, IDX, SEL0, SEL1, INV, CHK, aFl = range(240, 256)
sBias = 96; sD = 98
POOL = [POOL0 + 4 * i for i in range(NPOOL)]
MK = ("M16", "SM", "M32")

class Prog:
    def __init__(self):
        self.ops = []; self.free = collections.deque(POOL); self.lastm = None; self.nm = 0; self.hook = None; self.fin = {}; self.queue = collections.deque()
    vq = 1000
    stpol = STPOL
    def alloc(self):
        self.free.popleft(); Prog.vq += 4; return Prog.vq
    def release(self, q): self.free.append(0)
    def add(self, *o, **k):
        op = Op(*o, **k); self.ops.append(op); return op
    def _m(self, op):
        self.lastm = op; self.nm += 1
        if self.hook: self.hook(self)
        elif self.queue:
            f = self.queue.popleft()
            if f:
                o = f(); o.after = [op] + list(o.after); o.glue = 1; o.soft = True; o.urgent = False
        return op
    def mfma(self, d, A, B, first=False, note=""):
        def t(x): return (v if x[0] == "v" else a)(x[1], 4)
        def r(x): return (vs if x[0] == "v" else as_)(x[1], 4)
        ct, c = ("0", []) if first else (v(d, 4), vs(d, 4))
        op = self.add(f"v_mfma_f32_16x16x32_bf16 {v(d, 4)}, {t(A)}, {t(B)}, {ct}", "M16", r=r(A) + r(B), w=vs(d, 4), c=c, note=note)
        op.mf = (d, A, B, ct)
        return self._m(op)
    def smf(self, d, A, B, abid=0, note=""):
        op = self.add(f"v_smfmac_f32_16x16x64_bf16 {v(d, 4)}, {v(A, 4)}, {v(B, 8)}, {v(IDX)}" + (" abid:1" if abid else ""), "SM", r=vs(A, 4) + vs(B, 8) + [v(IDX)], w=vs(d, 4), c=vs(d, 4), note=note)
        op.mf = (d, ("v", A), ("v", B), "x")
        return self._m(op)
    def m32(self, d, A, B, note=""):
        op = self.add(f"v_mfma_f32_32x32x16_bf16 {v(d, 16)}, {v(A, 4)}, {v(B, 4)}, 0", "M32", r=vs(A, 4) + vs(B, 4), w=vs(d, 16), note=note)
        op.mf = (d, ("v", A), ("v", B), "x")
        return self._m(op)
    def share(self):
        chains = []
        for o in self.ops:
            if o.kind not in MK: continue
            if o.kind == "M16" and chains and chains[-1][-1].kind == "M16" and chains[-1][-1].mf[0] == o.mf[0] and o.mf[3] != "0": chains[-1].append(o)
            else: chains.append([o])
        def opts(c):
            st = [(o.mf[1], o.mf[2]) for o in c]
            if len(st) == 1: return [(0, 0, st)]
            return [(i, j, [st[i]] + [x for k, x in enumerate(st) if k not in (i, j)] + [st[j]]) for i, j in itertools.permutations(range(len(st)), 2)]
        def gain(x, y): return int(x[0] == y[0]) + int(x[1] == y[1])
        allo = [opts(c) for c in chains]
        best = [[0.0 - 1e-3 * (i != 0) for (i, j, q) in allo[0]]]; back = [[None] * len(allo[0])]
        for n in range(1, len(chains)):
            b = []; k_ = []
            for (i, j, q) in allo[n]:
                sc = [best[-1][m] + gain(pq[-1], q[0]) for m, (_, _, pq) in enumerate(allo[n - 1])]
                m = max(range(len(sc)), key=lambda m: sc[m]); b.append(sc[m] - 1e-3 * (i != 0) - 1e-3 * (j != len(q) - 1)); k_.append(m)
            best.append(b); back.append(k_)
        m = max(range(len(best[-1])), key=lambda m: best[-1][m]); tot = best[-1][m]
        for n in range(len(chains) - 1, -1, -1):
            for o, (A, B) in zip(chains[n], allo[n][m][2]):
                if o.kind != "M16": continue
                d, _, _, ct = o.mf
                t = lambda x: (v if x[0] == "v" else a)(x[1], 4)
                r = lambda x: (vs if x[0] == "v" else as_)(x[1], 4)
                o.text = f"v_mfma_f32_16x16x32_bf16 {v(d, 4)}, {t(A)}, {t(B)}, {ct}"; o.r = r(A) + r(B); o.mf = (d, A, B, ct)
            m = back[n][m]
        return round(tot), len(chains)
    def dsr(self, dst, n, addr, off, pseudo=(), note="", ins=None):
        ins = ins or {4: "ds_read_b128", 2: "ds_read_b64", 1: "ds_read_b32"}[n]
        assert 0 <= off < 65536
        return self.add(f"{ins} {v(dst, n)}, {v(addr)} offset:{off}", "DR", r=[v(addr)] + list(pseudo), w=vs(dst, n), note=note)
    def dsw(self, addr, src, n, off, pw=(), pr=(), note="", ins=None):
        ins = ins or {4: "ds_write_b128", 2: "ds_write_b64", 1: "ds_write_b32"}[n]
        assert 0 <= off < 65536
        return self.add(f"{ins} {v(addr)}, {v(src, n)} offset:{off}", "DW", r=[v(addr)] + vs(src, n) + list(pr), w=list(pw), note=note, cost={4: 28, 2: 12, 1: 8}[n])
    def valu(self, text, r, w, kind="V", **k): return self.add(text, kind, r=r, w=w, **k)
    def op2(self, ins, d, x, y, note="", kind="V"):
        return self.valu(f"{ins} {v(d)}, {v(x)}, {v(y)}", [v(x), v(y)], [v(d)], kind=kind, note=note)
    def cvt(self, d, x, y, note=""): return self.op2("v_cvt_pk_bf16_f32", d, x, y, note)
    def exp(self, x, note=""): return self.valu(f"v_exp_f32 {v(x)}, {v(x)}", [v(x)], [v(x)], kind="T", note=note)
    def mov(self, d, val, note=""): return self.valu(f"v_mov_b32 {v(d)}, {val}", [], [v(d)], note=note)
    def mov2(self, d, val="0", note=""):
        o = self.valu(f"v_mov_b64 {v(d, 2)}, {val}", [], vs(d, 2), note=note); self.hold(o, CFG.get("zh", 6)); return o
    def hold(self, o, k):
        ms = [x for x in self.ops if x.kind in MK]
        if len(ms) > k: o.after = list(o.after) + [ms[-1 - k]]
    def salu(self, text, r=(), w=(), **k): return self.add(text, "S", r=list(r), w=list(w), **k)

class ESet:
    def __init__(self, P, t, pseudo, note, fixed=None, tag=None):
        self.fixed = fixed; self.fr = []
        for ks in range(4):
            q = P.alloc() if fixed is None else fixed[ks]
            o = P.dsr(q, 4, aE, t * TILE + ks * KSTEP, pseudo, note); self.fr.append(q)
            o.tag = (tag, ks); P.hold(o, CFG["eh"])
    def __getitem__(self, ks): return self.fr[ks]
def eload(P, t, pseudo, note="e", fixed=None, tag=None): return ESet(P, t, pseudo, note, fixed, tag)
def efree(P, e):
    if e.fixed is None:
        for q in e.fr: P.release(q)

def chain(P, W, mt, fr, e_is_A, d, note):
    for n_, ks in enumerate([3, 2, 1, 0] if mt & 1 else [0, 1, 2, 3]):
        w = ("a", W + (mt * 4 + ks) * 4)
        A, B = (("v", fr[ks]), w) if e_is_A else (w, ("v", fr[ks]))
        P.mfma(d, A, B, first=(n_ == 0), note=note)
def pchain(P, W, mt, fr, e_is_A, dst, note, dst1=None):
    d = P.alloc(); chain(P, W, mt, fr, e_is_A, d, note)
    P.cvt(dst, d, d + 1, note + "c"); P.cvt(dst + 1 if dst1 is None else dst1, d + 2, d + 3, note + "c"); P.release(d)
def kch(P, t, mt, fr): pchain(P, WK, mt, fr, False, K0 + 8 * t + 2 * mt, f"K{t}")
def qch(P, mt, fr, tau, qf=QF): pchain(P, WQ, mt, fr, False, qf + 2 * mt, f"Q{tau}")
def vch(P, t, mt, fr): pchain(P, WV, mt, fr, True, V0 + 16 * (t >> 1) + 4 * mt + 2 * (t & 1), f"V{t}")
def rch(P, mt, fr, tau): chain(P, WR, mt, fr, False, RES[tau & 1] + 4 * mt, f"R{tau}")
def MTO(k): return [3, 2, 1, 0] if k & 1 else [0, 1, 2, 3]

def sc(P, tau, gs, QF=QF):
    pb = PBUF[tau & 1]; n = f"X{tau}"
    for g in gs:
        d = P.alloc()
        if g < 6:
            for ks in range(2): P.mfma(d, ("v", K0 + 8 * g + 4 * ks), ("v", QF + 4 * ks), first=(ks == 0), note=f"S{tau}")
            for i in range(4): P.exp(d + i, n)
            dst = pb + 4 * (g >> 1) + 2 * (g & 1)
            P.cvt(dst, d, d + 1, n); P.cvt(dst + 1, d + 2, d + 3, n)
        else:
            for i in (0, 2): P.mov2(d + i, f"s[{sBias}:{sBias+1}]", n)
            P.smf(d, KRS, QF, note=f"S{tau}")
            for i in (0, 2): P.op2("v_add_f32", d + i, d + i, d + i + 1, n); P.exp(d + i, n)
            for i, sel in enumerate((SEL0, SEL1)):
                P.valu(f"v_perm_b32 {v(pb + 12 + i)}, {v(d + 2)}, {v(d)}, {v(sel)}", [v(d), v(d + 2), v(sel)], [v(pb + 12 + i)], note=n)
        P.release(d)
def lsum(P, tau):
    pb = PBUF[tau & 1]; n = f"L{tau}"
    d = P.alloc(); P.mov2(d, "0", n)
    P.smf(d, ONES, pb, note=n); P.smf(d, ONES, pb + 8, abid=1, note=n)
    P.op2("v_add_f32", d, d, d + 1, n)
    P.valu(f"v_rcp_f32 {v(INV)}, {v(d)}", [v(d)], [v(INV)], kind="T", note=n, early=CFG.get("fe", 100))
    P.valu(f"v_max3_f32 {v(CHK)}, {v(CHK)}, {v(d)}, {v(INV)}", [v(CHK), v(d), v(INV)], [v(CHK)], note=n)
    P.release(d)

def pack_half(P, r, half, note):
    b = r + 8 * half
    for k in range(4): P.cvt(b + k, b + 2 * k, b + 2 * k + 1, note)
    return [P.valu(f"v_pk_max_i16 {v(b+k)}, {v(b+k)}, 0", [v(b + k)], [v(b + k)], note=note) for k in range(4)]
def stores(P, r, sreg, vaddr, note, after=()):
    o = None
    for half in range(2):
        b = r + 8 * half
        o = P.add(f"buffer_store_dwordx4 {v(b, 4)}, {v(vaddr)}, {srd(sO)}, s{sreg} offen offset:{half * 64}{P.stpol}", "VS", r=vs(b, 4) + [v(vaddr), f"s{sreg}"], note=note, cost=(24, 4)[half],
                  after=list(after) if o is None else [o])
        o.urgent = True
        if half or (len(after) == 1 and after[0].kind == "M32"): o.glue = 1
    return o
def pv(P, tau, mts):
    pb = PBUF[tau & 1]; r = RES[tau & 1]
    for mt in mts:
        d = OBLK + 4 * mt
        for kp in range(3): P.mfma(d, ("v", V0 + 16 * kp + 4 * mt), ("v", pb + 4 * kp), note=f"PV{tau}")
        for i in range(4):
            x = r + 4 * mt + i
            P.valu(f"v_fmac_f32 {v(x)}, {v(d+i)}, {v(INV)}", [v(x), v(d + i), v(INV)], [v(x)], note=f"D{tau}")
        if mt & 1: P.fin.setdefault(tau, []).extend(pack_half(P, r, mt >> 1, f"D{tau}"))
def m32st(P, tau, prev=None, sbase=None, pre=None):
    o = None
    if prev is not None:
        st = (sT0, sT1)[prev & 1]
        s_ = P.salu(f"s_add_u32 s{st}, s{sbase}, {FT[prev] * 4096}", r=[f"s{sbase}"], w=[f"s{st}"])
    aft = P.fin.pop(prev) + [s_] if prev is not None else []
    if pre: aft += pre(P)
    if tau is not None:
        hk = P.hook; P.hook = None
        o = P.m32(OBLK, VR, PBUF[tau & 1] + 12, note=f"PV{tau}"); o.after = list(aft); aft = [o]
        P.hook = hk
    if prev is not None: o = stores(P, RES[prev & 1], st, aST, f"D{prev}", aft)
    return o

class Rem:
    def __init__(self, P): self.P = P
    def ld(self):
        P = self.P; self.a = P.alloc(); P.hold(P.dsr(self.a, 4, aQa, 0, ["L:Qtab"], "Srem"), 8)
    def s(self, par):
        P = self.P
        if par == 0:
            for t in range(6): P.mov2(OBLK + 2 * t, "0", "Xrem")
        for t in range(par, 6, 2): P.smf(OBLK + 2 * t, self.a, K0 + 8 * t, note="Srem")
        if par: P.release(self.a)
    def soft(self):
        P = self.P; n = "Xrem"; l = OBLK + 12
        for t in range(6):
            x = OBLK + 2 * t; P.op2("v_add_f32", x, x, x + 1, n); P.exp(x, n)
        P.op2("v_add_f32", l, OBLK, OBLK + 2, n)
        for t in range(2, 6): P.op2("v_add_f32", l, l, OBLK + 2 * t, n)
        for rot in (8, 4):
            P.valu(f"v_add_f32_dpp {v(l)}, {v(l)}, {v(l)} row_ror:{rot} row_mask:0xf bank_mask:0xf", [v(l)], [v(l)], kind="DPP", note=n)
        P.dsw(aLw, l, 1, 0, pw=["L:Qtab", "L:Ktab"], note=n)
        for kp in range(3):
            x = OBLK + 4 * kp; P.cvt(x + 1, x, x + 2, n)
            P.dsw(aPw, x + 1, 1, kp * CST, pw=["L:Ps"], note=n, ins="ds_write_b16")
            P.dsw(aPw, x + 1, 1, kp * CST + 4, pw=["L:Ps"], note=n, ins="ds_write_b16_d16_hi")
    def ldp(self):
        P = self.P; self.b = [P.alloc() for _ in range(3)]
        for kp in range(3): P.hold(P.dsr(self.b[kp], 4, aPr, kp * CST, ["L:Ps"], "PVrem"), 4)
    def pv(self):
        P = self.P; n = "PVrem"
        for s_ in range(2):
            d = P.alloc()
            for i in (0, 2): P.mov2(d + i, "0", n)
            for kp in ((0, 1, 2), (2, 1, 0))[s_]: P.smf(d, self.b[kp], V0 + 16 * kp + 8 * s_, note=n)
            for i in (0, 2): P.op2("v_add_f32", d + i, d + i, d + i + 1, n)
            P.add(f"ds_write2_b32 {v(aCw)}, {v(d)}, {v(d + 2)} offset0:{32 * s_} offset1:{32 * s_ + 16}", "DW", r=[v(aCw), v(d), v(d + 2)], w=["L:Qtab", "L:Ktab"], note=n, cost=12)
            P.release(d)
        for q in self.b: P.release(q)

def dma_setup(P, i, pr):
    o = [P.salu(f"s_add_u32 m0, s{sLn}, {2 * i * TILE}", r=[f"s{sLn}"] + pr, w=["m0"])]
    if i == 0: o.append(P.salu(f"s_mov_b32 s{sD}, s{sEn}", r=[f"s{sEn}"] + pr, w=[f"s{sD}"]))
    else: o.append(P.salu(f"s_add_u32 s{sD}, s{sD}, s{sSo}", r=[f"s{sD}", f"s{sSo}"] + pr, w=[f"s{sD}"]))
    for k in range(1, 4): o.append(P.salu(f"s_add_u32 s{sD+k}, s{sD+k-1}, s{sStr}", r=[f"s{sD+k-1}", f"s{sStr}"] + pr, w=[f"s{sD+k}"]))
    for x in o: x.early = 20000
    return o
def dma(P, k, pr, after, cost):
    o = P.add(f"buffer_load_dwordx4 {v(aDMA)}, {srd(sE)}, s{sD+k} offen offset:{k * BLK}{LDPOL} lds", "VL", r=[v(aDMA), "m0", f"s{sD+k}"] + pr, w=["dma"], note="dma", after=after, cost=cost)
    o.early = 20000; o.urgent = True; o.glue = 1
    return o
def dma_spread(P, i, ks, pr, gap=1):
    ks = list(ks)
    if ks[0] == 0:
        su = dma_setup(P, i, pr); del P.ops[-5:]; n_ = P.ops.index(P.lastm); P.ops[n_:n_] = su; P.lastm.after = list(P.lastm.after) + su
    n0 = P.nm
    def hook(P_):
        if (P_.nm - n0) % gap == 0:
            dma(P_, ks.pop(0), pr, [P_.lastm], 8)
            if not ks: P_.hook = None
    assert P.hook is None
    P.hook = hook; hook(P)

def remops(P):
    P.dsr(KRS, 4, aKr, 0, ["L:Ktab"], "KR")
    P.add(f"ds_read2_b32 {v(VR, 2)}, {v(aVr)} offset0:0 offset1:8", "DR", r=[v(aVr), "L:Vtab"], w=vs(VR, 2), note="VR")

def signal(P):
    q = P.alloc()
    P.hold(P.valu(f"v_mov_b32 {v(q)}, s{sCnt}", [f"s{sCnt}"], [v(q)], note="sig"), 2)
    P.dsw(aPw, q, 1, 3 * CST, pw=["Bs"], pr=["dma"], note="sig", ins="ds_write_b16").early = 500
    P.release(q)
def check(P):
    q = P.alloc()
    o = P.dsr(q, 1, aFl, 0, ["Bs"], "chk", ins="ds_read_u16"); o.delay = CFG.get("cd", 120); o.urgent = True
    P.valu(f"v_cmp_lt_u32 vcc, s{sCnt}, {v(q)}", [f"s{sCnt}", v(q)], ["vcc"], note="chk").urgent = True
    o = P.add("s_cbranch_vccnz L_spin\nL_back:", "S", r=["vcc", v(q), f"s{sCnt}"], w=["B"], note="chk", cost=4); o.ninst = 1
    P.release(q)

def run(P, order, pseudo=lambda t, n: ["B", "Bs"], fixed={}):
    toks = order.split(); E = {}; R = Rem(P); lastW = None; dirn = {}; late = False
    def tile(w): return int(w[1]) if w[0] in "KV" else FT[int(w[1])]
    for n, w in enumerate(toks):
        h, _, arg = w.partition(":")
        if w[0] in "KVQR":
            t = tile(w)
            if h not in dirn:
                dirn[h] = (1 - dirn[lastW]) if lastW and lastW[0] == h[0] else 0
            lastW = h
            for c in (arg or "0123"):
                mt = MTO(dirn[h])[int(c)]
                if h[0] == "K": kch(P, t, mt, E[t])
                elif h[0] == "V": vch(P, t, mt, E[t])
                elif h[0] == "Q": qch(P, mt, E[t], int(h[1]))
                else: rch(P, mt, E[t], int(h[1]))
            used = False
            for x in toks[n + 1:]:
                if x == f"e{t}": break
                if x[0] in "KVQR" and tile(x) == t: used = True
            if not used: efree(P, E.pop(t))
        elif w[0] == "e":
            t = int(w[1]); k = toks[:n].count(w)
            nxt = toks.index("cut") if "cut" in toks else -1
            across = n < nxt and w not in toks[n + 1:nxt] and any(x[0] in "KVQR" and tile(x) == t for x in itertools.takewhile(lambda y: y != w, toks[nxt:]))
            E[t] = eload(P, t, pseudo(t, k), tag="e4" if across else None, fixed=fixed.get(n))
        elif h == "sig":
            if CFG["sync"]:
                P.salu(f"s_sub_u32 s{sCnt}, s{sCnt}, 1", r=[f"s{sCnt}"], w=[f"s{sCnt}"]); signal(P)
        elif h == "rl": R.ld()
        elif h == "r0": R.s(0)
        elif h == "r1": R.s(1); R.soft()
        elif h == "pl": R.ldp()
        elif h == "pr": R.pv()
        elif h == "ko": remops(P)
        elif h == "cut": P.cut = len(P.ops); late = True
        elif w[0] == "s": sc(P, int(h[1]), [int(c) for c in arg])
        elif w[0] == "p": pv(P, int(h[1]), [int(c) for c in (arg or "0123")])
        elif w[0] == "l": lsum(P, int(h[1]))
        elif w[0] == "m":
            tau = int(h[1]); prev = (tau - 1) % 6
            nd = toks[n + 1] if n + 1 < len(toks) and toks[n + 1][0] == "d" else None
            pre = step if tau == 4 else ((lambda P_: dma_setup(P_, int(nd[1]), ["B"])) if nd and nd[3] == "0" else None)
            o = m32st(P, tau, prev, sStP if prev >= 4 else sStC, pre)
            if tau == 4: P.seam = o
            if nd:
                for c in nd[3:]: o = dma(P, int(c), ["B"], [o], 4)
        elif w[0] == "d":
            if toks[n - 1][0] != "m": dma_spread(P, int(h[1]), [int(c) for c in arg], ["B"])
        else: raise ValueError(w)
    assert not E, E

ORDERS = {
 0: """e0 s5:6012 K0:012 e1 K0:3 p4 s5:34 K1:012 e2 K1:3 m5 K2:012 e3 K2:3 s5:5 K3:012 e4 K3:3 K4:01 l5 K4:2 e5 K4:3 p5 K5 ko
       Q0:01 rl Q0:23 r0 R0:0 r1 R0:123 s0:601 V5:012 e1 V5:3 s0:23 V1:012 e0 V1:3 m0 s0:45 V0 Q1 l0 R1:01 e2 R1:23 s1:601 V2:012 e3 V2:3 s1:23 V3:012 e4 V3:3 V4 s1:45 cut
       p0 Q2:012 pl Q2:3 pr s2:6012 m1 R2:01 l1 R2:23 p1:01 e1 p1:23 s2:345 Q3:012 m2 Q3:3 R3:012 l2 R3:3 s3:6012 p2:01 e2 p2:23 s3:345 Q4:012 m3 Q4:3
       R4:012 l3 R4:3 s4:6012 p3:01 e3 p3:23 s4:345 Q5:012 m4 Q5:3 R5:012 l4 R5:3""",
 1: """e0 s5:601 K0:0 d0:01 K0:1 l4 K0:2 e1 K0:3 p4 s5:23 K1:012 e2 K1:3 K2:012 m5 d0:23 e3 K2:3 s5:45 K3:01 d1:01 K3:2 e4 K3:3 K4:012 e5 l5 K4:3 p5 K5 ko
       Q0:01 rl d1:23 Q0:23 r0 R0:0 r1 R0:123 s0:60 V5:012 e1 V5:3 s0:123 V1:012 e0 V1:3 m0 d2:0123 s0:45 V0 Q1 l0 R1:01 e2 R1:23 s1:601 V2:012 e3 V2:3 s1:23 V3:012 e4 V3:3 V4 s1:45 cut
       p0 Q2:012 pl Q2:3 pr s2:6012 m1 R2:01 l1 R2:23 p1:01 e1 p1:23 s2:345 Q3:012 m2 Q3:3 R3:012 l2 R3:3 s3:6012 p2:01 e2 p2:23 s3:345 Q4:012 m3 Q4:3
       R4 l3 s4:6012 p3:01 e3 p3:23 sig s4:345 Q5:012 m4 Q5:3 R5""",
}
ORDER = open(os.environ["ORDER"]).read() if os.environ.get("ORDER") else ORDERS[CFG.get("ord", 1)]

def body(P):
    if CFG["sync"]:
        o = P.add("s_nop 0", "S", cost=0); o.marker = True
        check(P)
    else: P.add("s_barrier", "BAR", r=["dma"], w=["B"])
    run(P, ORDER)
    assert P.hook is None and sum(o.kind == "VL" for o in P.ops[:P.cut]) == 12

def step(P):
    n0 = len(P.ops)
    P.valu(f"v_add_u32 {v(aE)}, s{sTog}, {v(aE)}", [v(aE), f"s{sTog}"], [v(aE)])
    P.salu(f"s_sub_u32 s{sLn}, s{sLn}, s{sTog}", r=[f"s{sLn}", f"s{sTog}"], w=[f"s{sLn}"])
    P.salu(f"s_sub_u32 s{sTog}, 0, s{sTog}", r=[f"s{sTog}"], w=[f"s{sTog}"])
    for x in (aKr, aVr, aQa, aCw, aLw):
        P.valu(f"v_add_u32 {v(x)}, {US}, {v(x)}", [v(x)], [v(x)])
    P.salu(f"s_mov_b32 s{sStP}, s{sStC}", r=[f"s{sStC}"], w=[f"s{sStP}"])
    P.salu(f"s_add_u32 s{sStC}, s{sStC}, {UB}", r=[f"s{sStC}"], w=[f"s{sStC}"])
    if not CFG["sync"]: P.salu(f"s_sub_u32 s{sCnt}, s{sCnt}, 1", r=[f"s{sCnt}"], w=[f"s{sCnt}"])
    P.salu(f"s_add_u32 s{sEn}, s{sEn}, {UB}", r=[f"s{sEn}"], w=[f"s{sEn}"])
    P.salu(f"s_bfe_i32 s{sM}, s{sBits}, 0x10000", r=[f"s{sBits}"], w=[f"s{sM}"])
    P.salu(f"s_lshr_b32 s{sBits}, s{sBits}, 1", r=[f"s{sBits}"], w=[f"s{sBits}"])
    P.salu(f"s_and_b32 s{sStr}, s{sM}, {UB - 1024}", r=[f"s{sM}"], w=[f"s{sStr}"])
    P.salu(f"s_lshl3_add_u32 s{sSo}, s{sStr}, 8192", r=[f"s{sStr}"], w=[f"s{sSo}"])
    P.salu(f"s_sub_u32 s{sStr}, s{sStr}, {BLK - 1024}", r=[f"s{sStr}"], w=[f"s{sStr}"])
    P.salu(f"s_and_b32 s{sT2}, s{sM}, s{sRd}", r=[f"s{sM}", f"s{sRd}"], w=[f"s{sT2}"])
    P.salu(f"s_sub_u32 s{sEn}, s{sEn}, s{sT2}", r=[f"s{sEn}", f"s{sT2}"], w=[f"s{sEn}"])
    for o in P.ops[n0:]: o.pin = True
    return P.ops[n0:]

def xor_in(P, dst, L, t, terms):
    for (off, w, sh) in terms:
        P.valu(f"v_bfe_u32 {v(t)}, {v(L)}, {off}, {w}", [v(L)], [v(t)])
        P.valu(f"v_lshlrev_b32 {v(t)}, {sh}, {v(t)}", [v(t)], [v(t)])
        P.valu(f"v_xor_b32 {v(dst)}, {v(t)}, {v(dst)}", [v(t), v(dst)], [v(dst)])
def lanemask(fn):
    m = 0
    for l in range(64):
        if fn(l): m |= 1 << l
    return m
def selc(P, dst, t, ctrue, cfalse, fn):
    P.mov(dst, cfalse); P.mov(t, ctrue); select(P, dst, t, dst, fn)

def unit0(P, e4regs, TQ):
    E = 1 << 20
    SV = WST; SQ = TAB0 - 16384; SK = SQ + 32768
    assert SV + 32768 <= SQ and SK + 32768 <= SCR0 and SV % 128 == 0 and SQ % 128 == 0
    ER = V0; KP = V0 + 32; QP = V0 + 40
    WQR = PBUF[0]; WRR = RES[0]
    L, t, vK0, vK1, vQ0, vQ1, y0, y1 = range(OBLK, OBLK + 8)
    aT = [OBLK + 8 + i for i in range(4)]; aV = [OBLK + 12, OBLK + 13]; vWr, vLin = OBLK + 14, OBLK + 15
    vV, aVw = TQ, TQ + 1; aTabW = [TQ + 2, TQ + 3]; aZw = KRS; aRw = INV
    sTab, sX = sT0, sT1
    o = P.salu(SRDTXT, r=["s4", "s5"], w=["srd"]); o.nb = CFG.get("knb", 200); o.urgent = True
    nld = [0]
    sp = CFG["lsp"]
    ARR = [1000] * 8 + [2400] * 12 + [CFG.get("tR", 3300)] * 4 + [CFG.get("tV", 3800)] * 8 + [CFG.get("tO", 5000)] * 8 + [CFG["tE1"]] * 4 + [CFG["tE2"]] * 4
    def timed(o):
        n = nld[0]; nld[0] += 1
        o.r = o.r + ["srd"]; o.nb = 350 + 25 * n if n < 20 else CFG.get("nb0", 1000) + sp * (n - 20); o.arrive = ARR[n]; o.urgent = True; o.early = E
        return o
    def V(text, r, w): return P.valu(text, r, w, early=E)
    lane_id(P, L)
    V(f"v_lshlrev_b32 {v(vLin)}, 4, {v(L)}", [v(L)], [v(vLin)])
    V(f"v_and_b32 {v(t)}, 16, {v(L)}", [v(L)], [v(t)])
    V(f"v_lshlrev_b32 {v(vV)}, 2, {v(t)}", [v(t)], [v(vV)])
    V(f"v_lshlrev_b32 {v(t)}, 1, {v(t)}", [v(t)], [v(t)])
    V(f"v_xor_b32 {v(vK0)}, {v(vLin)}, {v(t)}", [v(vLin), v(t)], [v(vK0)])
    V(f"v_xor_b32 {v(vV)}, {v(vLin)}, {v(vV)}", [v(vLin), v(vV)], [v(vV)])
    V(f"v_xor_b32 {v(vK1)}, 64, {v(vK0)}", [v(vK0)], [v(vK1)])
    P.salu(f"s_lshl_b32 s{sT2}, s{sW}, 13", r=[f"s{sW}"], w=[f"s{sT2}"], early=E)
    P.salu(f"s_add_u32 s{sM}, s{sT2}, 4096", r=[f"s{sT2}"], w=[f"s{sM}"], early=E)
    def wdma(srdn, lds, pw, vo):
        for j4 in range(2):
            so = (sT2, sM)[j4]
            P.salu(f"s_add_u32 m0, s{so}, {lds}", r=[f"s{so}"], w=["m0"], early=E).urgent = True
            for j in range(4):
                timed(P.add(f"buffer_load_dwordx4 {v(vo[j & 1])}, {srd(srdn)}, s{so} offen offset:{j*1024} lds", "VL", r=[v(vo[j & 1]), "m0", f"s{so}"], w=[pw, "ord"], note="wdma"))
    def gl(dst, srdn):
        for j in range(8):
            so = (sT2, sM)[j >> 2]
            timed(P.add(f"buffer_load_dwordx4 {v(dst + 4 * j, 4)}, {v(vLin)}, {srd(srdn)}, s{so} offen offset:{(j & 3) * 1024}", "VG", r=[v(vLin), f"s{so}"], w=vs(dst + 4 * j, 4) + ["ord"], note="gl"))
    def edma(js, src, pw, lb=sLn, sb=sT3, pr=[]):
        for j in js:
            P.salu(f"s_add_u32 m0, s{lb}, {j * RG}", r=[f"s{lb}"] + pr, w=["m0"], early=E).urgent = True
            P.salu(f"s_add_u32 s{sSo}, s{sb}, {src(j)}", r=[f"s{sb}"] + pr, w=[f"s{sSo}"], early=E).urgent = True
            timed(P.add(f"buffer_load_dwordx4 {v(aDMA)}, {srd(sE)}, s{sSo} offen{LDPOL} lds", "VL", r=[v(aDMA), "m0", f"s{sSo}"] + pr, w=[pw, "ord"], note="dma"))
    lane_expr(P, aDMA, L, t, [(0, 2, 16), (4, 2, 64), (2, 2, 256)])
    P.salu(f"s_lshl_b32 s{sT3}, s{sH}, 10", r=[f"s{sH}"], w=[f"s{sT3}"])
    P.salu(f"s_add_u32 s{sT3}, s{sT3}, s{sB0}", r=[f"s{sT3}", f"s{sB0}"], w=[f"s{sT3}"])
    P.salu(f"s_lshl_b32 s{sEn}, s{sH}, 12\ns_add_u32 s{sEn}, s{sEn}, s{sB0}\ns_add_u32 s{sEn}, s{sEn}, {UB}", r=[f"s{sH}", f"s{sB0}"], w=[f"s{sEn}"])
    P.salu(f"s_mul_i32 s{sLn}, s{sP}, {BUFSZ}\ns_mul_i32 s{sX}, s{sH}, {BLK}\ns_add_u32 s{sLn}, s{sLn}, s{sX}", r=[f"s{sP}", f"s{sH}"], w=[f"s{sLn}", f"s{sX}"])
    P.salu(f"s_mov_b32 s{sStr}, {1024 - BLK}", w=[f"s{sStr}"])
    P.salu(f"s_mul_i32 s{sRb}, s{sH}, {UB}\ns_add_u32 s{sRb}, s{sRb}, s{sB0}\ns_add_u32 s{sRb}, s{sRb}, {96 * 256}\ns_mul_i32 s{sRd}, s{sH}, {4096 - 4 * UB}\ns_add_u32 s{sRd}, s{sRd}, {8 * UB - 96 * 256}",
           r=[f"s{sH}", f"s{sB0}"], w=[f"s{sRb}", f"s{sRd}"])
    gl(WQR, sWQ)
    edma([10, 11, 0, 1], lambda j: j * 2048, "dK")
    wdma(sWK, SK, "dK", (vK0, vK1))
    edma(range(6, 10), lambda j: (j - 6) * 2 * UB, "dR", sb=sRb)
    wdma(sWV, SV, "dV", (vV, vV))
    gl(WRR, sWR)
    edma(range(2, 6), lambda j: j * 2048, "dE1")
    P.salu(f"s_lshl_b32 s{sX}, s{sH}, 14", r=[f"s{sH}"], w=[f"s{sX}"])
    lane_expr(P, aT[0], L, t, [(4, 2, 1024), (2, 2, 128), (3, 1, 32), (4, 1, 64), (0, 2, 8)], const=SQ, sconst=sX)
    for mt in range(1, 4): P.valu(f"v_xor_b32 {v(aT[mt])}, {mt * 32}, {v(aT[0])}", [v(aT[0])], [v(aT[mt])])
    lane_expr(P, aV[0], L, t, [(4, 2, 1024), (2, 2, 128), (3, 1, 64), (0, 2, 16)], const=SV, sconst=sX)
    P.valu(f"v_xor_b32 {v(aV[1])}, 64, {v(aV[0])}", [v(aV[0])], [v(aV[1])])
    P.salu(f"s_mul_i32 s{sX}, s{sP}, {BUFSZ}", r=[f"s{sP}"], w=[f"s{sX}"])
    lane_expr(P, aE, L, t, [(2, 2, BLK), (0, 2, 64), (4, 2, 16)], sconst=sX)
    P.salu(f"s_add_u32 s{sX}, s{sT2}, {SQ}", r=[f"s{sT2}"], w=[f"s{sX}"])
    P.valu(f"v_add_u32 {v(vQ0)}, s{sX}, {v(vK0)}", [v(vK0), f"s{sX}"], [v(vQ0)])
    P.valu(f"v_add_u32 {v(vQ1)}, s{sX}, {v(vK1)}", [v(vK1), f"s{sX}"], [v(vQ1)])
    P.salu(f"s_lshl_b32 s{sX}, s{sW}, 12", r=[f"s{sW}"], w=[f"s{sX}"])
    lane_expr(P, vWr, L, t, [(3, 1, 16384), (4, 2, 128), (2, 1, 64), (5, 1, 32), (0, 2, 8)], const=SV, sconst=sX)
    P.salu(f"s_lshl_b32 s{sX}, s{sH}, 7", r=[f"s{sH}"], w=[f"s{sX}"])
    lane_expr(P, aST, L, t, [(0, 4, 256), (4, 2, 16)], sconst=sX)
    P.salu(f"s_mul_i32 s{sTab}, s{sW}, {TABSZ}\ns_add_u32 s{sTab}, s{sTab}, {TAB0}", r=[f"s{sW}"], w=[f"s{sTab}"])
    lane_expr(P, aVr, L, t, [(3, 2, 128), (2, 1, 64), (0, 2, 8), (5, 1, 4)], const=VOFF, sconst=sTab)
    lane_expr(P, aKr, L, t, [(3, 1, 256), (1, 1, 128), (0, 1, 64), (4, 2, 16)], sconst=sTab); xor_in(P, aKr, L, t, [(3, 1, 5), (1, 1, 4)])
    lane_expr(P, aQa, L, t, [(2, 2, 128), (0, 1, 64), (4, 2, 16)], const=512, sconst=sTab); xor_in(P, aQa, L, t, [(2, 2, 4)])
    lane_expr(P, y0, L, t, [], const=ZOFF, sconst=sTab)
    select(P, aQa, aQa, y0, lambda l: (l & 2) == 0)
    lane_expr(P, aLw, L, t, [(4, 2, CST), (0, 2, 4)], const=256, sconst=sTab)
    lane_expr(P, aCw, L, t, [(4, 2, CST), (0, 4, 4)], sconst=sTab)
    lane_expr(P, aZw, L, t, [(0, 3, US)], const=ZOFF, sconst=sTab)
    lane_expr(P, aTabW[0], L, t, [(2, 2, US), (0, 2, 128), (5, 1, 16), (4, 1, 8)], sconst=sTab); xor_in(P, aTabW[0], L, t, [(0, 2, 4)])
    P.valu(f"v_xor_b32 {v(aTabW[1])}, 32, {v(aTabW[0])}", [v(aTabW[0])], [v(aTabW[1])])
    lane_expr(P, aVw, L, t, [(4, 2, US), (0, 4, 8)], const=VOFF, sconst=sTab)
    P.salu(f"s_mul_i32 s{sX}, s{sW}, {SCRSZ}\ns_add_u32 s{sX}, s{sX}, {SCR0}", r=[f"s{sW}"], w=[f"s{sX}"])
    lane_expr(P, aPw, L, t, [(4, 2, 64), (1, 1, 32), (2, 2, 8), (0, 1, 2)], sconst=sX)
    lane_expr(P, aPr, L, t, [(2, 2, 64), (0, 1, 32), (4, 1, 16)], sconst=sX)
    lane_expr(P, y0, L, t, [], const=256, sconst=sX)
    select(P, aPr, aPr, y0, lambda l: ((l >> 1) & 1) == (l >> 5))
    for i in range(4): P.mov(VR + i, 0)
    lane_expr(P, y0, L, t, [(0, 2, CST)], const=256, sconst=sX)
    P.dsw(y0, VR, 4, 0, pw=["L:Ps"])
    P.mov(y0, 64); P.dsw(aPw, y0, 1, 3 * CST, pw=["dz"], ins="ds_write_b16")
    P.salu(f"s_xor_b32 s{sX}, s{sW}, 1\ns_mul_i32 s{sX}, s{sX}, {SCRSZ}", r=[f"s{sW}"], w=[f"s{sX}"])
    lane_expr(P, aFl, L, t, [], const=SCR0 + 3 * CST, sconst=sX)
    P.salu(f"s_lshl_b32 s{sX}, s{sW}, 9", r=[f"s{sW}"], w=[f"s{sX}"])
    lane_expr(P, aRw, L, t, [(0, 4, 16)], const=RR0, sconst=sX)
    selc(P, ONES, t, "0x3f803f80", 0, lambda l: (l & 2) == 0)
    for i in range(1, 4): P.valu(f"v_mov_b32 {v(ONES + i)}, {v(ONES)}", [v(ONES)], [v(ONES + i)])
    selc(P, IDX, t, "0xeeeeeeee", "0x44444444", lambda l: l & 1)
    P.mov(t, "0xe4eeeeee"); select(P, IDX, t, IDX, lambda l: (l & 1) and l >= 32)
    selc(P, SEL0, t, "0x07060302", "0x0c0c0c0c", lambda l: not (l & 16))
    selc(P, SEL1, t, "0x07060302", "0x0c0c0c0c", lambda l: (l & 16))
    P.mov(CHK, 0)
    def bar(r, w):
        o = P.add("s_barrier", "BAR", r=r, w=w + ["barorder"], early=E); o.urgent = True; return o
    def trload(W, base, vpat, pseudo, e=0):
        for mt in range(4):
            for ks in range(4):
                for jh in range(2):
                    o = W + (mt * 4 + ks) * 4 + 2 * jh
                    addr = aV[mt >> 1] if vpat else aT[mt]
                    off = base + ks * 4096 + jh * 512 + ((mt & 1) * 8 if vpat else 0)
                    P.add(f"ds_read_b64_tr_b16 {a(o, 2)}, {v(addr)} offset:{off}", "DR", r=[v(addr)] + pseudo, w=as_(o, 2), note="tr", early=e)
    for j in range(8):
        for i in range(4):
            x = WQR + 4 * j + i; y = (y0, y1)[i & 1]
            P.valu(f"v_and_b32 {v(y)}, 0xffff0000, {v(x)}", [v(x)], [v(y)])
            P.valu(f"v_lshlrev_b32 {v(x)}, 16, {v(x)}", [v(x)], [v(x)])
            P.valu(f"v_mul_f32 {v(y)}, s{sC}, {v(y)}", [v(y), f"s{sC}"], [v(y)])
            P.valu(f"v_mul_f32 {v(x)}, s{sC}, {v(x)}", [v(x), f"s{sC}"], [v(x)])
            P.cvt(x, x, y)
        P.dsw((vQ0, vQ1)[j & 1], WQR + 4 * j, 4, j * 1024, pw=["dz"])
    for x in [pb + 14 + i for pb in PBUF for i in range(2)]: P.mov(x, 0)
    bar(["dK", "dz"], ["B1"])
    trload(WK, 32768, False, ["B1", "L:k"], E)
    trload(WQ, 0, False, ["B1", "L:k"])
    for mt in range(4): P.valu(f"v_subrev_u32 {v(aT[mt])}, {SQ - SV}, {v(aT[mt])}", [v(aT[mt])], [v(aT[mt])])
    e0 = eload(P, 0, ["B1"]); e5 = eload(P, 5, ["B1"], fixed=e4regs)
    for mt in range(4): kch(P, 0, mt, e0)
    efree(P, e0)
    for mt in MTO(1): kch(P, 5, mt, e5)
    for mt in range(4): qch(P, mt, e5, 0)
    bar(["dR"], ["L:k", "B2"])
    er = [[ER + 16 * z + 4 * ks for ks in range(4)] for z in range(2)]
    for z in range(2):
        for ks in range(4): P.dsr(er[z][ks], 4, aE, (3 + z) * TILE + ks * KSTEP, ["B2", "L:r"], "Erem").early = E
    bar(["dV"], ["L:r", "B3"])
    edma(range(6, 10), lambda j: j * 2048, "dE2", pr=["B3"])
    P.salu(f"s_mul_i32 s{sSo}, s{sH}, {TILE - BLK}\ns_add_u32 s{sLn}, s{sLn}, s{sSo}\ns_add_u32 s{sLn}, s{sLn}, {2*BUFSZ}\ns_mov_b32 s{sSo}, 8192", r=[f"s{sLn}", f"s{sH}"], w=[f"s{sLn}", f"s{sSo}"])
    trload(WV, 0, True, ["B3", "L:v"])
    P.dsw(aZw, VR, 4, 0, pw=["L:Qtab"], pr=["B2"])
    sc(P, 0, [0, 5])
    mrr = lanemask(lambda l: (l >> 4) == ((l >> 2) & 3))
    for z in range(2):
        for (W, X, off, pw, nt) in ((WK, KP, 0, "L:Ktab", "Krem"), (WQ, QP, 512, "L:Qtab", "Qrem"))[::(1, -1)[z]]:
            for mt in MTO(z + (W == WQ)):
                b = X + 4 * (mt >> 1) + (mt & 1)
                pchain(P, W, mt, er[z], False, b, nt, dst1=b + 2)
            for ks in range(2):
                for hf in range(2): P.dsw(aTabW[ks], X + 4 * ks + 2 * hf, 2, z * 4 * US + off + hf * 64, pw=[pw], pr=["B2"])
        if z == 0: P.dsr(KRS, 4, aKr, 0, ["L:Ktab"], "KR")
        else: bar([], ["L:v", "B4"])
        for mt in MTO(z):
            d = P.alloc(); chain(P, WV, mt, er[z], True, d, "Vrem")
            P.cvt(d, d, d + 1); P.cvt(d + 1, d + 2, d + 3)
            P.dsw(aVw, d, 2, z * 4 * US + mt * 128, pw=["L:Vtab"], pr=["B2"]); P.release(d)
            if mt == MTO(z)[0]:
                d = P.alloc()
                for ks in range(2): P.mfma(d, ("v", KP + 4 * ks), ("v", QP + 4 * ks), first=(ks == 0), note="Srr")
                for i in range(4): P.exp(d + i)
                P.op2("v_add_f32", y0, d, d + 1); P.op2("v_add_f32", y1, d + 2, d + 3)
                P.cvt(d, d, d + 1); P.cvt(d + 1, d + 2, d + 3); P.op2("v_add_f32", d + 2, y0, y1)
                P.add(f"s_mov_b32 exec_lo, 0x{mrr & 0xffffffff:x}\ns_mov_b32 exec_hi, 0x{mrr >> 32:x}\nds_write_b96 {v(aRw)}, {v(d, 3)} offset:{z * 256}\ns_mov_b64 exec, -1", "DW",
                      r=[v(aRw)] + vs(d, 3), w=["L:rr"], cost=32)
                P.release(d)
        if z == 0: sc(P, 0, [6])
    wr = [vWr, aV[0], aV[1], vLin]
    for k in range(1, 4): P.valu(f"v_xor_b32 {v(wr[k])}, {k * 32}, {v(vWr)}", [v(vWr)], [v(wr[k])])
    for j in range(8):
        for u_ in range(2): P.dsw(wr[u_ + 2 * ((j >> 1) & 1)], WRR + 4 * j + 2 * u_, 2, j * 512, pw=["wO"], pr=["B4"])
    bar(["wO"], ["B5"])
    trload(WR, 0, False, ["B5", "L:w"])
    e0 = eload(P, 0, ["B1"])
    for mt in range(4): vch(P, 0, mt, e0)
    efree(P, e0)
    for mt in MTO(1): vch(P, 5, mt, e5)
    for mt in range(4): rch(P, mt, e5, 0)
    bar(["dE1"], ["L:w", "B6", "B"])
    P.add(f"ds_read2_b32 {v(VR, 2)}, {v(aVr)} offset0:0 offset1:8", "DR", r=[v(aVr), "L:Vtab"], w=vs(VR, 2), note="VR")
    e1 = eload(P, 1, ["B6"]); e2 = eload(P, 2, ["B6"], fixed=e4regs)
    for mt in range(4): kch(P, 1, mt, e1)
    efree(P, e1)
    bar(["dE2"], ["B7"])
    e3 = eload(P, 3, ["B7"])
    for mt in MTO(1): kch(P, 2, mt, e2)
    for mt in range(4): vch(P, 2, mt, e2)
    cnt = [0]; nm0 = P.nm + CFG.get("u0d", 2)
    def hook(P_):
        if P_.nm >= nm0 and (P_.nm - nm0) % (2 * CFG["u0s"]) < 2 and cnt[0] < 12:
            j = cnt[0]; cnt[0] += 1
            if j % 4 == 0: dma_setup(P_, j // 4, ["B7"])
            dma(P_, j % 4, ["B7"], [P_.lastm], 8)
    P.hook = hook
    sc(P, 0, [1, 2])
    e4 = eload(P, 4, ["B7"], fixed=e4regs)
    for mt in range(4): kch(P, 3, mt, e3)
    efree(P, e3)
    for n_, mt in enumerate(MTO(1)):
        kch(P, 4, mt, e4)
        if n_ == 1: e0 = eload(P, 0, ["B7"])
    R = Rem(P)
    for mt in range(4):
        rch(P, mt, e0, 1)
        if mt == 0: sc(P, 0, [3, 4])
    for mt in range(4): qch(P, mt, e0, 1)
    efree(P, e0)
    R.ld()
    for mt in range(4):
        vch(P, 4, mt, e4)
        if mt == 0: sc(P, 1, [6, 0, 1])
        if mt == 1: R.s(0)
        if mt == 2: R.s(1); R.soft()
    lsum(P, 0)
    e3 = eload(P, 3, ["B7"])
    sc(P, 1, [2, 3])
    for mt in range(4): vch(P, 3, mt, e3)
    efree(P, e3)
    e1 = eload(P, 1, ["B7"])
    m32st(P, 0)
    sc(P, 1, [4])
    for mt in range(4): vch(P, 1, mt, e1)
    efree(P, e1)
    sc(P, 1, [5])
    P.hook = None
    assert cnt[0] == 12, cnt
    P.share()

class Lanes:
    def __init__(self, P, L, regs, sregs):
        self.P = P; self.L = L; self.regs = list(regs); self.F = {}; self.sregs = collections.deque(sregs); self.mul = {}
    def field(self, off, w):
        if (off, w) not in self.F:
            r = self.F[(off, w)] = self.regs.pop(0)
            if off == 0: self.P.valu(f"v_and_b32 {v(r)}, {(1 << w) - 1}, {v(self.L)}", [v(self.L)], [v(r)])
            elif off + w == 6: self.P.valu(f"v_lshrrev_b32 {v(r)}, {off}, {v(self.L)}", [v(self.L)], [v(r)])
            else: self.P.valu(f"v_bfe_u32 {v(r)}, {v(self.L)}, {off}, {w}", [v(self.L)], [v(r)])
        return self.F[(off, w)]
    def __call__(self, dst, terms, const=0, sconst=None, xor=()):
        P = self.P; base = None
        terms = sorted(terms, key=lambda x: x[2] & (x[2] - 1) != 0)
        if sconst is not None and not const: base = f"s{sconst}"
        elif sconst is not None or const:
            self.sregs.rotate(-1); x = self.sregs[0]; base = f"s{x}"
            if sconst is not None: P.salu(f"s_add_u32 s{x}, s{sconst}, {const}", r=[f"s{sconst}"], w=[base])
            else: P.salu(f"s_mov_b32 s{x}, {const}", w=[base])
        if not terms or terms[0][2] & (terms[0][2] - 1):
            P.valu(f"v_mov_b32 {v(dst)}, {base or 0}", [base] if base else [], [v(dst)]); base = v(dst)
        for (off, w, mult) in terms:
            f = self.field(off, w)
            if mult & (mult - 1) == 0:
                sh = int(math.log2(mult))
                if base is None: P.valu(f"v_lshlrev_b32 {v(dst)}, {sh}, {v(f)}", [v(f)], [v(dst)])
                else: P.valu(f"v_lshl_add_u32 {v(dst)}, {v(f)}, {sh}, {base}", [v(f), base], [v(dst)])
            else:
                if mult not in self.mul:
                    x = self.mul[mult] = self.sregs.pop(); P.salu(f"s_mov_b32 s{x}, {mult}", w=[f"s{x}"])
                P.valu(f"v_mad_u32_u24 {v(dst)}, {v(f)}, s{self.mul[mult]}, {base}", [v(f), base, f"s{self.mul[mult]}"], [v(dst)])
            base = v(dst)
        for (off, w, sh) in xor:
            if (off, w, sh) not in self.F:
                f = self.field(off, w); r = self.F[(off, w, sh)] = self.regs.pop(0)
                P.valu(f"v_lshlrev_b32 {v(r)}, {sh}, {v(f)}", [v(f)], [v(r)])
            P.valu(f"v_xor_b32 {v(dst)}, {v(self.F[(off, w, sh)])}, {v(dst)}", [v(self.F[(off, w, sh)]), v(dst)], [v(dst)])

def unit0b(P, e4regs):
    E = 1 << 20
    SV = 3 * BUFSZ - 16384; SQ = TILE; SK = TAB0
    assert SK + BUFSZ + 16384 <= SCR0 and SV % 128 == 0 and SQ % 128 == 0 and BUFSZ % 128 == 0 and SV >= 2 * BUFSZ + 2 * TILE and SQ + 16384 <= 5 * TILE
    ER = V0; KP = (RES[0], K0 + 24); QP = (RES[0] + 8, K0 + 32); VP = (K0 + 16, K0 + 8); Q1 = RES[1]
    WQR = PBUF[0]
    L, t, vK0, vK1, vQ0, vQ1, vWr, vLin = range(OBLK, OBLK + 8)
    aT = [OBLK + 8 + i for i in range(4)]; aV = [OBLK + 14, OBLK + 15]; vV, aVw = OBLK + 12, OBLK + 13
    Y = [RES[1] + 8 + i for i in range(4)]; y0, y1 = Y[:2]; aTabW = [RES[1] + 12, RES[1] + 13]; aZw = RES[1] + 14; aRw = RES[1] + 15
    sTab, sX, sV = sT0, sT1, sD
    T = lambda k, d: CFG.get(k, d)
    o = P.salu("s_waitcnt lgkmcnt(0)", w=["srd"], early=E); o.nb = T("knb", 120); o.cost = T("kw", 450); o.urgent = True
    nld = [0]
    def timed(o, arr, nb=0, cost=20):
        nld[0] += 1
        o.r = o.r + ["srd"]; o.nb = nb; o.arrive = arr; o.urgent = True; o.early = E; o.cost = cost
        return o
    def V(text, r, w): return P.valu(text, r, w, early=E)
    def S(text, r, w):
        o = P.salu(text, r=r, w=w, early=E); o.urgent = True; return o
    n0 = len(P.ops)
    V(f"v_and_b32 {v(L)}, 63, v0", [], [v(L)])
    V(f"v_lshlrev_b32 {v(vLin)}, 4, {v(L)}", [v(L)], [v(vLin)])
    S(f"s_lshl_b32 s{sT2}, s{sW}, 13", [f"s{sW}"], [f"s{sT2}"])
    S(f"s_add_u32 s{sM}, s{sT2}, 4096", [f"s{sT2}"], [f"s{sM}"])
    V(f"v_and_b32 {v(aDMA)}, 48, {v(vLin)}", [v(vLin)], [v(aDMA)])
    V(f"v_and_b32 {v(t)}, 48, {v(L)}", [v(L)], [v(t)])
    V(f"v_lshl_add_u32 {v(aDMA)}, {v(t)}, 2, {v(aDMA)}", [v(t), v(aDMA)], [v(aDMA)])
    V(f"v_and_b32 {v(t)}, 12, {v(L)}", [v(L)], [v(t)])
    V(f"v_lshl_add_u32 {v(aDMA)}, {v(t)}, 6, {v(aDMA)}", [v(t), v(aDMA)], [v(aDMA)])
    S(f"s_lshl_b32 s{sT3}, s{sH}, 10\ns_add_u32 s{sT3}, s{sT3}, s{sB0}", [f"s{sH}", f"s{sB0}"], [f"s{sT3}"])
    S(f"s_mul_i32 s{sLn}, s{sP}, {BUFSZ}\ns_mul_i32 s{sX}, s{sH}, {BLK}\ns_add_u32 s{sLn}, s{sLn}, s{sX}", [f"s{sP}", f"s{sH}"], [f"s{sLn}", f"s{sX}"])
    P.ops.append(P.ops.pop(n0 - 1)); P.ops[-1].after = P.ops[n0 - 1:-1]
    def wdma(srdn, lds, pw, vo, arr, pr=[]):
        def f(n_):
            j4, j = divmod(n_, 4); so = (sT2, sM)[j4]
            if j == 0: S(f"s_add_u32 m0, s{lds[0]}, {lds[1] + 4096 * j4}", [f"s{lds[0]}"], ["m0"])
            return timed(P.add(f"buffer_load_dwordx4 {v(vo[j & 1])}, {srd(srdn)}, s{so} offen offset:{j*1024} lds", "VL", r=[v(vo[j & 1]), "m0", f"s{so}"] + pr, w=[pw, "ord"], note="wdma"), arr, 0, 8)
        return [lambda n_=n_: f(n_) for n_ in range(8)]
    def edma(js, src, pw, arr, sb=sT3, pr=[], lo=0):
        def f(n_, j):
            so = sD + 1 + n_ % 2
            if n_ % 2 == 0: S(f"s_add_u32 m0, s{sLn}, {lo + j * RG}", [f"s{sLn}"], ["m0"])
            S(f"s_add_u32 s{so}, s{sb}, {src(j) - (n_ % 2) * RG}", [f"s{sb}"], [f"s{so}"])
            return timed(P.add(f"buffer_load_dwordx4 {v(aDMA)}, {srd(sE)}, s{so} offen offset:{(n_ % 2) * RG}{LDPOL} lds", "VL", r=[v(aDMA), "m0", f"s{so}"] + pr, w=[pw, "ord"], note="dma"), arr, 0, 8)
        return [lambda n_=n_, j=j: f(n_, j) for n_, j in enumerate(js)]
    def mix(x, y, first, per):
        x = list(x); y = list(y); r = []
        for n_ in range(1000):
            if y and n_ >= first and (n_ - first) % per == 0: r += [y.pop(0), y.pop(0)]
            if not x and not y: return r
            r.append(x.pop(0) if x else None)
    def edma1(js, src, pw, arr, cost):
        for j in js:
            S(f"s_add_u32 m0, s{sLn}, {j * RG}", [f"s{sLn}"], ["m0"])
            S(f"s_add_u32 s{sSo}, s{sT3}, {src(j)}", [f"s{sT3}"], [f"s{sSo}"])
            timed(P.add(f"buffer_load_dwordx4 {v(aDMA)}, {srd(sE)}, s{sSo} offen{LDPOL} lds", "VL", r=[v(aDMA), "m0", f"s{sSo}"], w=[pw, "ord"], note="dma"), arr, 0, cost)
    tQ, tE0, tK, tR, tV, tE1, tE2, tO = T("tQ", 1350), T("tE0", 2400), T("tK", 2800), T("tR", 4000), T("tV", 4400), T("tE1b", 5700), T("tE2b", 6800), T("tO", 7600)
    for j in range(8):
        so = (sT2, sM)[j >> 2]
        timed(P.add(f"buffer_load_dwordx4 {v(WQR + 4 * j, 4)}, {v(vLin)}, {srd(sWQ)}, s{so} offen offset:{(j & 3) * 1024}", "VG", r=[v(vLin), f"s{so}"], w=vs(WQR + 4 * j, 4) + ["ord"], note="gl"), tQ + 50 * j, 0, 60)
    edma1([10, 11, 0, 1], lambda j: j * 2048, "dE0", tE0, 60)
    first = P.ops[-1]; n1 = len(P.ops)
    LE = Lanes(P, L, list(range(V0 + 32, V0 + 48)) + list(range(K0 + 16, K0 + 24)), range(6, 16))
    V(f"v_and_b32 {v(t)}, 16, {v(L)}", [v(L)], [v(t)])
    V(f"v_lshlrev_b32 {v(vV)}, 2, {v(t)}", [v(t)], [v(vV)])
    V(f"v_lshlrev_b32 {v(t)}, 1, {v(t)}", [v(t)], [v(t)])
    V(f"v_xor_b32 {v(vK0)}, {v(vLin)}, {v(t)}", [v(vLin), v(t)], [v(vK0)])
    V(f"v_xor_b32 {v(vK1)}, 64, {v(vK0)}", [v(vK0)], [v(vK1)])
    S(f"s_mul_i32 s{sV}, s{sP}, {BUFSZ}\ns_lshl_b32 s{sX}, s{sH}, 13\ns_add_u32 s{sV}, s{sV}, s{sX}", [f"s{sH}", f"s{sP}"], [f"s{sV}", f"s{sX}"])
    S(f"s_add_u32 s{sX}, s{sV}, {SQ}", [f"s{sV}"], [f"s{sX}"])
    V(f"v_add_u32 {v(vQ0)}, s{sX}, {v(vK0)}", [v(vK0), f"s{sX}"], [v(vQ0)])
    V(f"v_add_u32 {v(vQ1)}, s{sX}, {v(vK1)}", [v(vK1), f"s{sX}"], [v(vQ1)])
    LE(vWr, [(3, 3, 256), (0, 3, 16)])
    P.valu(f"v_xor_b32 {v(vWr)}, {v(vWr)}, {v(vV)}", [v(vWr), v(vV)], [v(vWr)])
    P.valu(f"v_xor_b32 {v(vV)}, {v(vLin)}, {v(vV)}", [v(vLin), v(vV)], [v(vV)])
    P.salu(f"s_mul_i32 s{sX}, s{sH}, {BUFSZ}", r=[f"s{sH}"], w=[f"s{sX}"])
    LE(aT[0], [(4, 2, 1024), (2, 2, 128), (3, 1, 32), (4, 1, 64), (0, 2, 8)], const=SQ, sconst=sX)
    for mt in range(1, 4): P.valu(f"v_xor_b32 {v(aT[mt])}, {mt * 32}, {v(aT[0])}", [v(aT[0])], [v(aT[mt])])
    P.salu(f"s_mul_i32 s{sX}, s{sP}, {BUFSZ}", r=[f"s{sP}"], w=[f"s{sX}"])
    LE(aE, [(2, 2, BLK), (0, 2, 64), (4, 2, 16)], sconst=sX)
    P.salu(f"s_mul_i32 s{sRb}, s{sH}, {UB}\ns_add_u32 s{sRb}, s{sRb}, s{sB0}\ns_add_u32 s{sRb}, s{sRb}, {96 * 256}\ns_mul_i32 s{sRd}, s{sH}, {4096 - 4 * UB}\ns_add_u32 s{sRd}, s{sRd}, {8 * UB - 96 * 256}",
           r=[f"s{sH}", f"s{sB0}"], w=[f"s{sRb}", f"s{sRd}"])
    P.salu(f"s_mul_i32 s{sX}, s{sW}, {SCRSZ}\ns_add_u32 s{sX}, s{sX}, {SCR0}", r=[f"s{sW}"], w=[f"s{sX}"])
    LE(aPw, [(4, 2, 64), (1, 1, 32), (2, 2, 8), (0, 1, 2)], sconst=sX)
    LE(aPr, [(2, 2, 64), (0, 1, 32), (4, 1, 16)], sconst=sX)
    LE(aZw, [], const=256, sconst=sX)
    select(P, aPr, aPr, aZw, lambda l: ((l >> 1) & 1) == (l >> 5))
    for i in range(4): P.mov(VR + i, 0)
    LE(aZw, [(0, 2, CST), (2, 2, 4)], const=256, sconst=sX)
    P.dsw(aZw, VR, 1, 0, pw=["L:Ps"])
    P.mov(aZw, 64); P.dsw(aPw, aZw, 1, 3 * CST, pw=["dF"], ins="ds_write_b16")
    for o in P.ops[n1:]: o.after = list(o.after) + [first]
    def bar(r, w):
        o = P.add("s_barrier", "BAR", r=r, w=w + ["barorder"], early=E); o.urgent = True; return o
    def trload(W, base, vpat, pseudo, rev=0):
        def f(mt, ks, jh):
            o = W + (mt * 4 + ks) * 4 + 2 * jh
            addr = aV[mt >> 1] if vpat else aT[mt]
            if W == WK and ks == 0 and jh == 0: V(f"v_add_u32 {v(addr)}, {SK - SQ}, {v(addr)}", [v(addr)], [v(addr)])
            off = base + ks * 4096 + jh * 512 + ((mt & 1) * 8 if vpat else 0)
            return P.add(f"ds_read_b64_tr_b16 {a(o, 2)}, {v(addr)} offset:{off}", "DR", r=[v(addr)] + pseudo, w=as_(o, 2), note="tr", early=E)
        return [lambda mt=mt, ks=ks, jh=jh: f(mt, ks, jh) for mt in MTO(rev) for ks in range(4) for jh in range(2)]
    def qbar(r, w): return [lambda: bar(r, w)]
    gate = []
    for j in range(8):
        for i in range(4):
            x = WQR + 4 * j + i; y = Y[i]
            V(f"v_and_b32 {v(y)}, 0xffff0000, {v(x)}", [v(x)], [v(y)])
            V(f"v_lshlrev_b32 {v(x)}, 16, {v(x)}", [v(x)], [v(x)])
            V(f"v_mul_f32 {v(y)}, s{sC}, {v(y)}", [v(y), f"s{sC}"], [v(y)])
            V(f"v_mul_f32 {v(x)}, s{sC}, {v(x)}", [v(x), f"s{sC}"], [v(x)])
            P.cvt(x, x, y).early = E
        o = P.dsw((vQ0, vQ1)[j & 1], WQR + 4 * j, 4, j * 1024, pw=["dz"]); o.early = E; o.urgent = True; gate.append(o)
    for j, f in enumerate(wdma(sWK, (sV, SK), "dK", (vK0, vK1), tK)): f().after = [gate[j // T("kg", 4)]]
    for f in edma(range(4), lambda j: j * 2 * UB, "dR", tR, sb=sRb, lo=2 * BUFSZ): f().after = [gate[T("rg", 7)]]
    bar(["dz", "dE0", "ord"], ["B0", "B1"])
    e5 = eload(P, 5, ["B1"], fixed=e4regs); e0 = eload(P, 0, ["B1"])
    for o in P.ops[-8:]: o.urgent = True
    tq = trload(WQ, 0, False, ["B0", "L:q"])
    lead = [f() for f in tq[:T("lead", 20)]]
    for o in lead: o.urgent = True
    n1 = len(P.ops)
    for x in [pb + 14 + i for pb in PBUF for i in range(2)]: P.mov(x, 0)
    P.salu(f"s_mul_i32 s{sX}, s{sH}, {BUFSZ}", r=[f"s{sH}"], w=[f"s{sX}"])
    LE(aV[0], [(4, 2, 1024), (2, 2, 128), (3, 1, 64), (0, 2, 16)], const=SV, sconst=sX)
    P.valu(f"v_xor_b32 {v(aV[1])}, 64, {v(aV[0])}", [v(aV[0])], [v(aV[1])])
    P.salu(f"s_lshl_b32 s{sX}, s{sH}, 7", r=[f"s{sH}"], w=[f"s{sX}"])
    LE(aST, [(0, 4, 256), (4, 2, 16)], sconst=sX)
    P.salu(f"s_mul_i32 s{sTab}, s{sW}, {TABSZ}\ns_add_u32 s{sTab}, s{sTab}, {TAB0}", r=[f"s{sW}"], w=[f"s{sTab}"])
    LE(aVr, [(3, 2, 128), (2, 1, 64), (0, 2, 8), (5, 1, 4)], const=VOFF, sconst=sTab)
    LE(aKr, [(3, 1, 256), (1, 1, 128), (0, 1, 64), (4, 2, 16)], sconst=sTab, xor=[(3, 1, 5), (1, 1, 4)])
    LE(aQa, [(2, 2, 128), (0, 1, 64), (4, 2, 16)], const=512, sconst=sTab, xor=[(2, 2, 4)])
    LE(aZw, [], const=ZOFF, sconst=sTab)
    select(P, aQa, aQa, aZw, lambda l: (l & 2) == 0)
    LE(aLw, [(4, 2, CST), (0, 2, 4)], const=256, sconst=sTab)
    LE(aCw, [(4, 2, CST), (0, 4, 4)], sconst=sTab)
    LE(aZw, [(0, 3, US), (3, 2, 4)], const=ZOFF, sconst=sTab)
    LE(aTabW[0], [(2, 2, US), (0, 2, 128), (5, 1, 16), (4, 1, 8)], sconst=sTab, xor=[(0, 2, 4)])
    P.valu(f"v_xor_b32 {v(aTabW[1])}, 32, {v(aTabW[0])}", [v(aTabW[0])], [v(aTabW[1])])
    LE(aVw, [(4, 2, US), (0, 4, 8)], const=VOFF, sconst=sTab)
    P.salu(f"s_xor_b32 s{sX}, s{sW}, 1\ns_mul_i32 s{sX}, s{sX}, {SCRSZ}", r=[f"s{sW}"], w=[f"s{sX}"])
    LE(aFl, [], const=SCR0 + 3 * CST, sconst=sX)
    P.salu(f"s_lshl_b32 s{sX}, s{sW}, 9", r=[f"s{sW}"], w=[f"s{sX}"])
    LE(aRw, [(0, 4, 16)], const=RR0, sconst=sX)
    P.mov(t, DUMP); select(P, aRw, aRw, t, lambda l: (l >> 4) == ((l >> 2) & 3))
    selc(P, ONES, t, "0x3f803f80", 0, lambda l: (l & 2) == 0)
    for i in range(1, 4): P.valu(f"v_mov_b32 {v(ONES + i)}, {v(ONES)}", [v(ONES)], [v(ONES + i)])
    selc(P, IDX, t, "0xeeeeeeee", "0x44444444", lambda l: l & 1)
    P.mov(t, "0xe4eeeeee"); select(P, IDX, t, IDX, lambda l: (l & 1) and l >= 32)
    selc(P, SEL0, t, "0x07060302", "0x0c0c0c0c", lambda l: not (l & 16))
    selc(P, SEL1, t, "0x07060302", "0x0c0c0c0c", lambda l: (l & 16))
    P.mov(CHK, 0)
    P.salu(f"s_lshl_b32 s{sEn}, s{sH}, 12\ns_add_u32 s{sEn}, s{sEn}, s{sB0}\ns_add_u32 s{sEn}, s{sEn}, {UB}", r=[f"s{sH}", f"s{sB0}"], w=[f"s{sEn}"])
    P.salu(f"s_mov_b32 s{sStr}, {1024 - BLK}", w=[f"s{sStr}"])
    for o in P.ops[n1:]: o.after = list(o.after) + [first]
    G = T("lg", 96)
    tk = trload(WK, 0, False, ["B2", "L:k"])
    P.queue.extend(tq[len(lead):] + qbar(["dK"], ["B2"]) + mix(tk, wdma(sWV, (sV, SV), "dV", (vV, vV), tV), T("m1", 10), T("m2", 11)))
    for mt in range(4):
        for x in ((0, 1), (1, 0))[mt & 1]:
            if x == 0: qch(P, mt, e5, 0)
            else: qch(P, mt, e0, 1, Q1)
    [o for o in P.ops if o.kind == "M16"][0].after = lead
    for mt in range(4):
        for x in ((0, 1), (1, 0))[mt & 1]:
            if x == 0: kch(P, 5, mt, e5)
            else: kch(P, 0, mt, e0)
    efree(P, e0)
    sc(P, 0, [0, 5]); sc(P, 1, [5, 0], Q1)
    assert not P.queue
    bar(["dR", "dF"], ["L:k", "L:q", "B3"])
    er = [[ER + 16 * z + 4 * ks for ks in range(4)] for z in range(2)]
    for z in range(2):
        for ks in range(4):
            o = P.dsr(er[z][ks], 4, aE, 2 * BUFSZ + z * TILE + ks * KSTEP, ["B3", "L:r"], "Erem"); o.early = E; o.urgent = True
    P.queue.extend(mix([], edma(range(2, 6), lambda j: j * 2048, "dE1", tE1, pr=["B3"]) + edma(range(6, 10), lambda j: j * 2048, "dE2", tE2, pr=["B3"]), 0, T("q34", 5)) + [None] * T("qv", 2) + qbar(["dV"], ["L:r", "B4"]) + trload(WV, 0, True, ["B4", "L:v"], 1))
    P.dsw(aZw, VR, 1, 0, pw=["L:Qtab"], pr=["B3"])
    def dsw2(addr, src, off, pw):
        for i in range(2):
            o = P.dsw(addr, src + i, 1, off + 4 * i, pw=[pw], pr=["B3"]); o.lazy = True
    mrr = lanemask(lambda l: (l >> 4) == ((l >> 2) & 3))
    def srr(z):
        d = P.alloc()
        for ks in range(2): P.mfma(d, ("v", KP[z] + 4 * ks), ("v", QP[z] + 4 * ks), first=(ks == 0), note="Srr")
        for i in range(4): P.exp(d + i)
        P.op2("v_add_f32", y0, d, d + 1); P.op2("v_add_f32", y1, d + 2, d + 3)
        P.cvt(d, d, d + 1); P.cvt(d + 1, d + 2, d + 3); P.op2("v_add_f32", d + 2, y0, y1)
        for i in range(3):
            o = P.dsw(aRw, d + i, 1, z * 256 + 4 * i, pw=["L:rr"]); o.cost = 8; o.early = 6000
        P.release(d)
    for z in range(2):
        for k_, (W, X, off, pw, nt) in enumerate(((WK, KP[z], 0, "L:Ktab", "Krem"), (WQ, QP[z], 512, "L:Qtab", "Qrem"))[::(1, -1)[z]]):
            for n_, mt in enumerate(MTO(z + (W == WQ))):
                if z == 1 and k_ == 0 and n_ == 1: srr(0); sc(P, 0, [6]); sc(P, 1, [6], Q1)
                b = X + 4 * (mt >> 1) + (mt & 1)
                pchain(P, W, mt, er[z], False, b, nt, dst1=b + 2)
            for ks in range(2):
                for hf in range(2): dsw2(aTabW[ks], X + 4 * ks + 2 * hf, z * 4 * US + off + hf * 64, pw)
            if z == 0 and k_ == 0: P.dsr(KRS, 4, aKr, 0, ["L:Ktab"], "KR")
    for z in (1, 0):
        for n_, mt in enumerate(MTO(z)):
            pchain(P, WV, mt, er[z], True, VP[z] + 2 * mt, "Vrem")
            dsw2(aVw, VP[z] + 2 * mt, z * 4 * US + mt * 128, "L:Vtab")
            if z == 1 and n_ == 0: srr(1)
    e0 = eload(P, 0, ["B1"])
    for mt in MTO(1): vch(P, 5, mt, e5)
    P.add(f"ds_read2_b32 {v(VR, 2)}, {v(aVr)} offset0:0 offset1:8", "DR", r=[v(aVr), "L:Vtab"], w=vs(VR, 2), note="VR")
    for mt in range(2): vch(P, 0, mt, e0)
    bar(["dE1"], ["L:v", "B5"])
    e1 = eload(P, 1, ["B5"], fixed=e4regs)
    S(f"s_lshl_b32 s{sM}, s{sH}, 14\ns_lshl_b32 s{sX}, s{sP}, 7\ns_add_u32 s{sM}, s{sM}, s{sX}", [f"s{sH}", f"s{sP}"], [f"s{sM}", f"s{sX}"])
    def fr(j):
        so = sD + 1 + j % 2
        if j % 4 == 0: S(f"s_add_u32 m0, s{sV}, {SV + j * 1024}", [f"s{sV}"], ["m0"])
        S(f"s_add_u32 s{so}, s{sM}, {j * 2048 - (j % 4) * 1024}", [f"s{sM}"], [f"s{so}"])
        return timed(P.add(f"buffer_load_dwordx4 {v(vWr)}, {srd(sWR)}, s{so} offen offset:{(j % 4) * 1024} lds", "VL", r=[v(vWr), "m0", f"s{so}", "B5"], w=["dO", "ord"], note="wdma"), tO, 0, 8)
    assert not P.queue
    P.queue.extend(mix([], [lambda j=j: fr(j) for j in range(8)], 4, T("qo", 6)))
    P.salu(f"s_mul_i32 s{sSo}, s{sH}, {TILE - BLK}\ns_add_u32 s{sLn}, s{sLn}, s{sSo}\ns_add_u32 s{sLn}, s{sLn}, {2*BUFSZ}\ns_mov_b32 s{sSo}, 8192", r=[f"s{sLn}", f"s{sH}"], w=[f"s{sLn}", f"s{sSo}"])
    for mt in range(2, 4): vch(P, 0, mt, e0)
    efree(P, e0)
    g_ = T("u0g", 1)
    def kv(t_, e, hooks):
        for mt in range(4): kch(P, t_, mt, e); hooks.get(mt, lambda: 0)()
        for mt in range(4):
            vch(P, t_, mt, e)
            if mt == 0: sc(P, 0, [t_]); sc(P, 1, [t_], Q1)
            hooks.get(4 + mt, lambda: 0)()
        efree(P, e)
    X = {}; R = Rem(P)
    def h2(): X[2] = eload(P, 2, ["B5"])
    def h4(): bar(["dE2"], ["B6"]); X[4] = eload(P, 4, ["B6"], fixed=e4regs)
    def h3(): X[3] = eload(P, 3, ["B6"])
    def hw():
        x = trload(WR, 0, True, ["B7", "L:w"])
        P.queue.extend(qbar(["dO"], ["B7"]) + x[:18] + [None] * 10 + x[18:])
    def h5(): X[5] = eload(P, 5, ["B1"], fixed=[RES[1] + 4 * i for i in range(4)]); R.s(1); R.soft()
    kv(1, e1, {6: h2})
    kv(2, X[2], {5: h4})
    kv(4, X[4], {0: lambda: dma_spread(P, 0, [0, 1], ["B6"], g_), 2: lambda: dma_spread(P, 0, [2, 3], ["B6"], g_), 6: h3, 7: hw})
    kv(3, X[3], {3: R.ld, 5: lambda: R.s(0), 6: h5})
    lsum(P, 0)
    e0 = eload(P, 0, ["B1"])
    for mt in range(4):
        rch(P, mt, X[5], 0)
        if mt == 1: bar([], ["L:w", "B8", "B"])
        if mt >= 2: dma_spread(P, 1, [2 * mt - 4, 2 * mt - 3], ["B8"], g_)
    for n_, mt in enumerate(MTO(1)):
        rch(P, mt, e0, 1)
        if n_ == 0: m32st(P, 0)
        if n_ in (1, 2): dma_spread(P, 2, [2 * n_ - 2, 2 * n_ - 1], ["B8"], g_)
    efree(P, e0)
    assert P.hook is None and not P.queue
    P.share()
    seen = set()
    for o in P.ops:
        for x in o.r:
            assert x in seen or not (x[0] == "a" and x[1:].isdigit() or x[0] == "B"), (x, o)
        seen.update(o.w)

def epilogue(P):
    if CFG.get("epol") is not None: P.stpol = ["", " nt", " sc1", " sc0 sc1"][CFG["epol"]]
    P.add("s_barrier", "BAR", r=["dma"], w=["B"])
    L, t, aCr, aSr, aVa, aRr, aLr = aKr, aVr, aQa, aPw, aPr, aCw, aLw
    RA = K0; VA = K0 + 32; PR = QF
    lane_id(P, L)
    P.salu(f"s_mul_i32 s{sT2}, s{sW}, {TABSZ}\ns_add_u32 s{sT2}, s{sT2}, {TAB0}", r=[f"s{sW}"], w=[f"s{sT2}"])
    lane_expr(P, aCr, L, t, [(2, 2, US), (0, 2, CST), (4, 2, 16)], sconst=sT2)
    lane_expr(P, aLr, L, t, [(2, 2, US), (0, 2, CST)], const=256, sconst=sT2)
    lane_expr(P, aVa, L, t, [(4, 2, US), (0, 4, 8)], const=VOFF, sconst=sT2)
    P.salu(f"s_lshl_b32 s{sT3}, s{sW}, 9", r=[f"s{sW}"], w=[f"s{sT3}"])
    lane_expr(P, aRr, L, t, [(0, 4, 16)], const=RR0, sconst=sT3)
    lane_expr(P, aSr, L, t, [(0, 2, 256), (2, 2, UB), (4, 2, 16)], const=96 * 256)
    mrr = lanemask(lambda l: (l >> 4) == ((l >> 2) & 3))
    def mark(n0, e):
        for o in P.ops[n0:]:
            if o.kind == "VS": o.early = e
    def rem_ld():
        for mt in range(4):
            for z in range(2): P.dsr(VA + 4 * mt + 2 * z, 2, aVa, z * 4 * US + mt * 128, ["L:Vtab"], "ctx")
        for z in range(2): P.dsr(PR + 4 * z, 2, aRr, z * 256, ["L:rr"], "ctx")
        P.mov2(PR + 2)
        P.salu(f"s_mov_b32 vcc_lo, 0x{mrr & 0xffffffff:x}\ns_mov_b32 vcc_hi, 0x{mrr >> 32:x}", w=["vcc"])
        for x in (PR, PR + 1, PR + 4, PR + 5): P.valu(f"v_cndmask_b32 {v(x)}, 0, {v(x)}, vcc", [v(x), "vcc"], [v(x)])
    def rem_final(z, r):
        c = [P.alloc() for _ in range(5)]; ls = c[4]
        for mt in range(4): P.dsr(c[mt], 4, aCr, z * 4 * US + 64 * mt, ["L:Qtab"], "ctx")
        P.dsr(ls, 4, aLr, z * 4 * US, ["L:Qtab"], "lsum"); P.dsr(PR + 6 + z, 1, aRr, z * 256 + 8, ["L:rr"], "lsum")
        P.op2("v_add_f32", ls, ls, ls + 1); P.op2("v_add_f32", ls + 2, ls + 2, ls + 3); P.op2("v_add_f32", ls, ls, PR + 6 + z); P.op2("v_add_f32", ls, ls, ls + 2)
        P.valu(f"v_rcp_f32 {v(ls + 1)}, {v(ls)}", [v(ls)], [v(ls + 1)], kind="T")
        P.valu(f"v_max3_f32 {v(CHK)}, {v(CHK)}, {v(ls)}, {v(ls + 1)}", [v(CHK), v(ls), v(ls + 1)], [v(CHK)])
        fin = []
        for mt in range(4):
            P.mfma(c[mt], ("v", VA + 4 * mt), ("v", PR + 2 * z), note="PVrr")
        for mt in range(4):
            for i in range(4):
                x = r + 4 * mt + i
                P.valu(f"v_fmac_f32 {v(x)}, {v(c[mt] + i)}, {v(ls + 1)}", [v(x), v(c[mt] + i), v(ls + 1)], [v(x)])
            if mt & 1: fin += pack_half(P, r, mt >> 1, "Drem")
        for q in c: P.release(q)
        st = (sSo, sStr)[z]
        P.salu(f"s_lshl_b32 s{st}, s{sH}, 7\ns_add_u32 s{st}, s{st}, s{sB0}\ns_add_u32 s{st}, s{st}, {z * 4 * UB}", r=[f"s{sH}", f"s{sB0}"], w=[f"s{st}"])
        stores(P, r, st, aSr, "Drem", fin)
    e0 = ESet(P, 0, ["B"], "Erem")
    sc(P, 5, [6, 0, 1, 2])
    if ORDER.split().index("l4") < ORDER.split().index("cut"): lsum(P, 4)
    n0 = len(P.ops)
    for mt in range(4):
        pv(P, 4, [mt])
        if mt < 3: sc(P, 5, [3 + mt])
    rem_ld()
    for mt in range(4): chain(P, WR, mt, e0, False, RA + 4 * mt, "Rrem")
    efree(P, e0)
    m32st(P, 5, 4, sStP)
    mark(n0, 1500)
    e1 = ESet(P, 1, ["B"], "Erem")
    n0 = len(P.ops); rem_final(0, RA); mark(n0, 700)
    lsum(P, 5)
    for mt in range(4): chain(P, WR, mt, e1, False, RA + 16 + 4 * mt, "Rrem")
    efree(P, e1)
    n0 = len(P.ops)
    pv(P, 5, range(4))
    m32st(P, None, 5, sStP)
    mark(n0, 300)
    n0 = len(P.ops); rem_final(1, RA + 16); mark(n0, 0)
    for o in P.ops:
        if o.kind == "DR" and o.note in ("lsum", "ctx"): o.urgent = True

def program():
    tag = "f"
    sched.CRIT_WIN = CFG["cw"]; sched.BACKPACK = bool(CFG["bp"]); sched.DS_LAT = CFG.get("dl", 84); sched.DS_COV = CFG.get("dc", 200); sched.DS_FINE = True; sched.NOISE[:] = [CFG["noise"], CFG["seed"]]
    old.CFG["stamps"] = CFG["stamps"]
    init = [f"s_mov_b32 s{sCnt}, {5 if CFG.get('lst') or CFG.get('sst') else 8}", f"s_mov_b32 s{sBits}, 64", f"s_mov_b32 s{sStC}, s{sB0}", f"s_mov_b32 s{sStP}, 0x7ff00000", f"s_mov_b32 s{sTog}, {2*BUFSZ}",
            f"s_mov_b32 s{sBias}, {f32(math.log2(1 + 2 ** -8.5))}", f"s_mov_b32 s{sBias+1}, 0"]
    drain = [Item(nop=8), Item(lgkm=0)]
    rep = bool(CFG.get("report"))
    def mk():
        P = Prog(); body(P); assert len(P.free) == NPOOL
        mk.shr = P.share()
        for i_, o in enumerate(P.ops): o.late = i_ >= P.cut
        for o in P.ops:
            if o.kind in ("VL", "DW"): o.pin = True
        if CFG["seam"]:
            P.seam.pin = True; P.ops[0].urgent = True; P.ops[0].early = 20000; P.ops[0].glue = 99
            for o in P.ops[1:]: o.after = list(o.after) + [P.ops[0]]
        else: [o for o in P.ops if o.kind in MK][-1 - CFG.get("cutm", 8)].pin = True
        return P.ops
    P2 = Prog(); body(P2)
    pre3 = []
    br = [Item(raw=f"s_cmp_lg_u32 s{sCnt}, 0"), Item(raw=f"s_cbranch_scc1 L_loop{tag}")]
    i2, left, t2, e2 = schedule_loop(alloc_loop(mk, POOL), report=rep)
    k_ = max(it.op.it for it in i2 if it.op is not None)
    if CFG["seam"] == 2:
        assert i2[-1].op.kind == "VS" and i2[-2].op.kind == "VS"
        assert i2[0].op.marker if CFG["sync"] else (i2[0].vm is not None and i2[0].lgkm is None and i2[1].op.kind == "BAR")
        s2 = i2.pop(); s2.op.it = k_ - 1; wt = i2.pop(0); i2.insert(0, s2)
        c = copy.copy(s2.op); Op._n += 1; c.id = Op._n; c.after = []; pre3 = [Item(op=c)]
        m = max(n for n, it in enumerate(i2) if it.op is not None and it.op.kind == "M32")
        assert m == len(i2) - 2
        i2.insert(m + 1, br.pop(0))
        n = m - CFG.get("wb", 12)
        while not (i2[n].op is not None and i2[n].op.kind == "M16" and i2[n + 1].op is not None and i2[n + 1].op.kind != "S"): n -= 1
        if not CFG["sync"]: i2.insert(n + 1, Item(vm=wt.vm - 2))
    i2 = fix_items(i2 + br, i2)
    cur = [(n, it.op) for n, it in enumerate(i2) if it.op is not None and it.op.it == k_]
    X = max(n for n, o in cur if not o.late) + 1
    assert all(it.op is None or it.op.it == k_ for it in i2[X:])
    e4regs = [None] * 4
    for n, o in cur:
        tg = getattr(o, "tag", None)
        if tg and tg[0] == "e4": e4regs[tg[1]] = int(o.w[0][1:])
    rest = [q for q in POOL if q not in e4regs]
    head = []
    for n, o in cur:
        if n < X and o.late:
            c = copy.copy(o); Op._n += 1; c.id = Op._n; c.after = []; c.early = None; c.r = c.r + ["B"]; head.append(c)
    if CFG["u0"] == 2:
        P1 = Prog(); P1.free = collections.deque([0] * len(rest)); unit0b(P1, e4regs)
        ia, _, _ = schedule2(P1.ops, strict_m=True, pool=rest)
    else:
        P1 = Prog(); P1.free = collections.deque([0] * (len(rest) - 1)); unit0(P1, e4regs, rest[-1])
        ia, _, _ = schedule2(P1.ops, strict_m=True, pool=rest[:-1])
    i1, t1, e1 = schedule2(bind([it.op for it in ia if it.op is not None], schedule2.vmap) + head, strict_m=True, report=rep)
    i1 = i1 + drain + [Item(raw=f"s_branch L_entry{tag}")]
    print("   entry at window item", X, "of", len(i2), "model t", i2[X].op.issue if i2[X].op else None, "head ops", len(head), file=sys.stderr)
    print("   shared turns / chains:", mk.shr, file=sys.stderr)
    P3 = Prog(); epilogue(P3); P3.share()
    busy = {int(x[1:]) // 4 * 4 for o in left for x in o.r + o.w + o.c if x[0] == "v" and x[1:].isdigit()}
    pool3 = [q for q in POOL if q not in busy] + [q for q in POOL if q in busy]
    ia, _, _ = schedule2(P3.ops, strict_m=True, pool=POOL)
    vm_ = {k: pool3[POOL.index(p_)] for k, p_ in schedule2.vmap.items()}
    i3, t3, e3 = schedule2(left + bind([it.op for it in ia if it.op is not None], vm_), strict_m=True, report=rep); i3 = fix_items(i2 + br, pre3 + old.stamp_q() + i3)
    kinds = collections.Counter(o.kind for o in P2.ops)
    print(f"[{tag}] model: prologue {t1} (mfma {e1})  loop {t2} (mfma {e2})  epilogue {t3} (mfma {e3})  {dict(kinds)}", file=sys.stderr)
    bad = verify(i1 + i2[X:] + br + i2 + br + i3)
    i2 = i2[:X] + [Item(raw=f'L_entry{tag}:')] + old.stamp_q() + i2[X:]
    print("verify problems:", bad, file=sys.stderr)
    def filt(items):
        r = []
        for it in items:
            if it.op is not None:
                if CFG["nostore"] and it.op.kind == "VS": it = Item(nop=1)
                elif CFG["nodma"] and it.op.kind == "VL": it = Item(nop=1)
            r.append(it)
        return r
    an = CFG["annotate"]
    if CFG.get("lst"):
        r = []; nm = 0; mt_ = []
        for it in i2:
            r.append(it)
            if it.op is not None and it.op.kind in MK:
                k, rem_ = divmod(nm - CFG.get("lst0", 0), CFG["lst"])
                if rem_ == 0 and k == 14: r.append(Item(raw="s_mov_b32 s90, s88"))
                if rem_ == 0 and 0 <= k < 15:
                    r.append(Item(raw=f"s_memtime s[{60+2*k}:{61+2*k}]")); mt_.append((it.op.issue, it.op.note))
                nm += 1
        i2 = r
        print("model stamps:", [x[0] - mt_[0][0] for x in mt_], [x[1] for x in mt_], file=sys.stderr)
    if CFG.get("sst"):
        T = lambda k: Item(raw=f"s_memtime s[{60+2*k}:{61+2*k}]")
        ms = [n for n, it in enumerate(i2) if it.op is not None and it.op.kind in MK]
        ins = {ms[-4]: T(20 - 8), ms[-2]: T(21 - 8), len(i2) - 1: T(22 - 8), 0: T(4), 1: T(5), ms[0]: T(6), ms[1]: T(7), ms[2]: T(8), ms[4]: T(9), ms[8]: T(10), ms[12]: T(11)}
        r = [T(3)]
        for n, it in enumerate(i2):
            r.append(it)
            if n in ins: r.append(ins[n])
            if n == ms[200]: r += [Item(raw=f"s_mov_b32 s{60+2*k}, s{84+2*k}") for k in range(3)]
        i2 = r
    if CFG.get("pst"):
        nb = [n for n, it in enumerate(i1) if it.op is not None and it.op.kind == "BAR"]
        if CFG["pst"] == 1:
            marks = []
            for b_ in nb:
                x = b_
                while i1[x - 1].op is None: x -= 1
                marks += [x, b_ + 1]
            marks = marks[:14] + [len(i1) - 1]
        else:
            ms = [n + 1 for n, it in enumerate(i1) if it.op is not None and it.op.kind in MK]
            marks = ms[CFG.get("pst0", 0)::CFG["pst"]][:15]
        print("pst model:", [(i1[n].op or i1[n - 1].op or i1[n - 2].op).issue for n in marks[:-1]], file=sys.stderr)
        r = []
        for n, it in enumerate(i1):
            if n in marks:
                k = marks.index(n) + 1; r.append(Item(raw=f"s_memtime s[{60+2*k}:{61+2*k}]"))
            r.append(it)
        i1 = r
    nvm = [n for n, it in enumerate(i1) if it.op is not None and it.op.kind in ("VL", "VG")][11] + 1 if CFG["u0"] == 2 else 0
    i1 = i1[:nvm] + [Item(raw=x) for x in program.pre2 + init] + i1[nvm:]
    out = []
    for it in i1: out += it.lines(an)
    if CFG["sync"]:
        rd, cp = [[it.op.text for it in i2 if it.op is not None and it.op.note == "chk" and it.op.kind == k][0] for k in ("DR", "V")]
        out += ["L_spin:", rd, "s_waitcnt lgkmcnt(0)", cp, "s_nop 1", "s_cbranch_vccnz L_spin", "s_branch L_back"]
    out += [".p2align 6", f"L_loop{tag}:"]
    for it in filt(i2) + br + filt(i3): out += it.lines(an)
    return out

def main():
    out = []
    for l in open("/code/" + NAME + ".s.ref").read().split("\n"):
        if l.startswith("; @launch"): break
        if l.startswith(";"): out.append(l)
    out.append(f"; @launch grid=(256,1,1) block=(256,1,1) lds={LDS_TOTAL}")
    out += """; GENERATED by gen/gen6.py (own generator + list scheduler gen/sched.py) - do not edit by hand
; One workgroup (4 waves, 512 registers each) per CU; wave = (batch stream p, head h); 8 batches per stream.
; Weights of the head live in the 256 AGPRs as 16x16x32 MFMA fragments (Wq pre-multiplied by 0.125*log2(e)).
; e is streamed through an LDS double buffer (LDS-DMA); K^T,Q^T,V -> S^T -> P -> ctx^T chain stays in registers.
; Rows 96..99 of the 8 batches are projected together (two packed 16-row tiles, tables in LDS); every product with
; those 4 rows and the softmax row sums use the sparse MFMA (two output rows per dot product, one half each).
; Softmax guard: the fast path evaluates exp2(s) without a shift and tracks max(l, 1/l) of EVERY row sum l.
; If any row sum of the workgroup leaves [2^-40, 2^40] (so a shift could matter), the workgroup recomputes all
; of its batches in the second copy of the program (after L_fast_end), which subtracts the true row maximum.""".split("\n")
    out += ['.amdgcn_target "amdgcn-amd-amdhsa--gfx950"', ".text", f".globl {NAME}_kernel", ".p2align 8", f".type {NAME}_kernel,@function", f"{NAME}_kernel:"]
    if CFG["stamps"]: out += ["s_memtime s[60:61]", "s_memrealtime s[62:63]"]
    if CFG.get("pst"): out += ["s_memtime s[60:61]"]
    out += ["s_cmp_ge_u32 s2, 256", "s_cbranch_scc1 L_end"]
    if CFG["u0"] == 2: out += [f"s_load_dwordx2 s[{r_}:{r_+1}], s[0:1], {o_}" for r_, o_ in ((sWQ, 8), (sE, 0), (sWK, 16), (sWV, 24), (sWR, 32), (sO, 40))]
    else: out += ["s_load_dwordx8 s[4:11], s[0:1], 0", "s_load_dwordx4 s[12:15], s[0:1], 32"]
    if CFG["pf"] == 1:
        out += ["s_getpc_b64 s[58:59]", "L_pc:", "v_lshlrev_b32 v2, 7, v0", "v_min_u32 v2, L_fast_end-L_pc-4, v2", f"global_load_dword v{QF}, v2, s[58:59]"]
    elif CFG["pf"] == 2:
        out += ["s_getpc_b64 s[58:59]", "L_pc:", "s_lshl_b32 s3, s2, 9", "s_and_b32 s3, s3, 0x7000", "v_lshrrev_b32 v2, 3, v0", "v_lshl_add_u32 v2, v2, 7, s3",
                "v_min_u32 v2, L_fast_end-L_pc-4, v2", f"global_load_dword v{QF}, v2, s[58:59]"]
    elif CFG["pf"] == 3:
        out += ["s_getpc_b64 s[58:59]", "L_pc:", "s_lshl_b32 s3, s2, 7", "s_and_b32 s3, s3, 0x7c00", "v_lshrrev_b32 v2, 5, v0", "v_lshl_add_u32 v2, v2, 7, s3",
                "v_min_u32 v2, L_fast_end-L_pc-4, v2", f"global_load_dword v{QF}, v2, s[58:59]"]
    elif CFG["pf"] == 4:
        out += ["s_getpc_b64 s[58:59]", "L_pc:", "s_lshl_b32 s3, s2, 8", "s_and_b32 s3, s3, 0x7800", "v_lshrrev_b32 v2, 4, v0", "v_lshl_add_u32 v2, v2, 7, s3",
                "v_min_u32 v2, L_fast_end-L_pc-4, v2", f"global_load_dword v{QF}, v2, s[58:59]"]
    pre = f"""
v_lshrrev_b32 v1, 6, v0
s_mov_b32 s{sE+3}, 0x20000
v_readfirstlane_b32 s{sW}, v1
s_mov_b32 s{sE+2}, {NB * BBATCH}
s_mov_b32 s{sWQ+2}, 32768
s_mov_b32 s{sWQ+3}, s{sE+3}
s_lshr_b32 s{sP}, s{sW}, 1
s_and_b32 s{sH}, s{sW}, 1
s_lshl1_add_u32 s{sB0}, s2, s{sP}
s_mul_i32 s{sB0}, s{sB0}, {BBATCH}
"""
    pre2 = f"""
s_mov_b32 s{sC}, {f32(0.125 * math.log2(math.e))}
s_mov_b32 s{sO+2}, s{sE+2}
s_mov_b32 s{sO+3}, s{sE+3}
s_mov_b32 s{sWK+2}, s{sWQ+2}
s_mov_b32 s{sWK+3}, s{sE+3}
s_mov_b32 s{sWV+2}, s{sWQ+2}
s_mov_b32 s{sWV+3}, s{sE+3}
s_mov_b32 s{sWR+2}, s{sWQ+2}
s_mov_b32 s{sWR+3}, s{sE+3}
"""
    out += [l for l in pre.split("\n") if l]
    program.pre2 = [l for l in pre2.split("\n") if l]
    out += program()
    if CFG["stamps"]:
        for it in [Item(vm=0)] + old.stamp_q() + old.stamp_dump(): out += it.lines()
    if CFG.get("lst") or CFG.get("sst") or CFG.get("pst"):
        out += ["s_load_dwordx2 s[92:93], s[0:1], 56", "s_waitcnt lgkmcnt(0)", "s_mov_b32 s94, 0x100000", "s_mov_b32 s95, 0x20000",
                "s_lshl_b32 s3, s2, 2", f"s_add_u32 s3, s3, s{sW}", "s_lshl_b32 s3, s3, 8", "v_mov_b32 v2, 0", "s_mov_b64 exec, 1"]
        for n in range(16):
            out += [f"v_mov_b32 v{4+2*n}, s{60+2*n}", f"v_mov_b32 v{5+2*n}, s{60+2*n}", f"buffer_store_dwordx2 v[{4+2*n}:{5+2*n}], v2, s[92:95], s3 offen offset:{8*n}"]
        out += ["s_mov_b64 exec, -1"]
    if CFG["fallback"]:
        out += [f"v_mov_b32 v1, {f32(2.0 ** CFG['thr'])}", f"v_cmp_nle_f32 vcc, {v(CHK)}, v1", f"s_lshl_b32 s{sT0}, s{sW}, 2", f"s_add_u32 s{sT0}, s{sT0}, {FLAG}",
                "s_or_b32 s3, vcc_lo, vcc_hi", f"v_mov_b32 v2, s{sT0}", "v_mov_b32 v3, s3", "ds_write_b32 v2, v3", f"v_mov_b32 v2, {FLAG}", "s_waitcnt lgkmcnt(0)", "s_barrier",
                "ds_read_b128 v[4:7], v2", "s_waitcnt lgkmcnt(0)", "v_or_b32 v4, v4, v5", "v_or3_b32 v4, v4, v6, v7", "s_nop 0", "v_readfirstlane_b32 s3, v4", "s_nop 3",
                "s_cmp_eq_u32 s3, 0", "s_cbranch_scc1 L_end", "L_fast_end:", "s_waitcnt vmcnt(0)", "s_barrier"]
        old.CFG["stamps"] = 0
        sched.CRIT_WIN = old.CFG["cw"]; sched.BACKPACK = bool(old.CFG["bp"]); sched.DS_LAT = 84; sched.DS_COV = 0; sched.DS_FINE = False; sched.NOISE[:] = [old.CFG["noise"], old.CFG["seed"]]
        out += old.program(True, "s")
    else:
        out += ["L_fast_end:"]
    out += ["L_end:", "s_endpgm", '.section .rodata,"a"', ".p2align 6", f".amdhsa_kernel {NAME}_kernel",
            "  .amdhsa_next_free_vgpr 512", "  .amdhsa_next_free_sgpr 102", "  .amdhsa_accum_offset 256", "  .amdhsa_group_segment_fixed_size 0",
            "  .amdhsa_kernarg_size 64", "  .amdhsa_user_sgpr_count 2", "  .amdhsa_user_sgpr_kernarg_segment_ptr 1", "  .amdhsa_system_sgpr_workgroup_id_x 1",
            ".end_amdhsa_kernel"]
    open(sys.argv[1], "w").write("\n".join(out) + "\n")

if __name__ == "__main__":
    main()
```

```python
import os, sys, math, struct, collections, copy, itertools
ARGV = sys.argv[:]; sys.argv = sys.argv[:2]
import gen5 as old
sys.argv = ARGV
import sched
from sched import Op, Item, schedule2, schedule_loop, alloc_loop, fix_items, verify, bind
from gen5 import v, a, vs, as_, srd, f32, lane_expr, lane_id, select, SRDTXT
from gen5 import sE, sO, sWQ, sWK, sWV, sWR, sC, sW, sP, sH, sB0, sCnt, sStC, sStP, sSo, sLn, sEn, sStr, sT0, sT1, sT2, sT3, sTog, sM, sBits, sRb, sRd
from gen5 import BBATCH, NB, UB, BLK, RG, TILE, BUFSZ, KSTEP, WQ, WK, WV, WR, FT, NAME

CFG = dict(lsp=145, tE1=5700, tE2=6100, u0s=8, lp=2, lpk=2, lp2=1, eh=8, cw=20, bp=0, noise=10, seed=1, annotate=0, stamps=0, nostore=0, nodma=0, ldnt=1, stpol=1,
           fallback=1, pf=4, tw=1, thr=40, ga=3, gb=3, mq=2, mk=3, m0=3, seam=2, sync=1, u0=2, d0=12, dgap=20, dm=0)
for a_ in sys.argv[2:]:
    k_, v_ = a_.split("="); CFG[k_] = int(v_)
STPOL = ["", " nt", " sc1", " sc0 sc1", " sc0 nt", " sc1 nt", " sc0 sc1 nt"][CFG["stpol"]]; LDPOL = ["", " nt", " sc1 nt", " sc0 sc1 nt", " sc1", " sc0 nt"][CFG["ldnt"]]
TAB0 = 4 * BUFSZ; US = 1600; TABSZ = 8 * US; ZOFF = 1072; VOFF = 1088; CST = 272
SCR0 = TAB0 + 4 * TABSZ; SCRSZ = 4 * CST
RR0 = SCR0 + 4 * SCRSZ
FLAG = RR0 + 4 * 512; DUMP = FLAG + 16
LDS_TOTAL = 163840
assert DUMP + 512 <= LDS_TOTAL and TAB0 % 128 == 0 and TABSZ % 64 == 0 and SCR0 % 16 == 0
WST = 2 * BUFSZ
K0 = 0; V0 = 48; KRS = 96; VR = 100; QF = 104; PBUF = (112, 128); RES = (144, 160); OBLK = 176; ONES = 192; POOL0 = 196; NPOOL = 11
aE, aDMA, aST, aKr, aVr, aQa, aPw, aPr, aCw, aLw, IDX, SEL0, SEL1, INV, CHK, aFl = range(240, 256)
sBias = 96; sD = 98
POOL = [POOL0 + 4 * i for i in range(NPOOL)]
MK = ("M16", "SM", "M32")

class Prog:
    def __init__(self):
        self.ops = []; self.free = collections.deque(POOL); self.lastm = None; self.nm = 0; self.hook = None; self.fin = {}; self.queue = collections.deque()
    vq = 1000
    stpol = STPOL
    def alloc(self):
        self.free.popleft(); Prog.vq += 4; return Prog.vq
    def release(self, q): self.free.append(0)
    def add(self, *o, **k):
        op = Op(*o, **k); self.ops.append(op); return op
    def _m(self, op):
        self.lastm = op; self.nm += 1
        if self.hook: self.hook(self)
        elif self.queue:
            f = self.queue.popleft()
            if f:
                o = f(); o.after = [op] + list(o.after); o.glue = 1; o.soft = True; o.urgent = False
        return op
    def mfma(self, d, A, B, first=False, note=""):
        def t(x): return (v if x[0] == "v" else a)(x[1], 4)
        def r(x): return (vs if x[0] == "v" else as_)(x[1], 4)
        ct, c = ("0", []) if first else (v(d, 4), vs(d, 4))
        op = self.add(f"v_mfma_f32_16x16x32_bf16 {v(d, 4)}, {t(A)}, {t(B)}, {ct}", "M16", r=r(A) + r(B), w=vs(d, 4), c=c, note=note)
        op.mf = (d, A, B, ct)
        return self._m(op)
    def smf(self, d, A, B, abid=0, note=""):
        op = self.add(f"v_smfmac_f32_16x16x64_bf16 {v(d, 4)}, {v(A, 4)}, {v(B, 8)}, {v(IDX)}" + (" abid:1" if abid else ""), "SM", r=vs(A, 4) + vs(B, 8) + [v(IDX)], w=vs(d, 4), c=vs(d, 4), note=note)
        op.mf = (d, ("v", A), ("v", B), "x")
        return self._m(op)
    def m32(self, d, A, B, note=""):
        op = self.add(f"v_mfma_f32_32x32x16_bf16 {v(d, 16)}, {v(A, 4)}, {v(B, 4)}, 0", "M32", r=vs(A, 4) + vs(B, 4), w=vs(d, 16), note=note)
        op.mf = (d, ("v", A), ("v", B), "x")
        return self._m(op)
    def share(self):
        chains = []
        for o in self.ops:
            if o.kind not in MK: continue
            if o.kind == "M16" and chains and chains[-1][-1].kind == "M16" and chains[-1][-1].mf[0] == o.mf[0] and o.mf[3] != "0": chains[-1].append(o)
            else: chains.append([o])
        def opts(c):
            st = [(o.mf[1], o.mf[2]) for o in c]
            if len(st) == 1: return [(0, 0, st)]
            return [(i, j, [st[i]] + [x for k, x in enumerate(st) if k not in (i, j)] + [st[j]]) for i, j in itertools.permutations(range(len(st)), 2)]
        def gain(x, y): return int(x[0] == y[0]) + int(x[1] == y[1])
        allo = [opts(c) for c in chains]
        best = [[0.0 - 1e-3 * (i != 0) for (i, j, q) in allo[0]]]; back = [[None] * len(allo[0])]
        for n in range(1, len(chains)):
            b = []; k_ = []
            for (i, j, q) in allo[n]:
                sc = [best[-1][m] + gain(pq[-1], q[0]) for m, (_, _, pq) in enumerate(allo[n - 1])]
                m = max(range(len(sc)), key=lambda m: sc[m]); b.append(sc[m] - 1e-3 * (i != 0) - 1e-3 * (j != len(q) - 1)); k_.append(m)
            best.append(b); back.append(k_)
        m = max(range(len(best[-1])), key=lambda m: best[-1][m]); tot = best[-1][m]
        for n in range(len(chains) - 1, -1, -1):
            for o, (A, B) in zip(chains[n], allo[n][m][2]):
                if o.kind != "M16": continue
                d, _, _, ct = o.mf
                t = lambda x: (v if x[0] == "v" else a)(x[1], 4)
                r = lambda x: (vs if x[0] == "v" else as_)(x[1], 4)
                o.text = f"v_mfma_f32_16x16x32_bf16 {v(d, 4)}, {t(A)}, {t(B)}, {ct}"; o.r = r(A) + r(B); o.mf = (d, A, B, ct)
            m = back[n][m]
        return round(tot), len(chains)
    def dsr(self, dst, n, addr, off, pseudo=(), note="", ins=None):
        ins = ins or {4: "ds_read_b128", 2: "ds_read_b64", 1: "ds_read_b32"}[n]
        assert 0 <= off < 65536
        return self.add(f"{ins} {v(dst, n)}, {v(addr)} offset:{off}", "DR", r=[v(addr)] + list(pseudo), w=vs(dst, n), note=note)
    def dsw(self, addr, src, n, off, pw=(), pr=(), note="", ins=None):
        ins = ins or {4: "ds_write_b128", 2: "ds_write_b64", 1: "ds_write_b32"}[n]
        assert 0 <= off < 65536
        return self.add(f"{ins} {v(addr)}, {v(src, n)} offset:{off}", "DW", r=[v(addr)] + vs(src, n) + list(pr), w=list(pw), note=note, cost={4: 28, 2: 12, 1: 8}[n])
    def valu(self, text, r, w, kind="V", **k): return self.add(text, kind, r=r, w=w, **k)
    def op2(self, ins, d, x, y, note="", kind="V"):
        return self.valu(f"{ins} {v(d)}, {v(x)}, {v(y)}", [v(x), v(y)], [v(d)], kind=kind, note=note)
    def cvt(self, d, x, y, note=""): return self.op2("v_cvt_pk_bf16_f32", d, x, y, note)
    def exp(self, x, note=""): return self.valu(f"v_exp_f32 {v(x)}, {v(x)}", [v(x)], [v(x)], kind="T", note=note)
    def mov(self, d, val, note=""): return self.valu(f"v_mov_b32 {v(d)}, {val}", [], [v(d)], note=note)
    def mov2(self, d, val="0", note=""):
        o = self.valu(f"v_mov_b64 {v(d, 2)}, {val}", [], vs(d, 2), note=note); self.hold(o, CFG.get("zh", 6)); return o
    def hold(self, o, k):
        ms = [x for x in self.ops if x.kind in MK]
        if len(ms) > k: o.after = list(o.after) + [ms[-1 - k]]
    def salu(self, text, r=(), w=(), **k): return self.add(text, "S", r=list(r), w=list(w), **k)

class ESet:
    def __init__(self, P, t, pseudo, note, fixed=None, tag=None):
        self.fixed = fixed; self.fr = []
        for ks in range(4):
            q = P.alloc() if fixed is None else fixed[ks]
            o = P.dsr(q, 4, aE, t * TILE + ks * KSTEP, pseudo, note); self.fr.append(q)
            o.tag = (tag, ks); P.hold(o, CFG["eh"])
    def __getitem__(self, ks): return self.fr[ks]
def eload(P, t, pseudo, note="e", fixed=None, tag=None): return ESet(P, t, pseudo, note, fixed, tag)
def efree(P, e):
    if e.fixed is None:
        for q in e.fr: P.release(q)

def chain(P, W, mt, fr, e_is_A, d, note):
    for n_, ks in enumerate([3, 2, 1, 0] if mt & 1 else [0, 1, 2, 3]):
        w = ("a", W + (mt * 4 + ks) * 4)
        A, B = (("v", fr[ks]), w) if e_is_A else (w, ("v", fr[ks]))
        P.mfma(d, A, B, first=(n_ == 0), note=note)
def pchain(P, W, mt, fr, e_is_A, dst, note, dst1=None):
    d = P.alloc(); chain(P, W, mt, fr, e_is_A, d, note)
    P.cvt(dst, d, d + 1, note + "c"); P.cvt(dst + 1 if dst1 is None else dst1, d + 2, d + 3, note + "c"); P.release(d)
def kch(P, t, mt, fr): pchain(P, WK, mt, fr, False, K0 + 8 * t + 2 * mt, f"K{t}")
def qch(P, mt, fr, tau, qf=QF): pchain(P, WQ, mt, fr, False, qf + 2 * mt, f"Q{tau}")
def vch(P, t, mt, fr): pchain(P, WV, mt, fr, True, V0 + 16 * (t >> 1) + 4 * mt + 2 * (t & 1), f"V{t}")
def rch(P, mt, fr, tau): chain(P, WR, mt, fr, False, RES[tau & 1] + 4 * mt, f"R{tau}")
def MTO(k): return [3, 2, 1, 0] if k & 1 else [0, 1, 2, 3]

def sc(P, tau, gs, QF=QF):
    pb = PBUF[tau & 1]; n = f"X{tau}"
    for g in gs:
        d = P.alloc()
        if g < 6:
            for ks in range(2): P.mfma(d, ("v", K0 + 8 * g + 4 * ks), ("v", QF + 4 * ks), first=(ks == 0), note=f"S{tau}")
            for i in range(4): P.exp(d + i, n)
            dst = pb + 4 * (g >> 1) + 2 * (g & 1)
            P.cvt(dst, d, d + 1, n); P.cvt(dst + 1, d + 2, d + 3, n)
        else:
            for i in (0, 2): P.mov2(d + i, f"s[{sBias}:{sBias+1}]", n)
            P.smf(d, KRS, QF, note=f"S{tau}")
            for i in (0, 2): P.op2("v_add_f32", d + i, d + i, d + i + 1, n); P.exp(d + i, n)
            for i, sel in enumerate((SEL0, SEL1)):
                P.valu(f"v_perm_b32 {v(pb + 12 + i)}, {v(d + 2)}, {v(d)}, {v(sel)}", [v(d), v(d + 2), v(sel)], [v(pb + 12 + i)], note=n)
        P.release(d)
def lsum(P, tau):
    pb = PBUF[tau & 1]; n = f"L{tau}"
    d = P.alloc(); P.mov2(d, "0", n)
    P.smf(d, ONES, pb, note=n); P.smf(d, ONES, pb + 8, abid=1, note=n)
    P.op2("v_add_f32", d, d, d + 1, n)
    P.valu(f"v_rcp_f32 {v(INV)}, {v(d)}", [v(d)], [v(INV)], kind="T", note=n, early=CFG.get("fe", 100))
    P.valu(f"v_max3_f32 {v(CHK)}, {v(CHK)}, {v(d)}, {v(INV)}", [v(CHK), v(d), v(INV)], [v(CHK)], note=n)
    P.release(d)

def pack_half(P, r, half, note):
    b = r + 8 * half
    for k in range(4): P.cvt(b + k, b + 2 * k, b + 2 * k + 1, note)
    return [P.valu(f"v_pk_max_i16 {v(b+k)}, {v(b+k)}, 0", [v(b + k)], [v(b + k)], note=note) for k in range(4)]
def stores(P, r, sreg, vaddr, note, after=()):
    o = None
    for half in range(2):
        b = r + 8 * half
        o = P.add(f"buffer_store_dwordx4 {v(b, 4)}, {v(vaddr)}, {srd(sO)}, s{sreg} offen offset:{half * 64}{P.stpol}", "VS", r=vs(b, 4) + [v(vaddr), f"s{sreg}"], note=note, cost=(24, 4)[half],
                  after=list(after) if o is None else [o])
        o.urgent = True
        if half or (len(after) == 1 and after[0].kind == "M32"): o.glue = 1
    return o
def pv(P, tau, mts):
    pb = PBUF[tau & 1]; r = RES[tau & 1]
    for mt in mts:
        d = OBLK + 4 * mt
        for kp in range(3): P.mfma(d, ("v", V0 + 16 * kp + 4 * mt), ("v", pb + 4 * kp), note=f"PV{tau}")
        for i in range(4):
            x = r + 4 * mt + i
            P.valu(f"v_fmac_f32 {v(x)}, {v(d+i)}, {v(INV)}", [v(x), v(d + i), v(INV)], [v(x)], note=f"D{tau}")
        if mt & 1: P.fin.setdefault(tau, []).extend(pack_half(P, r, mt >> 1, f"D{tau}"))
def m32st(P, tau, prev=None, sbase=None, pre=None):
    o = None
    if prev is not None:
        st = (sT0, sT1)[prev & 1]
        s_ = P.salu(f"s_add_u32 s{st}, s{sbase}, {FT[prev] * 4096}", r=[f"s{sbase}"], w=[f"s{st}"])
    aft = P.fin.pop(prev) + [s_] if prev is not None else []
    if pre: aft += pre(P)
    if tau is not None:
        hk = P.hook; P.hook = None
        o = P.m32(OBLK, VR, PBUF[tau & 1] + 12, note=f"PV{tau}"); o.after = list(aft); aft = [o]
        P.hook = hk
    if prev is not None: o = stores(P, RES[prev & 1], st, aST, f"D{prev}", aft)
    return o

class Rem:
    def __init__(self, P): self.P = P
    def ld(self):
        P = self.P; self.a = P.alloc(); P.hold(P.dsr(self.a, 4, aQa, 0, ["L:Qtab"], "Srem"), 8)
    def s(self, par):
        P = self.P
        if par == 0:
            for t in range(6): P.mov2(OBLK + 2 * t, "0", "Xrem")
        for t in range(par, 6, 2): P.smf(OBLK + 2 * t, self.a, K0 + 8 * t, note="Srem")
        if par: P.release(self.a)
    def soft(self):
        P = self.P; n = "Xrem"; l = OBLK + 12
        for t in range(6):
            x = OBLK + 2 * t; P.op2("v_add_f32", x, x, x + 1, n); P.exp(x, n)
        P.op2("v_add_f32", l, OBLK, OBLK + 2, n)
        for t in range(2, 6): P.op2("v_add_f32", l, l, OBLK + 2 * t, n)
        for rot in (8, 4):
            P.valu(f"v_add_f32_dpp {v(l)}, {v(l)}, {v(l)} row_ror:{rot} row_mask:0xf bank_mask:0xf", [v(l)], [v(l)], kind="DPP", note=n)
        P.dsw(aLw, l, 1, 0, pw=["L:Qtab", "L:Ktab"], note=n)
        for kp in range(3):
            x = OBLK + 4 * kp; P.cvt(x + 1, x, x + 2, n)
            P.dsw(aPw, x + 1, 1, kp * CST, pw=["L:Ps"], note=n, ins="ds_write_b16")
            P.dsw(aPw, x + 1, 1, kp * CST + 4, pw=["L:Ps"], note=n, ins="ds_write_b16_d16_hi")
    def ldp(self):
        P = self.P; self.b = [P.alloc() for _ in range(3)]
        for kp in range(3): P.hold(P.dsr(self.b[kp], 4, aPr, kp * CST, ["L:Ps"], "PVrem"), 4)
    def pv(self):
        P = self.P; n = "PVrem"
        for s_ in range(2):
            d = P.alloc()
            for i in (0, 2): P.mov2(d + i, "0", n)
            for kp in ((0, 1, 2), (2, 1, 0))[s_]: P.smf(d, self.b[kp], V0 + 16 * kp + 8 * s_, note=n)
            for i in (0, 2): P.op2("v_add_f32", d + i, d + i, d + i + 1, n)
            P.add(f"ds_write2_b32 {v(aCw)}, {v(d)}, {v(d + 2)} offset0:{32 * s_} offset1:{32 * s_ + 16}", "DW", r=[v(aCw), v(d), v(d + 2)], w=["L:Qtab", "L:Ktab"], note=n, cost=12)
            P.release(d)
        for q in self.b: P.release(q)

def dma_setup(P, i, pr):
    o = [P.salu(f"s_add_u32 m0, s{sLn}, {2 * i * TILE}", r=[f"s{sLn}"] + pr, w=["m0"])]
    if i == 0: o.append(P.salu(f"s_mov_b32 s{sD}, s{sEn}", r=[f"s{sEn}"] + pr, w=[f"s{sD}"]))
    else: o.append(P.salu(f"s_add_u32 s{sD}, s{sD}, s{sSo}", r=[f"s{sD}", f"s{sSo}"] + pr, w=[f"s{sD}"]))
    for k in range(1, 4): o.append(P.salu(f"s_add_u32 s{sD+k}, s{sD+k-1}, s{sStr}", r=[f"s{sD+k-1}", f"s{sStr}"] + pr, w=[f"s{sD+k}"]))
    for x in o: x.early = 20000
    return o
def dma(P, k, pr, after, cost):
    o = P.add(f"buffer_load_dwordx4 {v(aDMA)}, {srd(sE)}, s{sD+k} offen offset:{k * BLK}{LDPOL} lds", "VL", r=[v(aDMA), "m0", f"s{sD+k}"] + pr, w=["dma"], note="dma", after=after, cost=cost)
    o.early = 20000; o.urgent = True; o.glue = 1
    return o
def dma_spread(P, i, ks, pr, gap=1):
    ks = list(ks)
    if ks[0] == 0:
        su = dma_setup(P, i, pr); del P.ops[-5:]; n_ = P.ops.index(P.lastm); P.ops[n_:n_] = su; P.lastm.after = list(P.lastm.after) + su
    n0 = P.nm
    def hook(P_):
        if (P_.nm - n0) % gap == 0:
            dma(P_, ks.pop(0), pr, [P_.lastm], 8)
            if not ks: P_.hook = None
    assert P.hook is None
    P.hook = hook; hook(P)

def remops(P):
    P.dsr(KRS, 4, aKr, 0, ["L:Ktab"], "KR")
    P.add(f"ds_read2_b32 {v(VR, 2)}, {v(aVr)} offset0:0 offset1:8", "DR", r=[v(aVr), "L:Vtab"], w=vs(VR, 2), note="VR")

def signal(P):
    q = P.alloc()
    P.hold(P.valu(f"v_mov_b32 {v(q)}, s{sCnt}", [f"s{sCnt}"], [v(q)], note="sig"), 2)
    P.dsw(aPw, q, 1, 3 * CST, pw=["Bs"], pr=["dma"], note="sig", ins="ds_write_b16").early = 500
    P.release(q)
def check(P):
    q = P.alloc()
    o = P.dsr(q, 1, aFl, 0, ["Bs"], "chk", ins="ds_read_u16"); o.delay = CFG.get("cd", 120); o.urgent = True
    P.valu(f"v_cmp_lt_u32 vcc, s{sCnt}, {v(q)}", [f"s{sCnt}", v(q)], ["vcc"], note="chk").urgent = True
    o = P.add("s_cbranch_vccnz L_spin\nL_back:", "S", r=["vcc", v(q), f"s{sCnt}"], w=["B"], note="chk", cost=4); o.ninst = 1
    P.release(q)

def run(P, order, pseudo=lambda t, n: ["B", "Bs"], fixed={}):
    toks = order.split(); E = {}; R = Rem(P); lastW = None; dirn = {}; late = False
    def tile(w): return int(w[1]) if w[0] in "KV" else FT[int(w[1])]
    for n, w in enumerate(toks):
        h, _, arg = w.partition(":")
        if w[0] in "KVQR":
            t = tile(w)
            if h not in dirn:
                dirn[h] = (1 - dirn[lastW]) if lastW and lastW[0] == h[0] else 0
            lastW = h
            for c in (arg or "0123"):
                mt = MTO(dirn[h])[int(c)]
                if h[0] == "K": kch(P, t, mt, E[t])
                elif h[0] == "V": vch(P, t, mt, E[t])
                elif h[0] == "Q": qch(P, mt, E[t], int(h[1]))
                else: rch(P, mt, E[t], int(h[1]))
            used = False
            for x in toks[n + 1:]:
                if x == f"e{t}": break
                if x[0] in "KVQR" and tile(x) == t: used = True
            if not used: efree(P, E.pop(t))
        elif w[0] == "e":
            t = int(w[1]); k = toks[:n].count(w)
            nxt = toks.index("cut") if "cut" in toks else -1
            across = n < nxt and w not in toks[n + 1:nxt] and any(x[0] in "KVQR" and tile(x) == t for x in itertools.takewhile(lambda y: y != w, toks[nxt:]))
            E[t] = eload(P, t, pseudo(t, k), tag="e4" if across else None, fixed=fixed.get(n))
        elif h == "sig":
            if CFG["sync"]:
                P.salu(f"s_sub_u32 s{sCnt}, s{sCnt}, 1", r=[f"s{sCnt}"], w=[f"s{sCnt}"]); signal(P)
        elif h == "rl": R.ld()
        elif h == "r0": R.s(0)
        elif h == "r1": R.s(1); R.soft()
        elif h == "pl": R.ldp()
        elif h == "pr": R.pv()
        elif h == "ko": remops(P)
        elif h == "cut": P.cut = len(P.ops); late = True
        elif w[0] == "s": sc(P, int(h[1]), [int(c) for c in arg])
        elif w[0] == "p": pv(P, int(h[1]), [int(c) for c in (arg or "0123")])
        elif w[0] == "l": lsum(P, int(h[1]))
        elif w[0] == "m":
            tau = int(h[1]); prev = (tau - 1) % 6
            nd = toks[n + 1] if n + 1 < len(toks) and toks[n + 1][0] == "d" else None
            pre = step if tau == 4 else ((lambda P_: dma_setup(P_, int(nd[1]), ["B"])) if nd and nd[3] == "0" else None)
            o = m32st(P, tau, prev, sStP if prev >= 4 else sStC, pre)
            if tau == 4: P.seam = o
            if nd:
                for c in nd[3:]: o = dma(P, int(c), ["B"], [o], 4)
        elif w[0] == "d":
            if toks[n - 1][0] != "m": dma_spread(P, int(h[1]), [int(c) for c in arg], ["B"])
        else: raise ValueError(w)
    assert not E, E

ORDERS = {
 0: """e0 s5:6012 K0:012 e1 K0:3 p4 s5:34 K1:012 e2 K1:3 m5 K2:012 e3 K2:3 s5:5 K3:012 e4 K3:3 K4:01 l5 K4:2 e5 K4:3 p5 K5 ko
       Q0:01 rl Q0:23 r0 R0:0 r1 R0:123 s0:601 V5:012 e1 V5:3 s0:23 V1:012 e0 V1:3 m0 s0:45 V0 Q1 l0 R1:01 e2 R1:23 s1:601 V2:012 e3 V2:3 s1:23 V3:012 e4 V3:3 V4 s1:45 cut
       p0 Q2:012 pl Q2:3 pr s2:6012 m1 R2:01 l1 R2:23 p1:01 e1 p1:23 s2:345 Q3:012 m2 Q3:3 R3:012 l2 R3:3 s3:6012 p2:01 e2 p2:23 s3:345 Q4:012 m3 Q4:3
       R4:012 l3 R4:3 s4:6012 p3:01 e3 p3:23 s4:345 Q5:012 m4 Q5:3 R5:012 l4 R5:3""",
 1: """e0 s5:601 K0:0 d0:01 K0:1 l4 K0:2 e1 K0:3 p4 s5:23 K1:012 e2 K1:3 K2:012 m5 d0:23 e3 K2:3 s5:45 K3:01 d1:01 K3:2 e4 K3:3 K4:012 e5 l5 K4:3 p5 K5 ko
       Q0:01 rl d1:23 Q0:23 r0 R0:0 r1 R0:123 s0:60 V5:012 e1 V5:3 s0:123 V1:012 e0 V1:3 m0 d2:0123 s0:45 V0 Q1 l0 R1:01 e2 R1:23 s1:601 V2:012 e3 V2:3 s1:23 V3:012 e4 V3:3 V4 s1:45 cut
       p0 Q2:012 pl Q2:3 pr s2:6012 m1 R2:01 l1 R2:23 p1:01 e1 p1:23 s2:345 Q3:012 m2 Q3:3 R3:012 l2 R3:3 s3:6012 p2:01 e2 p2:23 s3:345 Q4:012 m3 Q4:3
       R4 l3 s4:6012 p3:01 e3 p3:23 sig s4:345 Q5:012 m4 Q5:3 R5""",
}
ORDER = open(os.environ["ORDER"]).read() if os.environ.get("ORDER") else ORDERS[CFG.get("ord", 1)]

def body(P):
    if CFG["sync"]:
        o = P.add("s_nop 0", "S", cost=0); o.marker = True
        check(P)
    else: P.add("s_barrier", "BAR", r=["dma"], w=["B"])
    run(P, ORDER)
    assert P.hook is None and sum(o.kind == "VL" for o in P.ops[:P.cut]) == 12

def step(P):
    n0 = len(P.ops)
    P.valu(f"v_add_u32 {v(aE)}, s{sTog}, {v(aE)}", [v(aE), f"s{sTog}"], [v(aE)])
    P.salu(f"s_sub_u32 s{sLn}, s{sLn}, s{sTog}", r=[f"s{sLn}", f"s{sTog}"], w=[f"s{sLn}"])
    P.salu(f"s_sub_u32 s{sTog}, 0, s{sTog}", r=[f"s{sTog}"], w=[f"s{sTog}"])
    for x in (aKr, aVr, aQa, aCw, aLw):
        P.valu(f"v_add_u32 {v(x)}, {US}, {v(x)}", [v(x)], [v(x)])
    P.salu(f"s_mov_b32 s{sStP}, s{sStC}", r=[f"s{sStC}"], w=[f"s{sStP}"])
    P.salu(f"s_add_u32 s{sStC}, s{sStC}, {UB}", r=[f"s{sStC}"], w=[f"s{sStC}"])
    if not CFG["sync"]: P.salu(f"s_sub_u32 s{sCnt}, s{sCnt}, 1", r=[f"s{sCnt}"], w=[f"s{sCnt}"])
    P.salu(f"s_add_u32 s{sEn}, s{sEn}, {UB}", r=[f"s{sEn}"], w=[f"s{sEn}"])
    P.salu(f"s_bfe_i32 s{sM}, s{sBits}, 0x10000", r=[f"s{sBits}"], w=[f"s{sM}"])
    P.salu(f"s_lshr_b32 s{sBits}, s{sBits}, 1", r=[f"s{sBits}"], w=[f"s{sBits}"])
    P.salu(f"s_and_b32 s{sStr}, s{sM}, {UB - 1024}", r=[f"s{sM}"], w=[f"s{sStr}"])
    P.salu(f"s_lshl3_add_u32 s{sSo}, s{sStr}, 8192", r=[f"s{sStr}"], w=[f"s{sSo}"])
    P.salu(f"s_sub_u32 s{sStr}, s{sStr}, {BLK - 1024}", r=[f"s{sStr}"], w=[f"s{sStr}"])
    P.salu(f"s_and_b32 s{sT2}, s{sM}, s{sRd}", r=[f"s{sM}", f"s{sRd}"], w=[f"s{sT2}"])
    P.salu(f"s_sub_u32 s{sEn}, s{sEn}, s{sT2}", r=[f"s{sEn}", f"s{sT2}"], w=[f"s{sEn}"])
    for o in P.ops[n0:]: o.pin = True
    return P.ops[n0:]

def xor_in(P, dst, L, t, terms):
    for (off, w, sh) in terms:
        P.valu(f"v_bfe_u32 {v(t)}, {v(L)}, {off}, {w}", [v(L)], [v(t)])
        P.valu(f"v_lshlrev_b32 {v(t)}, {sh}, {v(t)}", [v(t)], [v(t)])
        P.valu(f"v_xor_b32 {v(dst)}, {v(t)}, {v(dst)}", [v(t), v(dst)], [v(dst)])
def lanemask(fn):
    m = 0
    for l in range(64):
        if fn(l): m |= 1 << l
    return m
def selc(P, dst, t, ctrue, cfalse, fn):
    P.mov(dst, cfalse); P.mov(t, ctrue); select(P, dst, t, dst, fn)

def unit0(P, e4regs, TQ):
    E = 1 << 20
    SV = WST; SQ = TAB0 - 16384; SK = SQ + 32768
    assert SV + 32768 <= SQ and SK + 32768 <= SCR0 and SV % 128 == 0 and SQ % 128 == 0
    ER = V0; KP = V0 + 32; QP = V0 + 40
    WQR = PBUF[0]; WRR = RES[0]
    L, t, vK0, vK1, vQ0, vQ1, y0, y1 = range(OBLK, OBLK + 8)
    aT = [OBLK + 8 + i for i in range(4)]; aV = [OBLK + 12, OBLK + 13]; vWr, vLin = OBLK + 14, OBLK + 15
    vV, aVw = TQ, TQ + 1; aTabW = [TQ + 2, TQ + 3]; aZw = KRS; aRw = INV
    sTab, sX = sT0, sT1
    o = P.salu(SRDTXT, r=["s4", "s5"], w=["srd"]); o.nb = CFG.get("knb", 200); o.urgent = True
    nld = [0]
    sp = CFG["lsp"]
    ARR = [1000] * 8 + [2400] * 12 + [CFG.get("tR", 3300)] * 4 + [CFG.get("tV", 3800)] * 8 + [CFG.get("tO", 5000)] * 8 + [CFG["tE1"]] * 4 + [CFG["tE2"]] * 4
    def timed(o):
        n = nld[0]; nld[0] += 1
        o.r = o.r + ["srd"]; o.nb = 350 + 25 * n if n < 20 else CFG.get("nb0", 1000) + sp * (n - 20); o.arrive = ARR[n]; o.urgent = True; o.early = E
        return o
    def V(text, r, w): return P.valu(text, r, w, early=E)
    lane_id(P, L)
    V(f"v_lshlrev_b32 {v(vLin)}, 4, {v(L)}", [v(L)], [v(vLin)])
    V(f"v_and_b32 {v(t)}, 16, {v(L)}", [v(L)], [v(t)])
    V(f"v_lshlrev_b32 {v(vV)}, 2, {v(t)}", [v(t)], [v(vV)])
    V(f"v_lshlrev_b32 {v(t)}, 1, {v(t)}", [v(t)], [v(t)])
    V(f"v_xor_b32 {v(vK0)}, {v(vLin)}, {v(t)}", [v(vLin), v(t)], [v(vK0)])
    V(f"v_xor_b32 {v(vV)}, {v(vLin)}, {v(vV)}", [v(vLin), v(vV)], [v(vV)])
    V(f"v_xor_b32 {v(vK1)}, 64, {v(vK0)}", [v(vK0)], [v(vK1)])
    P.salu(f"s_lshl_b32 s{sT2}, s{sW}, 13", r=[f"s{sW}"], w=[f"s{sT2}"], early=E)
    P.salu(f"s_add_u32 s{sM}, s{sT2}, 4096", r=[f"s{sT2}"], w=[f"s{sM}"], early=E)
    def wdma(srdn, lds, pw, vo):
        for j4 in range(2):
            so = (sT2, sM)[j4]
            P.salu(f"s_add_u32 m0, s{so}, {lds}", r=[f"s{so}"], w=["m0"], early=E).urgent = True
            for j in range(4):
                timed(P.add(f"buffer_load_dwordx4 {v(vo[j & 1])}, {srd(srdn)}, s{so} offen offset:{j*1024} lds", "VL", r=[v(vo[j & 1]), "m0", f"s{so}"], w=[pw, "ord"], note="wdma"))
    def gl(dst, srdn):
        for j in range(8):
            so = (sT2, sM)[j >> 2]
            timed(P.add(f"buffer_load_dwordx4 {v(dst + 4 * j, 4)}, {v(vLin)}, {srd(srdn)}, s{so} offen offset:{(j & 3) * 1024}", "VG", r=[v(vLin), f"s{so}"], w=vs(dst + 4 * j, 4) + ["ord"], note="gl"))
    def edma(js, src, pw, lb=sLn, sb=sT3, pr=[]):
        for j in js:
            P.salu(f"s_add_u32 m0, s{lb}, {j * RG}", r=[f"s{lb}"] + pr, w=["m0"], early=E).urgent = True
            P.salu(f"s_add_u32 s{sSo}, s{sb}, {src(j)}", r=[f"s{sb}"] + pr, w=[f"s{sSo}"], early=E).urgent = True
            timed(P.add(f"buffer_load_dwordx4 {v(aDMA)}, {srd(sE)}, s{sSo} offen{LDPOL} lds", "VL", r=[v(aDMA), "m0", f"s{sSo}"] + pr, w=[pw, "ord"], note="dma"))
    lane_expr(P, aDMA, L, t, [(0, 2, 16), (4, 2, 64), (2, 2, 256)])
    P.salu(f"s_lshl_b32 s{sT3}, s{sH}, 10", r=[f"s{sH}"], w=[f"s{sT3}"])
    P.salu(f"s_add_u32 s{sT3}, s{sT3}, s{sB0}", r=[f"s{sT3}", f"s{sB0}"], w=[f"s{sT3}"])
    P.salu(f"s_lshl_b32 s{sEn}, s{sH}, 12\ns_add_u32 s{sEn}, s{sEn}, s{sB0}\ns_add_u32 s{sEn}, s{sEn}, {UB}", r=[f"s{sH}", f"s{sB0}"], w=[f"s{sEn}"])
    P.salu(f"s_mul_i32 s{sLn}, s{sP}, {BUFSZ}\ns_mul_i32 s{sX}, s{sH}, {BLK}\ns_add_u32 s{sLn}, s{sLn}, s{sX}", r=[f"s{sP}", f"s{sH}"], w=[f"s{sLn}", f"s{sX}"])
    P.salu(f"s_mov_b32 s{sStr}, {1024 - BLK}", w=[f"s{sStr}"])
    P.salu(f"s_mul_i32 s{sRb}, s{sH}, {UB}\ns_add_u32 s{sRb}, s{sRb}, s{sB0}\ns_add_u32 s{sRb}, s{sRb}, {96 * 256}\ns_mul_i32 s{sRd}, s{sH}, {4096 - 4 * UB}\ns_add_u32 s{sRd}, s{sRd}, {8 * UB - 96 * 256}",
           r=[f"s{sH}", f"s{sB0}"], w=[f"s{sRb}", f"s{sRd}"])
    gl(WQR, sWQ)
    edma([10, 11, 0, 1], lambda j: j * 2048, "dK")
    wdma(sWK, SK, "dK", (vK0, vK1))
    edma(range(6, 10), lambda j: (j - 6) * 2 * UB, "dR", sb=sRb)
    wdma(sWV, SV, "dV", (vV, vV))
    gl(WRR, sWR)
    edma(range(2, 6), lambda j: j * 2048, "dE1")
    P.salu(f"s_lshl_b32 s{sX}, s{sH}, 14", r=[f"s{sH}"], w=[f"s{sX}"])
    lane_expr(P, aT[0], L, t, [(4, 2, 1024), (2, 2, 128), (3, 1, 32), (4, 1, 64), (0, 2, 8)], const=SQ, sconst=sX)
    for mt in range(1, 4): P.valu(f"v_xor_b32 {v(aT[mt])}, {mt * 32}, {v(aT[0])}", [v(aT[0])], [v(aT[mt])])
    lane_expr(P, aV[0], L, t, [(4, 2, 1024), (2, 2, 128), (3, 1, 64), (0, 2, 16)], const=SV, sconst=sX)
    P.valu(f"v_xor_b32 {v(aV[1])}, 64, {v(aV[0])}", [v(aV[0])], [v(aV[1])])
    P.salu(f"s_mul_i32 s{sX}, s{sP}, {BUFSZ}", r=[f"s{sP}"], w=[f"s{sX}"])
    lane_expr(P, aE, L, t, [(2, 2, BLK), (0, 2, 64), (4, 2, 16)], sconst=sX)
    P.salu(f"s_add_u32 s{sX}, s{sT2}, {SQ}", r=[f"s{sT2}"], w=[f"s{sX}"])
    P.valu(f"v_add_u32 {v(vQ0)}, s{sX}, {v(vK0)}", [v(vK0), f"s{sX}"], [v(vQ0)])
    P.valu(f"v_add_u32 {v(vQ1)}, s{sX}, {v(vK1)}", [v(vK1), f"s{sX}"], [v(vQ1)])
    P.salu(f"s_lshl_b32 s{sX}, s{sW}, 12", r=[f"s{sW}"], w=[f"s{sX}"])
    lane_expr(P, vWr, L, t, [(3, 1, 16384), (4, 2, 128), (2, 1, 64), (5, 1, 32), (0, 2, 8)], const=SV, sconst=sX)
    P.salu(f"s_lshl_b32 s{sX}, s{sH}, 7", r=[f"s{sH}"], w=[f"s{sX}"])
    lane_expr(P, aST, L, t, [(0, 4, 256), (4, 2, 16)], sconst=sX)
    P.salu(f"s_mul_i32 s{sTab}, s{sW}, {TABSZ}\ns_add_u32 s{sTab}, s{sTab}, {TAB0}", r=[f"s{sW}"], w=[f"s{sTab}"])
    lane_expr(P, aVr, L, t, [(3, 2, 128), (2, 1, 64), (0, 2, 8), (5, 1, 4)], const=VOFF, sconst=sTab)
    lane_expr(P, aKr, L, t, [(3, 1, 256), (1, 1, 128), (0, 1, 64), (4, 2, 16)], sconst=sTab); xor_in(P, aKr, L, t, [(3, 1, 5), (1, 1, 4)])
    lane_expr(P, aQa, L, t, [(2, 2, 128), (0, 1, 64), (4, 2, 16)], const=512, sconst=sTab); xor_in(P, aQa, L, t, [(2, 2, 4)])
    lane_expr(P, y0, L, t, [], const=ZOFF, sconst=sTab)
    select(P, aQa, aQa, y0, lambda l: (l & 2) == 0)
    lane_expr(P, aLw, L, t, [(4, 2, CST), (0, 2, 4)], const=256, sconst=sTab)
    lane_expr(P, aCw, L, t, [(4, 2, CST), (0, 4, 4)], sconst=sTab)
    lane_expr(P, aZw, L, t, [(0, 3, US)], const=ZOFF, sconst=sTab)
    lane_expr(P, aTabW[0], L, t, [(2, 2, US), (0, 2, 128), (5, 1, 16), (4, 1, 8)], sconst=sTab); xor_in(P, aTabW[0], L, t, [(0, 2, 4)])
    P.valu(f"v_xor_b32 {v(aTabW[1])}, 32, {v(aTabW[0])}", [v(aTabW[0])], [v(aTabW[1])])
    lane_expr(P, aVw, L, t, [(4, 2, US), (0, 4, 8)], const=VOFF, sconst=sTab)
    P.salu(f"s_mul_i32 s{sX}, s{sW}, {SCRSZ}\ns_add_u32 s{sX}, s{sX}, {SCR0}", r=[f"s{sW}"], w=[f"s{sX}"])
    lane_expr(P, aPw, L, t, [(4, 2, 64), (1, 1, 32), (2, 2, 8), (0, 1, 2)], sconst=sX)
    lane_expr(P, aPr, L, t, [(2, 2, 64), (0, 1, 32), (4, 1, 16)], sconst=sX)
    lane_expr(P, y0, L, t, [], const=256, sconst=sX)
    select(P, aPr, aPr, y0, lambda l: ((l >> 1) & 1) == (l >> 5))
    for i in range(4): P.mov(VR + i, 0)
    lane_expr(P, y0, L, t, [(0, 2, CST)], const=256, sconst=sX)
    P.dsw(y0, VR, 4, 0, pw=["L:Ps"])
    P.mov(y0, 64); P.dsw(aPw, y0, 1, 3 * CST, pw=["dz"], ins="ds_write_b16")
    P.salu(f"s_xor_b32 s{sX}, s{sW}, 1\ns_mul_i32 s{sX}, s{sX}, {SCRSZ}", r=[f"s{sW}"], w=[f"s{sX}"])
    lane_expr(P, aFl, L, t, [], const=SCR0 + 3 * CST, sconst=sX)
    P.salu(f"s_lshl_b32 s{sX}, s{sW}, 9", r=[f"s{sW}"], w=[f"s{sX}"])
    lane_expr(P, aRw, L, t, [(0, 4, 16)], const=RR0, sconst=sX)
    selc(P, ONES, t, "0x3f803f80", 0, lambda l: (l & 2) == 0)
    for i in range(1, 4): P.valu(f"v_mov_b32 {v(ONES + i)}, {v(ONES)}", [v(ONES)], [v(ONES + i)])
    selc(P, IDX, t, "0xeeeeeeee", "0x44444444", lambda l: l & 1)
    P.mov(t, "0xe4eeeeee"); select(P, IDX, t, IDX, lambda l: (l & 1) and l >= 32)
    selc(P, SEL0, t, "0x07060302", "0x0c0c0c0c", lambda l: not (l & 16))
    selc(P, SEL1, t, "0x07060302", "0x0c0c0c0c", lambda l: (l & 16))
    P.mov(CHK, 0)
    def bar(r, w):
        o = P.add("s_barrier", "BAR", r=r, w=w + ["barorder"], early=E); o.urgent = True; return o
    def trload(W, base, vpat, pseudo, e=0):
        for mt in range(4):
            for ks in range(4):
                for jh in range(2):
                    o = W + (mt * 4 + ks) * 4 + 2 * jh
                    addr = aV[mt >> 1] if vpat else aT[mt]
                    off = base + ks * 4096 + jh * 512 + ((mt & 1) * 8 if vpat else 0)
                    P.add(f"ds_read_b64_tr_b16 {a(o, 2)}, {v(addr)} offset:{off}", "DR", r=[v(addr)] + pseudo, w=as_(o, 2), note="tr", early=e)
    for j in range(8):
        for i in range(4):
            x = WQR + 4 * j + i; y = (y0, y1)[i & 1]
            P.valu(f"v_and_b32 {v(y)}, 0xffff0000, {v(x)}", [v(x)], [v(y)])
            P.valu(f"v_lshlrev_b32 {v(x)}, 16, {v(x)}", [v(x)], [v(x)])
            P.valu(f"v_mul_f32 {v(y)}, s{sC}, {v(y)}", [v(y), f"s{sC}"], [v(y)])
            P.valu(f"v_mul_f32 {v(x)}, s{sC}, {v(x)}", [v(x), f"s{sC}"], [v(x)])
            P.cvt(x, x, y)
        P.dsw((vQ0, vQ1)[j & 1], WQR + 4 * j, 4, j * 1024, pw=["dz"])
    for x in [pb + 14 + i for pb in PBUF for i in range(2)]: P.mov(x, 0)
    bar(["dK", "dz"], ["B1"])
    trload(WK, 32768, False, ["B1", "L:k"], E)
    trload(WQ, 0, False, ["B1", "L:k"])
    for mt in range(4): P.valu(f"v_subrev_u32 {v(aT[mt])}, {SQ - SV}, {v(aT[mt])}", [v(aT[mt])], [v(aT[mt])])
    e0 = eload(P, 0, ["B1"]); e5 = eload(P, 5, ["B1"], fixed=e4regs)
    for mt in range(4): kch(P, 0, mt, e0)
    efree(P, e0)
    for mt in MTO(1): kch(P, 5, mt, e5)
    for mt in range(4): qch(P, mt, e5, 0)
    bar(["dR"], ["L:k", "B2"])
    er = [[ER + 16 * z + 4 * ks for ks in range(4)] for z in range(2)]
    for z in range(2):
        for ks in range(4): P.dsr(er[z][ks], 4, aE, (3 + z) * TILE + ks * KSTEP, ["B2", "L:r"], "Erem").early = E
    bar(["dV"], ["L:r", "B3"])
    edma(range(6, 10), lambda j: j * 2048, "dE2", pr=["B3"])
    P.salu(f"s_mul_i32 s{sSo}, s{sH}, {TILE - BLK}\ns_add_u32 s{sLn}, s{sLn}, s{sSo}\ns_add_u32 s{sLn}, s{sLn}, {2*BUFSZ}\ns_mov_b32 s{sSo}, 8192", r=[f"s{sLn}", f"s{sH}"], w=[f"s{sLn}", f"s{sSo}"])
    trload(WV, 0, True, ["B3", "L:v"])
    P.dsw(aZw, VR, 4, 0, pw=["L:Qtab"], pr=["B2"])
    sc(P, 0, [0, 5])
    mrr = lanemask(lambda l: (l >> 4) == ((l >> 2) & 3))
    for z in range(2):
        for (W, X, off, pw, nt) in ((WK, KP, 0, "L:Ktab", "Krem"), (WQ, QP, 512, "L:Qtab", "Qrem"))[::(1, -1)[z]]:
            for mt in MTO(z + (W == WQ)):
                b = X + 4 * (mt >> 1) + (mt & 1)
                pchain(P, W, mt, er[z], False, b, nt, dst1=b + 2)
            for ks in range(2):
                for hf in range(2): P.dsw(aTabW[ks], X + 4 * ks + 2 * hf, 2, z * 4 * US + off + hf * 64, pw=[pw], pr=["B2"])
        if z == 0: P.dsr(KRS, 4, aKr, 0, ["L:Ktab"], "KR")
        else: bar([], ["L:v", "B4"])
        for mt in MTO(z):
            d = P.alloc(); chain(P, WV, mt, er[z], True, d, "Vrem")
            P.cvt(d, d, d + 1); P.cvt(d + 1, d + 2, d + 3)
            P.dsw(aVw, d, 2, z * 4 * US + mt * 128, pw=["L:Vtab"], pr=["B2"]); P.release(d)
            if mt == MTO(z)[0]:
                d = P.alloc()
                for ks in range(2): P.mfma(d, ("v", KP + 4 * ks), ("v", QP + 4 * ks), first=(ks == 0), note="Srr")
                for i in range(4): P.exp(d + i)
                P.op2("v_add_f32", y0, d, d + 1); P.op2("v_add_f32", y1, d + 2, d + 3)
                P.cvt(d, d, d + 1); P.cvt(d + 1, d + 2, d + 3); P.op2("v_add_f32", d + 2, y0, y1)
                P.add(f"s_mov_b32 exec_lo, 0x{mrr & 0xffffffff:x}\ns_mov_b32 exec_hi, 0x{mrr >> 32:x}\nds_write_b96 {v(aRw)}, {v(d, 3)} offset:{z * 256}\ns_mov_b64 exec, -1", "DW",
                      r=[v(aRw)] + vs(d, 3), w=["L:rr"], cost=32)
                P.release(d)
        if z == 0: sc(P, 0, [6])
    wr = [vWr, aV[0], aV[1], vLin]
    for k in range(1, 4): P.valu(f"v_xor_b32 {v(wr[k])}, {k * 32}, {v(vWr)}", [v(vWr)], [v(wr[k])])
    for j in range(8):
        for u_ in range(2): P.dsw(wr[u_ + 2 * ((j >> 1) & 1)], WRR + 4 * j + 2 * u_, 2, j * 512, pw=["wO"], pr=["B4"])
    bar(["wO"], ["B5"])
    trload(WR, 0, False, ["B5", "L:w"])
    e0 = eload(P, 0, ["B1"])
    for mt in range(4): vch(P, 0, mt, e0)
    efree(P, e0)
    for mt in MTO(1): vch(P, 5, mt, e5)
    for mt in range(4): rch(P, mt, e5, 0)
    bar(["dE1"], ["L:w", "B6", "B"])
    P.add(f"ds_read2_b32 {v(VR, 2)}, {v(aVr)} offset0:0 offset1:8", "DR", r=[v(aVr), "L:Vtab"], w=vs(VR, 2), note="VR")
    e1 = eload(P, 1, ["B6"]); e2 = eload(P, 2, ["B6"], fixed=e4regs)
    for mt in range(4): kch(P, 1, mt, e1)
    efree(P, e1)
    bar(["dE2"], ["B7"])
    e3 = eload(P, 3, ["B7"])
    for mt in MTO(1): kch(P, 2, mt, e2)
    for mt in range(4): vch(P, 2, mt, e2)
    cnt = [0]; nm0 = P.nm + CFG.get("u0d", 2)
    def hook(P_):
        if P_.nm >= nm0 and (P_.nm - nm0) % (2 * CFG["u0s"]) < 2 and cnt[0] < 12:
            j = cnt[0]; cnt[0] += 1
            if j % 4 == 0: dma_setup(P_, j // 4, ["B7"])
            dma(P_, j % 4, ["B7"], [P_.lastm], 8)
    P.hook = hook
    sc(P, 0, [1, 2])
    e4 = eload(P, 4, ["B7"], fixed=e4regs)
    for mt in range(4): kch(P, 3, mt, e3)
    efree(P, e3)
    for n_, mt in enumerate(MTO(1)):
        kch(P, 4, mt, e4)
        if n_ == 1: e0 = eload(P, 0, ["B7"])
    R = Rem(P)
    for mt in range(4):
        rch(P, mt, e0, 1)
        if mt == 0: sc(P, 0, [3, 4])
    for mt in range(4): qch(P, mt, e0, 1)
    efree(P, e0)
    R.ld()
    for mt in range(4):
        vch(P, 4, mt, e4)
        if mt == 0: sc(P, 1, [6, 0, 1])
        if mt == 1: R.s(0)
        if mt == 2: R.s(1); R.soft()
    lsum(P, 0)
    e3 = eload(P, 3, ["B7"])
    sc(P, 1, [2, 3])
    for mt in range(4): vch(P, 3, mt, e3)
    efree(P, e3)
    e1 = eload(P, 1, ["B7"])
    m32st(P, 0)
    sc(P, 1, [4])
    for mt in range(4): vch(P, 1, mt, e1)
    efree(P, e1)
    sc(P, 1, [5])
    P.hook = None
    assert cnt[0] == 12, cnt
    P.share()

class Lanes:
    def __init__(self, P, L, regs, sregs):
        self.P = P; self.L = L; self.regs = list(regs); self.F = {}; self.sregs = collections.deque(sregs); self.mul = {}
    def field(self, off, w):
        if (off, w) not in self.F:
            r = self.F[(off, w)] = self.regs.pop(0)
            if off == 0: self.P.valu(f"v_and_b32 {v(r)}, {(1 << w) - 1}, {v(self.L)}", [v(self.L)], [v(r)])
            elif off + w == 6: self.P.valu(f"v_lshrrev_b32 {v(r)}, {off}, {v(self.L)}", [v(self.L)], [v(r)])
            else: self.P.valu(f"v_bfe_u32 {v(r)}, {v(self.L)}, {off}, {w}", [v(self.L)], [v(r)])
        return self.F[(off, w)]
    def __call__(self, dst, terms, const=0, sconst=None, xor=()):
        P = self.P; base = None
        terms = sorted(terms, key=lambda x: x[2] & (x[2] - 1) != 0)
        if sconst is not None and not const: base = f"s{sconst}"
        elif sconst is not None or const:
            self.sregs.rotate(-1); x = self.sregs[0]; base = f"s{x}"
            if sconst is not None: P.salu(f"s_add_u32 s{x}, s{sconst}, {const}", r=[f"s{sconst}"], w=[base])
            else: P.salu(f"s_mov_b32 s{x}, {const}", w=[base])
        if not terms or terms[0][2] & (terms[0][2] - 1):
            P.valu(f"v_mov_b32 {v(dst)}, {base or 0}", [base] if base else [], [v(dst)]); base = v(dst)
        for (off, w, mult) in terms:
            f = self.field(off, w)
            if mult & (mult - 1) == 0:
                sh = int(math.log2(mult))
                if base is None: P.valu(f"v_lshlrev_b32 {v(dst)}, {sh}, {v(f)}", [v(f)], [v(dst)])
                else: P.valu(f"v_lshl_add_u32 {v(dst)}, {v(f)}, {sh}, {base}", [v(f), base], [v(dst)])
            else:
                if mult not in self.mul:
                    x = self.mul[mult] = self.sregs.pop(); P.salu(f"s_mov_b32 s{x}, {mult}", w=[f"s{x}"])
                P.valu(f"v_mad_u32_u24 {v(dst)}, {v(f)}, s{self.mul[mult]}, {base}", [v(f), base, f"s{self.mul[mult]}"], [v(dst)])
            base = v(dst)
        for (off, w, sh) in xor:
            if (off, w, sh) not in self.F:
                f = self.field(off, w); r = self.F[(off, w, sh)] = self.regs.pop(0)
                P.valu(f"v_lshlrev_b32 {v(r)}, {sh}, {v(f)}", [v(f)], [v(r)])
            P.valu(f"v_xor_b32 {v(dst)}, {v(self.F[(off, w, sh)])}, {v(dst)}", [v(self.F[(off, w, sh)]), v(dst)], [v(dst)])

def unit0b(P, e4regs):
    E = 1 << 20
    SV = 3 * BUFSZ - 16384; SQ = TILE; SK = TAB0
    assert SK + BUFSZ + 16384 <= SCR0 and SV % 128 == 0 and SQ % 128 == 0 and BUFSZ % 128 == 0 and SV >= 2 * BUFSZ + 2 * TILE and SQ + 16384 <= 5 * TILE
    ER = V0; KP = (RES[0], K0 + 24); QP = (RES[0] + 8, K0 + 32); VP = (K0 + 16, K0 + 8); Q1 = RES[1]
    WQR = PBUF[0]
    L, t, vK0, vK1, vQ0, vQ1, vWr, vLin = range(OBLK, OBLK + 8)
    aT = [OBLK + 8 + i for i in range(4)]; aV = [OBLK + 14, OBLK + 15]; vV, aVw = OBLK + 12, OBLK + 13
    Y = [RES[1] + 8 + i for i in range(4)]; y0, y1 = Y[:2]; aTabW = [RES[1] + 12, RES[1] + 13]; aZw = RES[1] + 14; aRw = RES[1] + 15
    sTab, sX, sV = sT0, sT1, sD
    T = lambda k, d: CFG.get(k, d)
    o = P.salu("s_waitcnt lgkmcnt(0)", w=["srd"], early=E); o.nb = T("knb", 120); o.cost = T("kw", 450); o.urgent = True
    nld = [0]
    def timed(o, arr, nb=0, cost=20):
        nld[0] += 1
        o.r = o.r + ["srd"]; o.nb = nb; o.arrive = arr; o.urgent = True; o.early = E; o.cost = cost
        return o
    def V(text, r, w): return P.valu(text, r, w, early=E)
    def S(text, r, w):
        o = P.salu(text, r=r, w=w, early=E); o.urgent = True; return o
    n0 = len(P.ops)
    V(f"v_and_b32 {v(L)}, 63, v0", [], [v(L)])
    V(f"v_lshlrev_b32 {v(vLin)}, 4, {v(L)}", [v(L)], [v(vLin)])
    S(f"s_lshl_b32 s{sT2}, s{sW}, 13", [f"s{sW}"], [f"s{sT2}"])
    S(f"s_add_u32 s{sM}, s{sT2}, 4096", [f"s{sT2}"], [f"s{sM}"])
    V(f"v_and_b32 {v(aDMA)}, 48, {v(vLin)}", [v(vLin)], [v(aDMA)])
    V(f"v_and_b32 {v(t)}, 48, {v(L)}", [v(L)], [v(t)])
    V(f"v_lshl_add_u32 {v(aDMA)}, {v(t)}, 2, {v(aDMA)}", [v(t), v(aDMA)], [v(aDMA)])
    V(f"v_and_b32 {v(t)}, 12, {v(L)}", [v(L)], [v(t)])
    V(f"v_lshl_add_u32 {v(aDMA)}, {v(t)}, 6, {v(aDMA)}", [v(t), v(aDMA)], [v(aDMA)])
    S(f"s_lshl_b32 s{sT3}, s{sH}, 10\ns_add_u32 s{sT3}, s{sT3}, s{sB0}", [f"s{sH}", f"s{sB0}"], [f"s{sT3}"])
    S(f"s_mul_i32 s{sLn}, s{sP}, {BUFSZ}\ns_mul_i32 s{sX}, s{sH}, {BLK}\ns_add_u32 s{sLn}, s{sLn}, s{sX}", [f"s{sP}", f"s{sH}"], [f"s{sLn}", f"s{sX}"])
    if CFG["tw"]:
        S(f"s_lshl_b32 s6, s2, 7\ns_and_b32 s6, s6, 0x7c00", [], ["s6"])
        V(f"v_lshrrev_b32 {v(t)}, 5, v0", [], [v(t)])
        V(f"v_lshlrev_b32 {v(t)}, 7, {v(t)}", [v(t)], [v(t)])
    P.ops.append(P.ops.pop(n0 - 1)); P.ops[-1].after = P.ops[n0 - 1:-1]
    if CFG["tw"]:
        for i, x in enumerate((sWQ, sWK, sWV, sWR)):
            timed(P.add(f"buffer_load_dword {v(QF + 1 + i)}, {v(t)}, {srd(x)}, s6 offen", "VG", r=[v(t), "s6"], w=[v(QF + 1 + i), "ord"], note="touch"), 0, 0, 30)
    def wdma(srdn, lds, pw, vo, arr, pr=[]):
        def f(n_):
            j4, j = divmod(n_, 4); so = (sT2, sM)[j4]
            if j == 0: S(f"s_add_u32 m0, s{lds[0]}, {lds[1] + 4096 * j4}", [f"s{lds[0]}"], ["m0"])
            return timed(P.add(f"buffer_load_dwordx4 {v(vo[j & 1])}, {srd(srdn)}, s{so} offen offset:{j*1024} lds", "VL", r=[v(vo[j & 1]), "m0", f"s{so}"] + pr, w=[pw, "ord"], note="wdma"), arr, 0, 8)
        return [lambda n_=n_: f(n_) for n_ in range(8)]
    def edma(js, src, pw, arr, sb=sT3, pr=[], lo=0):
        def f(n_, j):
            so = sD + 1 + n_ % 2
            if n_ % 2 == 0: S(f"s_add_u32 m0, s{sLn}, {lo + j * RG}", [f"s{sLn}"], ["m0"])
            S(f"s_add_u32 s{so}, s{sb}, {src(j) - (n_ % 2) * RG}", [f"s{sb}"], [f"s{so}"])
            return timed(P.add(f"buffer_load_dwordx4 {v(aDMA)}, {srd(sE)}, s{so} offen offset:{(n_ % 2) * RG}{LDPOL} lds", "VL", r=[v(aDMA), "m0", f"s{so}"] + pr, w=[pw, "ord"], note="dma"), arr, 0, 8)
        return [lambda n_=n_, j=j: f(n_, j) for n_, j in enumerate(js)]
    def mix(x, y, first, per):
        x = list(x); y = list(y); r = []
        for n_ in range(1000):
            if y and n_ >= first and (n_ - first) % per == 0: r += [y.pop(0), y.pop(0)]
            if not x and not y: return r
            r.append(x.pop(0) if x else None)
    def edma1(js, src, pw, arr, cost):
        for j in js:
            S(f"s_add_u32 m0, s{sLn}, {j * RG}", [f"s{sLn}"], ["m0"])
            S(f"s_add_u32 s{sSo}, s{sT3}, {src(j)}", [f"s{sT3}"], [f"s{sSo}"])
            timed(P.add(f"buffer_load_dwordx4 {v(aDMA)}, {srd(sE)}, s{sSo} offen{LDPOL} lds", "VL", r=[v(aDMA), "m0", f"s{sSo}"], w=[pw, "ord"], note="dma"), arr, 0, cost)
    tQ, tE0, tK, tR, tV, tE1, tE2, tO = T("tQ", 1350), T("tE0", 2400), T("tK", 2800), T("tR", 4000), T("tV", 4400), T("tE1b", 5700), T("tE2b", 6800), T("tO", 7600)
    for j in range(8):
        so = (sT2, sM)[j >> 2]
        timed(P.add(f"buffer_load_dwordx4 {v(WQR + 4 * j, 4)}, {v(vLin)}, {srd(sWQ)}, s{so} offen offset:{(j & 3) * 1024}", "VG", r=[v(vLin), f"s{so}"], w=vs(WQR + 4 * j, 4) + ["ord"], note="gl"), tQ + 50 * j, 0, 60)
    edma1([10, 11, 0, 1], lambda j: j * 2048, "dE0", tE0, 60)
    first = P.ops[-1]; n1 = len(P.ops)
    LE = Lanes(P, L, list(range(V0 + 32, V0 + 48)) + list(range(K0 + 16, K0 + 24)), range(6, 16))
    V(f"v_and_b32 {v(t)}, 16, {v(L)}", [v(L)], [v(t)])
    V(f"v_lshlrev_b32 {v(vV)}, 2, {v(t)}", [v(t)], [v(vV)])
    V(f"v_lshlrev_b32 {v(t)}, 1, {v(t)}", [v(t)], [v(t)])
    V(f"v_xor_b32 {v(vK0)}, {v(vLin)}, {v(t)}", [v(vLin), v(t)], [v(vK0)])
    V(f"v_xor_b32 {v(vK1)}, 64, {v(vK0)}", [v(vK0)], [v(vK1)])
    S(f"s_mul_i32 s{sV}, s{sP}, {BUFSZ}\ns_lshl_b32 s{sX}, s{sH}, 13\ns_add_u32 s{sV}, s{sV}, s{sX}", [f"s{sH}", f"s{sP}"], [f"s{sV}", f"s{sX}"])
    S(f"s_add_u32 s{sX}, s{sV}, {SQ}", [f"s{sV}"], [f"s{sX}"])
    V(f"v_add_u32 {v(vQ0)}, s{sX}, {v(vK0)}", [v(vK0), f"s{sX}"], [v(vQ0)])
    V(f"v_add_u32 {v(vQ1)}, s{sX}, {v(vK1)}", [v(vK1), f"s{sX}"], [v(vQ1)])
    LE(vWr, [(3, 3, 256), (0, 3, 16)])
    P.valu(f"v_xor_b32 {v(vWr)}, {v(vWr)}, {v(vV)}", [v(vWr), v(vV)], [v(vWr)])
    P.valu(f"v_xor_b32 {v(vV)}, {v(vLin)}, {v(vV)}", [v(vLin), v(vV)], [v(vV)])
    P.salu(f"s_mul_i32 s{sX}, s{sH}, {BUFSZ}", r=[f"s{sH}"], w=[f"s{sX}"])
    LE(aT[0], [(4, 2, 1024), (2, 2, 128), (3, 1, 32), (4, 1, 64), (0, 2, 8)], const=SQ, sconst=sX)
    for mt in range(1, 4): P.valu(f"v_xor_b32 {v(aT[mt])}, {mt * 32}, {v(aT[0])}", [v(aT[0])], [v(aT[mt])])
    P.salu(f"s_mul_i32 s{sX}, s{sP}, {BUFSZ}", r=[f"s{sP}"], w=[f"s{sX}"])
    LE(aE, [(2, 2, BLK), (0, 2, 64), (4, 2, 16)], sconst=sX)
    P.salu(f"s_mul_i32 s{sRb}, s{sH}, {UB}\ns_add_u32 s{sRb}, s{sRb}, s{sB0}\ns_add_u32 s{sRb}, s{sRb}, {96 * 256}\ns_mul_i32 s{sRd}, s{sH}, {4096 - 4 * UB}\ns_add_u32 s{sRd}, s{sRd}, {8 * UB - 96 * 256}",
           r=[f"s{sH}", f"s{sB0}"], w=[f"s{sRb}", f"s{sRd}"])
    P.salu(f"s_mul_i32 s{sX}, s{sW}, {SCRSZ}\ns_add_u32 s{sX}, s{sX}, {SCR0}", r=[f"s{sW}"], w=[f"s{sX}"])
    LE(aPw, [(4, 2, 64), (1, 1, 32), (2, 2, 8), (0, 1, 2)], sconst=sX)
    LE(aPr, [(2, 2, 64), (0, 1, 32), (4, 1, 16)], sconst=sX)
    LE(aZw, [], const=256, sconst=sX)
    select(P, aPr, aPr, aZw, lambda l: ((l >> 1) & 1) == (l >> 5))
    for i in range(4): P.mov(VR + i, 0)
    LE(aZw, [(0, 2, CST), (2, 2, 4)], const=256, sconst=sX)
    P.dsw(aZw, VR, 1, 0, pw=["L:Ps"])
    P.mov(aZw, 64); P.dsw(aPw, aZw, 1, 3 * CST, pw=["dF"], ins="ds_write_b16")
    for o in P.ops[n1:]: o.after = list(o.after) + [first]
    def bar(r, w):
        o = P.add("s_barrier", "BAR", r=r, w=w + ["barorder"], early=E); o.urgent = True; return o
    def trload(W, base, vpat, pseudo, rev=0):
        def f(mt, ks, jh):
            o = W + (mt * 4 + ks) * 4 + 2 * jh
            addr = aV[mt >> 1] if vpat else aT[mt]
            if W == WK and ks == 0 and jh == 0: V(f"v_add_u32 {v(addr)}, {SK - SQ}, {v(addr)}", [v(addr)], [v(addr)])
            off = base + ks * 4096 + jh * 512 + ((mt & 1) * 8 if vpat else 0)
            return P.add(f"ds_read_b64_tr_b16 {a(o, 2)}, {v(addr)} offset:{off}", "DR", r=[v(addr)] + pseudo, w=as_(o, 2), note="tr", early=E)
        return [lambda mt=mt, ks=ks, jh=jh: f(mt, ks, jh) for mt in MTO(rev) for ks in range(4) for jh in range(2)]
    def qbar(r, w): return [lambda: bar(r, w)]
    gate = []
    for j in range(8):
        for i in range(4):
            x = WQR + 4 * j + i; y = Y[i]
            V(f"v_and_b32 {v(y)}, 0xffff0000, {v(x)}", [v(x)], [v(y)])
            V(f"v_lshlrev_b32 {v(x)}, 16, {v(x)}", [v(x)], [v(x)])
            V(f"v_mul_f32 {v(y)}, s{sC}, {v(y)}", [v(y), f"s{sC}"], [v(y)])
            V(f"v_mul_f32 {v(x)}, s{sC}, {v(x)}", [v(x), f"s{sC}"], [v(x)])
            P.cvt(x, x, y).early = E
        o = P.dsw((vQ0, vQ1)[j & 1], WQR + 4 * j, 4, j * 1024, pw=["dz"]); o.early = E; o.urgent = True; gate.append(o)
    for j, f in enumerate(wdma(sWK, (sV, SK), "dK", (vK0, vK1), tK)): f().after = [gate[j // T("kg", 4)]]
    for f in edma(range(4), lambda j: j * 2 * UB, "dR", tR, sb=sRb, lo=2 * BUFSZ): f().after = [gate[T("rg", 7)]]
    bar(["dz", "dE0", "ord"], ["B0", "B1"])
    e5 = eload(P, 5, ["B1"], fixed=e4regs); e0 = eload(P, 0, ["B1"])
    for o in P.ops[-8:]: o.urgent = True
    tq = trload(WQ, 0, False, ["B0", "L:q"])
    lead = [f() for f in tq[:T("lead", 20)]]
    for o in lead: o.urgent = True
    n1 = len(P.ops)
    for x in [pb + 14 + i for pb in PBUF for i in range(2)]: P.mov(x, 0)
    P.salu(f"s_mul_i32 s{sX}, s{sH}, {BUFSZ}", r=[f"s{sH}"], w=[f"s{sX}"])
    LE(aV[0], [(4, 2, 1024), (2, 2, 128), (3, 1, 64), (0, 2, 16)], const=SV, sconst=sX)
    P.valu(f"v_xor_b32 {v(aV[1])}, 64, {v(aV[0])}", [v(aV[0])], [v(aV[1])])
    P.salu(f"s_lshl_b32 s{sX}, s{sH}, 7", r=[f"s{sH}"], w=[f"s{sX}"])
    LE(aST, [(0, 4, 256), (4, 2, 16)], sconst=sX)
    P.salu(f"s_mul_i32 s{sTab}, s{sW}, {TABSZ}\ns_add_u32 s{sTab}, s{sTab}, {TAB0}", r=[f"s{sW}"], w=[f"s{sTab}"])
    LE(aVr, [(3, 2, 128), (2, 1, 64), (0, 2, 8), (5, 1, 4)], const=VOFF, sconst=sTab)
    LE(aKr, [(3, 1, 256), (1, 1, 128), (0, 1, 64), (4, 2, 16)], sconst=sTab, xor=[(3, 1, 5), (1, 1, 4)])
    LE(aQa, [(2, 2, 128), (0, 1, 64), (4, 2, 16)], const=512, sconst=sTab, xor=[(2, 2, 4)])
    LE(aZw, [], const=ZOFF, sconst=sTab)
    select(P, aQa, aQa, aZw, lambda l: (l & 2) == 0)
    LE(aLw, [(4, 2, CST), (0, 2, 4)], const=256, sconst=sTab)
    LE(aCw, [(4, 2, CST), (0, 4, 4)], sconst=sTab)
    LE(aZw, [(0, 3, US), (3, 2, 4)], const=ZOFF, sconst=sTab)
    LE(aTabW[0], [(2, 2, US), (0, 2, 128), (5, 1, 16), (4, 1, 8)], sconst=sTab, xor=[(0, 2, 4)])
    P.valu(f"v_xor_b32 {v(aTabW[1])}, 32, {v(aTabW[0])}", [v(aTabW[0])], [v(aTabW[1])])
    LE(aVw, [(4, 2, US), (0, 4, 8)], const=VOFF, sconst=sTab)
    P.salu(f"s_xor_b32 s{sX}, s{sW}, 1\ns_mul_i32 s{sX}, s{sX}, {SCRSZ}", r=[f"s{sW}"], w=[f"s{sX}"])
    LE(aFl, [], const=SCR0 + 3 * CST, sconst=sX)
    P.salu(f"s_lshl_b32 s{sX}, s{sW}, 9", r=[f"s{sW}"], w=[f"s{sX}"])
    LE(aRw, [(0, 4, 16)], const=RR0, sconst=sX)
    P.mov(t, DUMP); select(P, aRw, aRw, t, lambda l: (l >> 4) == ((l >> 2) & 3))
    selc(P, ONES, t, "0x3f803f80", 0, lambda l: (l & 2) == 0)
    for i in range(1, 4): P.valu(f"v_mov_b32 {v(ONES + i)}, {v(ONES)}", [v(ONES)], [v(ONES + i)])
    selc(P, IDX, t, "0xeeeeeeee", "0x44444444", lambda l: l & 1)
    P.mov(t, "0xe4eeeeee"); select(P, IDX, t, IDX, lambda l: (l & 1) and l >= 32)
    selc(P, SEL0, t, "0x07060302", "0x0c0c0c0c", lambda l: not (l & 16))
    selc(P, SEL1, t, "0x07060302", "0x0c0c0c0c", lambda l: (l & 16))
    P.mov(CHK, 0)
    P.salu(f"s_lshl_b32 s{sEn}, s{sH}, 12\ns_add_u32 s{sEn}, s{sEn}, s{sB0}\ns_add_u32 s{sEn}, s{sEn}, {UB}", r=[f"s{sH}", f"s{sB0}"], w=[f"s{sEn}"])
    P.salu(f"s_mov_b32 s{sStr}, {1024 - BLK}", w=[f"s{sStr}"])
    for o in P.ops[n1:]: o.after = list(o.after) + [first]
    G = T("lg", 96)
    tk = trload(WK, 0, False, ["B2", "L:k"])
    P.queue.extend(tq[len(lead):] + qbar(["dK"], ["B2"]) + mix(tk, wdma(sWV, (sV, SV), "dV", (vV, vV), tV), T("m1", 10), T("m2", 11)))
    for mt in range(4):
        for x in ((0, 1), (1, 0))[mt & 1]:
            if x == 0: qch(P, mt, e5, 0)
            else: qch(P, mt, e0, 1, Q1)
    [o for o in P.ops if o.kind == "M16"][0].after = lead
    for mt in range(4):
        for x in ((0, 1), (1, 0))[mt & 1]:
            if x == 0: kch(P, 5, mt, e5)
            else: kch(P, 0, mt, e0)
    efree(P, e0)
    sc(P, 0, [0, 5]); sc(P, 1, [5, 0], Q1)
    assert not P.queue
    bar(["dR", "dF"], ["L:k", "L:q", "B3"])
    er = [[ER + 16 * z + 4 * ks for ks in range(4)] for z in range(2)]
    for z in range(2):
        for ks in range(4):
            o = P.dsr(er[z][ks], 4, aE, 2 * BUFSZ + z * TILE + ks * KSTEP, ["B3", "L:r"], "Erem"); o.early = E; o.urgent = True
    P.queue.extend(mix([], edma(range(2, 6), lambda j: j * 2048, "dE1", tE1, pr=["B3"]) + edma(range(6, 10), lambda j: j * 2048, "dE2", tE2, pr=["B3"]), 0, T("q34", 5)) + [None] * T("qv", 2) + qbar(["dV"], ["L:r", "B4"]) + trload(WV, 0, True, ["B4", "L:v"], 1))
    P.dsw(aZw, VR, 1, 0, pw=["L:Qtab"], pr=["B3"])
    def dsw2(addr, src, off, pw):
        for i in range(2):
            o = P.dsw(addr, src + i, 1, off + 4 * i, pw=[pw], pr=["B3"]); o.lazy = True
    mrr = lanemask(lambda l: (l >> 4) == ((l >> 2) & 3))
    def srr(z):
        d = P.alloc()
        for ks in range(2): P.mfma(d, ("v", KP[z] + 4 * ks), ("v", QP[z] + 4 * ks), first=(ks == 0), note="Srr")
        for i in range(4): P.exp(d + i)
        P.op2("v_add_f32", y0, d, d + 1); P.op2("v_add_f32", y1, d + 2, d + 3)
        P.cvt(d, d, d + 1); P.cvt(d + 1, d + 2, d + 3); P.op2("v_add_f32", d + 2, y0, y1)
        for i in range(3):
            o = P.dsw(aRw, d + i, 1, z * 256 + 4 * i, pw=["L:rr"]); o.cost = 8; o.early = 6000
        P.release(d)
    for z in range(2):
        for k_, (W, X, off, pw, nt) in enumerate(((WK, KP[z], 0, "L:Ktab", "Krem"), (WQ, QP[z], 512, "L:Qtab", "Qrem"))[::(1, -1)[z]]):
            for n_, mt in enumerate(MTO(z + (W == WQ))):
                if z == 1 and k_ == 0 and n_ == 1: srr(0); sc(P, 0, [6]); sc(P, 1, [6], Q1)
                b = X + 4 * (mt >> 1) + (mt & 1)
                pchain(P, W, mt, er[z], False, b, nt, dst1=b + 2)
            for ks in range(2):
                for hf in range(2): dsw2(aTabW[ks], X + 4 * ks + 2 * hf, z * 4 * US + off + hf * 64, pw)
            if z == 0 and k_ == 0: P.dsr(KRS, 4, aKr, 0, ["L:Ktab"], "KR")
    for z in (1, 0):
        for n_, mt in enumerate(MTO(z)):
            pchain(P, WV, mt, er[z], True, VP[z] + 2 * mt, "Vrem")
            dsw2(aVw, VP[z] + 2 * mt, z * 4 * US + mt * 128, "L:Vtab")
            if z == 1 and n_ == 0: srr(1)
    e0 = eload(P, 0, ["B1"])
    for mt in MTO(1): vch(P, 5, mt, e5)
    P.add(f"ds_read2_b32 {v(VR, 2)}, {v(aVr)} offset0:0 offset1:8", "DR", r=[v(aVr), "L:Vtab"], w=vs(VR, 2), note="VR")
    for mt in range(2): vch(P, 0, mt, e0)
    bar(["dE1"], ["L:v", "B5"])
    e1 = eload(P, 1, ["B5"], fixed=e4regs)
    S(f"s_lshl_b32 s{sM}, s{sH}, 14\ns_lshl_b32 s{sX}, s{sP}, 7\ns_add_u32 s{sM}, s{sM}, s{sX}", [f"s{sH}", f"s{sP}"], [f"s{sM}", f"s{sX}"])
    def fr(j):
        so = sD + 1 + j % 2
        if j % 4 == 0: S(f"s_add_u32 m0, s{sV}, {SV + j * 1024}", [f"s{sV}"], ["m0"])
        S(f"s_add_u32 s{so}, s{sM}, {j * 2048 - (j % 4) * 1024}", [f"s{sM}"], [f"s{so}"])
        return timed(P.add(f"buffer_load_dwordx4 {v(vWr)}, {srd(sWR)}, s{so} offen offset:{(j % 4) * 1024} lds", "VL", r=[v(vWr), "m0", f"s{so}", "B5"], w=["dO", "ord"], note="wdma"), tO, 0, 8)
    assert not P.queue
    P.queue.extend(mix([], [lambda j=j: fr(j) for j in range(8)], 4, T("qo", 6)))
    P.salu(f"s_mul_i32 s{sSo}, s{sH}, {TILE - BLK}\ns_add_u32 s{sLn}, s{sLn}, s{sSo}\ns_add_u32 s{sLn}, s{sLn}, {2*BUFSZ}\ns_mov_b32 s{sSo}, 8192", r=[f"s{sLn}", f"s{sH}"], w=[f"s{sLn}", f"s{sSo}"])
    for mt in range(2, 4): vch(P, 0, mt, e0)
    efree(P, e0)
    g_ = T("u0g", 1)
    def kv(t_, e, hooks):
        for mt in range(4): kch(P, t_, mt, e); hooks.get(mt, lambda: 0)()
        for mt in range(4):
            vch(P, t_, mt, e)
            if mt == 0: sc(P, 0, [t_]); sc(P, 1, [t_], Q1)
            hooks.get(4 + mt, lambda: 0)()
        efree(P, e)
    X = {}; R = Rem(P)
    def h2(): X[2] = eload(P, 2, ["B5"])
    def h4(): bar(["dE2"], ["B6"]); X[4] = eload(P, 4, ["B6"], fixed=e4regs)
    def h3(): X[3] = eload(P, 3, ["B6"])
    def hw():
        x = trload(WR, 0, True, ["B7", "L:w"])
        P.queue.extend(qbar(["dO"], ["B7"]) + x[:18] + [None] * 10 + x[18:])
    def h5(): X[5] = eload(P, 5, ["B1"], fixed=[RES[1] + 4 * i for i in range(4)]); R.s(1); R.soft()
    kv(1, e1, {6: h2})
    kv(2, X[2], {5: h4})
    kv(4, X[4], {0: lambda: dma_spread(P, 0, [0, 1], ["B6"], g_), 2: lambda: dma_spread(P, 0, [2, 3], ["B6"], g_), 6: h3, 7: hw})
    kv(3, X[3], {3: R.ld, 5: lambda: R.s(0), 6: h5})
    lsum(P, 0)
    e0 = eload(P, 0, ["B1"])
    for mt in range(4):
        rch(P, mt, X[5], 0)
        if mt == 1: bar([], ["L:w", "B8", "B"])
        if mt >= 2: dma_spread(P, 1, [2 * mt - 4, 2 * mt - 3], ["B8"], g_)
    for n_, mt in enumerate(MTO(1)):
        rch(P, mt, e0, 1)
        if n_ == 0: m32st(P, 0)
        if n_ in (1, 2): dma_spread(P, 2, [2 * n_ - 2, 2 * n_ - 1], ["B8"], g_)
    efree(P, e0)
    assert P.hook is None and not P.queue
    P.share()
    seen = set()
    for o in P.ops:
        for x in o.r:
            assert x in seen or not (x[0] == "a" and x[1:].isdigit() or x[0] == "B"), (x, o)
        seen.update(o.w)

def epilogue(P):
    if CFG.get("epol") is not None: P.stpol = ["", " nt", " sc1", " sc0 sc1"][CFG["epol"]]
    P.add("s_barrier", "BAR", r=["dma"], w=["B"])
    L, t, aCr, aSr, aVa, aRr, aLr = aKr, aVr, aQa, aPw, aPr, aCw, aLw
    RA = K0; VA = K0 + 32; PR = QF
    lane_id(P, L)
    P.salu(f"s_mul_i32 s{sT2}, s{sW}, {TABSZ}\ns_add_u32 s{sT2}, s{sT2}, {TAB0}", r=[f"s{sW}"], w=[f"s{sT2}"])
    lane_expr(P, aCr, L, t, [(2, 2, US), (0, 2, CST), (4, 2, 16)], sconst=sT2)
    lane_expr(P, aLr, L, t, [(2, 2, US), (0, 2, CST)], const=256, sconst=sT2)
    lane_expr(P, aVa, L, t, [(4, 2, US), (0, 4, 8)], const=VOFF, sconst=sT2)
    P.salu(f"s_lshl_b32 s{sT3}, s{sW}, 9", r=[f"s{sW}"], w=[f"s{sT3}"])
    lane_expr(P, aRr, L, t, [(0, 4, 16)], const=RR0, sconst=sT3)
    lane_expr(P, aSr, L, t, [(0, 2, 256), (2, 2, UB), (4, 2, 16)], const=96 * 256)
    mrr = lanemask(lambda l: (l >> 4) == ((l >> 2) & 3))
    def mark(n0, e):
        for o in P.ops[n0:]:
            if o.kind == "VS": o.early = e
    def rem_ld():
        for mt in range(4):
            for z in range(2): P.dsr(VA + 4 * mt + 2 * z, 2, aVa, z * 4 * US + mt * 128, ["L:Vtab"], "ctx")
        for z in range(2): P.dsr(PR + 4 * z, 2, aRr, z * 256, ["L:rr"], "ctx")
        P.mov2(PR + 2)
        P.salu(f"s_mov_b32 vcc_lo, 0x{mrr & 0xffffffff:x}\ns_mov_b32 vcc_hi, 0x{mrr >> 32:x}", w=["vcc"])
        for x in (PR, PR + 1, PR + 4, PR + 5): P.valu(f"v_cndmask_b32 {v(x)}, 0, {v(x)}, vcc", [v(x), "vcc"], [v(x)])
    def rem_final(z, r):
        c = [P.alloc() for _ in range(5)]; ls = c[4]
        for mt in range(4): P.dsr(c[mt], 4, aCr, z * 4 * US + 64 * mt, ["L:Qtab"], "ctx")
        P.dsr(ls, 4, aLr, z * 4 * US, ["L:Qtab"], "lsum"); P.dsr(PR + 6 + z, 1, aRr, z * 256 + 8, ["L:rr"], "lsum")
        P.op2("v_add_f32", ls, ls, ls + 1); P.op2("v_add_f32", ls + 2, ls + 2, ls + 3); P.op2("v_add_f32", ls, ls, PR + 6 + z); P.op2("v_add_f32", ls, ls, ls + 2)
        P.valu(f"v_rcp_f32 {v(ls + 1)}, {v(ls)}", [v(ls)], [v(ls + 1)], kind="T")
        P.valu(f"v_max3_f32 {v(CHK)}, {v(CHK)}, {v(ls)}, {v(ls + 1)}", [v(CHK), v(ls), v(ls + 1)], [v(CHK)])
        fin = []
        for mt in range(4):
            P.mfma(c[mt], ("v", VA + 4 * mt), ("v", PR + 2 * z), note="PVrr")
        for mt in range(4):
            for i in range(4):
                x = r + 4 * mt + i
                P.valu(f"v_fmac_f32 {v(x)}, {v(c[mt] + i)}, {v(ls + 1)}", [v(x), v(c[mt] + i), v(ls + 1)], [v(x)])
            if mt & 1: fin += pack_half(P, r, mt >> 1, "Drem")
        for q in c: P.release(q)
        st = (sSo, sStr)[z]
        P.salu(f"s_lshl_b32 s{st}, s{sH}, 7\ns_add_u32 s{st}, s{st}, s{sB0}\ns_add_u32 s{st}, s{st}, {z * 4 * UB}", r=[f"s{sH}", f"s{sB0}"], w=[f"s{st}"])
        stores(P, r, st, aSr, "Drem", fin)
    e0 = ESet(P, 0, ["B"], "Erem")
    sc(P, 5, [6, 0, 1, 2])
    if ORDER.split().index("l4") < ORDER.split().index("cut"): lsum(P, 4)
    n0 = len(P.ops)
    for mt in range(4):
        pv(P, 4, [mt])
        if mt < 3: sc(P, 5, [3 + mt])
    rem_ld()
    for mt in range(4): chain(P, WR, mt, e0, False, RA + 4 * mt, "Rrem")
    efree(P, e0)
    m32st(P, 5, 4, sStP)
    mark(n0, 1500)
    e1 = ESet(P, 1, ["B"], "Erem")
    n0 = len(P.ops); rem_final(0, RA); mark(n0, 700)
    lsum(P, 5)
    for mt in range(4): chain(P, WR, mt, e1, False, RA + 16 + 4 * mt, "Rrem")
    efree(P, e1)
    n0 = len(P.ops)
    pv(P, 5, range(4))
    m32st(P, None, 5, sStP)
    mark(n0, 300)
    n0 = len(P.ops); rem_final(1, RA + 16); mark(n0, 0)
    for o in P.ops:
        if o.kind == "DR" and o.note in ("lsum", "ctx"): o.urgent = True

def program():
    tag = "f"
    sched.CRIT_WIN = CFG["cw"]; sched.BACKPACK = bool(CFG["bp"]); sched.DS_LAT = CFG.get("dl", 84); sched.DS_COV = CFG.get("dc", 200); sched.DS_FINE = True; sched.NOISE[:] = [CFG["noise"], CFG["seed"]]
    old.CFG["stamps"] = CFG["stamps"]
    init = [f"s_mov_b32 s{sCnt}, {5 if CFG.get('lst') or CFG.get('sst') else 8}", f"s_mov_b32 s{sBits}, 64", f"s_mov_b32 s{sStC}, s{sB0}", f"s_mov_b32 s{sStP}, 0x7ff00000", f"s_mov_b32 s{sTog}, {2*BUFSZ}",
            f"s_mov_b32 s{sBias}, {f32(math.log2(1 + 2 ** -8.5))}", f"s_mov_b32 s{sBias+1}, 0"]
    drain = [Item(nop=8), Item(lgkm=0)]
    rep = bool(CFG.get("report"))
    def mk():
        P = Prog(); body(P); assert len(P.free) == NPOOL
        mk.shr = P.share()
        for i_, o in enumerate(P.ops): o.late = i_ >= P.cut
        for o in P.ops:
            if o.kind in ("VL", "DW"): o.pin = True
        if CFG["seam"]:
            P.seam.pin = True; P.ops[0].urgent = True; P.ops[0].early = 20000; P.ops[0].glue = 99
            for o in P.ops[1:]: o.after = list(o.after) + [P.ops[0]]
        else: [o for o in P.ops if o.kind in MK][-1 - CFG.get("cutm", 8)].pin = True
        return P.ops
    P2 = Prog(); body(P2)
    pre3 = []
    br = [Item(raw=f"s_cmp_lg_u32 s{sCnt}, 0"), Item(raw=f"s_cbranch_scc1 L_loop{tag}")]
    i2, left, t2, e2 = schedule_loop(alloc_loop(mk, POOL), report=rep)
    k_ = max(it.op.it for it in i2 if it.op is not None)
    if CFG["seam"] == 2:
        assert i2[-1].op.kind == "VS" and i2[-2].op.kind == "VS"
        assert i2[0].op.marker if CFG["sync"] else (i2[0].vm is not None and i2[0].lgkm is None and i2[1].op.kind == "BAR")
        s2 = i2.pop(); s2.op.it = k_ - 1; wt = i2.pop(0); i2.insert(0, s2)
        c = copy.copy(s2.op); Op._n += 1; c.id = Op._n; c.after = []; pre3 = [Item(op=c)]
        m = max(n for n, it in enumerate(i2) if it.op is not None and it.op.kind == "M32")
        assert m == len(i2) - 2
        i2.insert(m + 1, br.pop(0))
        n = m - CFG.get("wb", 12)
        while not (i2[n].op is not None and i2[n].op.kind == "M16" and i2[n + 1].op is not None and i2[n + 1].op.kind != "S"): n -= 1
        if not CFG["sync"]: i2.insert(n + 1, Item(vm=wt.vm - 2))
    i2 = fix_items(i2 + br, i2)
    cur = [(n, it.op) for n, it in enumerate(i2) if it.op is not None and it.op.it == k_]
    X = max(n for n, o in cur if not o.late) + 1
    assert all(it.op is None or it.op.it == k_ for it in i2[X:])
    e4regs = [None] * 4
    for n, o in cur:
        tg = getattr(o, "tag", None)
        if tg and tg[0] == "e4": e4regs[tg[1]] = int(o.w[0][1:])
    rest = [q for q in POOL if q not in e4regs]
    head = []
    for n, o in cur:
        if n < X and o.late:
            c = copy.copy(o); Op._n += 1; c.id = Op._n; c.after = []; c.early = None; c.r = c.r + ["B"]; head.append(c)
    if CFG["u0"] == 2:
        P1 = Prog(); P1.free = collections.deque([0] * len(rest)); unit0b(P1, e4regs)
        ia, _, _ = schedule2(P1.ops, strict_m=True, pool=rest)
    else:
        P1 = Prog(); P1.free = collections.deque([0] * (len(rest) - 1)); unit0(P1, e4regs, rest[-1])
        ia, _, _ = schedule2(P1.ops, strict_m=True, pool=rest[:-1])
    i1, t1, e1 = schedule2(bind([it.op for it in ia if it.op is not None], schedule2.vmap) + head, strict_m=True, report=rep)
    i1 = i1 + drain + [Item(raw=f"s_branch L_entry{tag}")]
    print("   entry at window item", X, "of", len(i2), "model t", i2[X].op.issue if i2[X].op else None, "head ops", len(head), file=sys.stderr)
    print("   shared turns / chains:", mk.shr, file=sys.stderr)
    P3 = Prog(); epilogue(P3); P3.share()
    busy = {int(x[1:]) // 4 * 4 for o in left for x in o.r + o.w + o.c if x[0] == "v" and x[1:].isdigit()}
    pool3 = [q for q in POOL if q not in busy] + [q for q in POOL if q in busy]
    ia, _, _ = schedule2(P3.ops, strict_m=True, pool=POOL)
    vm_ = {k: pool3[POOL.index(p_)] for k, p_ in schedule2.vmap.items()}
    i3, t3, e3 = schedule2(left + bind([it.op for it in ia if it.op is not None], vm_), strict_m=True, report=rep); i3 = fix_items(i2 + br, pre3 + old.stamp_q() + i3)
    kinds = collections.Counter(o.kind for o in P2.ops)
    print(f"[{tag}] model: prologue {t1} (mfma {e1})  loop {t2} (mfma {e2})  epilogue {t3} (mfma {e3})  {dict(kinds)}", file=sys.stderr)
    bad = verify(i1 + i2[X:] + br + i2 + br + i3)
    i2 = i2[:X] + [Item(raw=f'L_entry{tag}:')] + old.stamp_q() + i2[X:]
    print("verify problems:", bad, file=sys.stderr)
    def filt(items):
        r = []
        for it in items:
            if it.op is not None:
                if CFG["nostore"] and it.op.kind == "VS": it = Item(nop=1)
                elif CFG["nodma"] and it.op.kind == "VL": it = Item(nop=1)
            r.append(it)
        return r
    an = CFG["annotate"]
    if CFG.get("lst"):
        r = []; nm = 0; mt_ = []
        for it in i2:
            r.append(it)
            if it.op is not None and it.op.kind in MK:
                k, rem_ = divmod(nm - CFG.get("lst0", 0), CFG["lst"])
                if rem_ == 0 and k == 14: r.append(Item(raw="s_mov_b32 s90, s88"))
                if rem_ == 0 and 0 <= k < 15:
                    r.append(Item(raw=f"s_memtime s[{60+2*k}:{61+2*k}]")); mt_.append((it.op.issue, it.op.note))
                nm += 1
        i2 = r
        print("model stamps:", [x[0] - mt_[0][0] for x in mt_], [x[1] for x in mt_], file=sys.stderr)
    if CFG.get("sst"):
        T = lambda k: Item(raw=f"s_memtime s[{60+2*k}:{61+2*k}]")
        ms = [n for n, it in enumerate(i2) if it.op is not None and it.op.kind in MK]
        ins = {ms[-4]: T(20 - 8), ms[-2]: T(21 - 8), len(i2) - 1: T(22 - 8), 0: T(4), 1: T(5), ms[0]: T(6), ms[1]: T(7), ms[2]: T(8), ms[4]: T(9), ms[8]: T(10), ms[12]: T(11)}
        r = [T(3)]
        for n, it in enumerate(i2):
            r.append(it)
            if n in ins: r.append(ins[n])
            if n == ms[200]: r += [Item(raw=f"s_mov_b32 s{60+2*k}, s{84+2*k}") for k in range(3)]
        i2 = r
    if CFG.get("pst"):
        nb = [n for n, it in enumerate(i1) if it.op is not None and it.op.kind == "BAR"]
        if CFG["pst"] == 1:
            marks = []
            for b_ in nb:
                x = b_
                while i1[x - 1].op is None: x -= 1
                marks += [x, b_ + 1]
            marks = marks[:14] + [len(i1) - 1]
        else:
            ms = [n + 1 for n, it in enumerate(i1) if it.op is not None and it.op.kind in MK]
            marks = ms[CFG.get("pst0", 0)::CFG["pst"]][:15]
        print("pst model:", [(i1[n].op or i1[n - 1].op or i1[n - 2].op).issue for n in marks[:-1]], file=sys.stderr)
        r = []
        for n, it in enumerate(i1):
            if n in marks:
                k = marks.index(n) + 1; r.append(Item(raw=f"s_memtime s[{60+2*k}:{61+2*k}]"))
            r.append(it)
        i1 = r
    nvm = [n for n, it in enumerate(i1) if it.op is not None and it.op.kind in ("VL", "VG")][11 + 4 * CFG["tw"]] + 1 if CFG["u0"] == 2 else 0
    i1 = i1[:nvm] + [Item(raw=x) for x in program.pre2 + init] + i1[nvm:]
    out = []
    for it in i1: out += it.lines(an)
    if CFG["sync"]:
        rd, cp = [[it.op.text for it in i2 if it.op is not None and it.op.note == "chk" and it.op.kind == k][0] for k in ("DR", "V")]
        out += ["L_spin:", rd, "s_waitcnt lgkmcnt(0)", cp, "s_nop 1", "s_cbranch_vccnz L_spin", "s_branch L_back"]
    out += [".p2align 6", f"L_loop{tag}:"]
    for it in filt(i2) + br + filt(i3): out += it.lines(an)
    return out

def main():
    out = []
    for l in open("/code/" + NAME + ".s.ref").read().split("\n"):
        if l.startswith("; @launch"): break
        if l.startswith(";"): out.append(l)
    out.append(f"; @launch grid=(256,1,1) block=(256,1,1) lds={LDS_TOTAL}")
    out += """; GENERATED by gen/gen6.py (own generator + list scheduler gen/sched.py) - do not edit by hand
; One workgroup (4 waves, 512 registers each) per CU; wave = (batch stream p, head h); 8 batches per stream.
; Weights of the head live in the 256 AGPRs as 16x16x32 MFMA fragments (Wq pre-multiplied by 0.125*log2(e)).
; e is streamed through an LDS double buffer (LDS-DMA); K^T,Q^T,V -> S^T -> P -> ctx^T chain stays in registers.
; Rows 96..99 of the 8 batches are projected together (two packed 16-row tiles, tables in LDS); every product with
; those 4 rows and the softmax row sums use the sparse MFMA (two output rows per dot product, one half each).
; Softmax guard: the fast path evaluates exp2(s) without a shift and tracks max(l, 1/l) of EVERY row sum l.
; If any row sum of the workgroup leaves [2^-40, 2^40] (so a shift could matter), the workgroup recomputes all
; of its batches in the second copy of the program (after L_fast_end), which subtracts the true row maximum.""".split("\n")
    out += ['.amdgcn_target "amdgcn-amd-amdhsa--gfx950"', ".text", f".globl {NAME}_kernel", ".p2align 8", f".type {NAME}_kernel,@function", f"{NAME}_kernel:"]
    if CFG["stamps"]: out += ["s_memtime s[60:61]", "s_memrealtime s[62:63]"]
    if CFG.get("pst"): out += ["s_memtime s[60:61]"]
    out += ["s_cmp_ge_u32 s2, 256", "s_cbranch_scc1 L_end"]
    if CFG["u0"] == 2: out += [f"s_load_dwordx2 s[{r_}:{r_+1}], s[0:1], {o_}" for r_, o_ in ((sWQ, 8), (sE, 0), (sWK, 16), (sWV, 24), (sWR, 32), (sO, 40))]
    else: out += ["s_load_dwordx8 s[4:11], s[0:1], 0", "s_load_dwordx4 s[12:15], s[0:1], 32"]
    if CFG["pf"] == 1:
        out += ["s_getpc_b64 s[58:59]", "L_pc:", "v_lshlrev_b32 v2, 7, v0", "v_min_u32 v2, L_fast_end-L_pc-4, v2", f"global_load_dword v{QF}, v2, s[58:59]"]
    elif CFG["pf"] == 2:
        out += ["s_getpc_b64 s[58:59]", "L_pc:", "s_lshl_b32 s3, s2, 9", "s_and_b32 s3, s3, 0x7000", "v_lshrrev_b32 v2, 3, v0", "v_lshl_add_u32 v2, v2, 7, s3",
                "v_min_u32 v2, L_fast_end-L_pc-4, v2", f"global_load_dword v{QF}, v2, s[58:59]"]
    elif CFG["pf"] == 3:
        out += ["s_getpc_b64 s[58:59]", "L_pc:", "s_lshl_b32 s3, s2, 7", "s_and_b32 s3, s3, 0x7c00", "v_lshrrev_b32 v2, 5, v0", "v_lshl_add_u32 v2, v2, 7, s3",
                "v_min_u32 v2, L_fast_end-L_pc-4, v2", f"global_load_dword v{QF}, v2, s[58:59]"]
    elif CFG["pf"] == 4:
        out += ["s_getpc_b64 s[58:59]", "L_pc:", "s_lshl_b32 s3, s2, 8", "s_and_b32 s3, s3, 0x7800", "v_lshrrev_b32 v2, 4, v0", "v_lshl_add_u32 v2, v2, 7, s3",
                "v_min_u32 v2, L_fast_end-L_pc-4, v2", f"global_load_dword v{QF}, v2, s[58:59]"]
    pre = f"""
v_lshrrev_b32 v1, 6, v0
s_mov_b32 s{sE+3}, 0x20000
v_readfirstlane_b32 s{sW}, v1
s_mov_b32 s{sE+2}, {NB * BBATCH}
s_mov_b32 s{sWQ+2}, 32768
s_mov_b32 s{sWQ+3}, s{sE+3}
s_lshr_b32 s{sP}, s{sW}, 1
s_and_b32 s{sH}, s{sW}, 1
s_lshl1_add_u32 s{sB0}, s2, s{sP}
s_mul_i32 s{sB0}, s{sB0}, {BBATCH}
s_mov_b64 s[{sWK+2}:{sWK+3}], s[{sWQ+2}:{sWQ+3}]
s_mov_b64 s[{sWV+2}:{sWV+3}], s[{sWQ+2}:{sWQ+3}]
s_mov_b64 s[{sWR+2}:{sWR+3}], s[{sWQ+2}:{sWQ+3}]
"""
    pre2 = f"""
s_mov_b32 s{sC}, {f32(0.125 * math.log2(math.e))}
s_mov_b32 s{sO+2}, s{sE+2}
s_mov_b32 s{sO+3}, s{sE+3}
"""
    out += [l for l in pre.split("\n") if l]
    program.pre2 = [l for l in pre2.split("\n") if l]
    out += program()
    if CFG["stamps"]:
        for it in [Item(vm=0)] + old.stamp_q() + old.stamp_dump(): out += it.lines()
    if CFG.get("lst") or CFG.get("sst") or CFG.get("pst"):
        out += ["s_load_dwordx2 s[92:93], s[0:1], 56", "s_waitcnt lgkmcnt(0)", "s_mov_b32 s94, 0x100000", "s_mov_b32 s95, 0x20000",
                "s_lshl_b32 s3, s2, 2", f"s_add_u32 s3, s3, s{sW}", "s_lshl_b32 s3, s3, 8", "v_mov_b32 v2, 0", "s_mov_b64 exec, 1"]
        for n in range(16):
            out += [f"v_mov_b32 v{4+2*n}, s{60+2*n}", f"v_mov_b32 v{5+2*n}, s{60+2*n}", f"buffer_store_dwordx2 v[{4+2*n}:{5+2*n}], v2, s[92:95], s3 offen offset:{8*n}"]
        out += ["s_mov_b64 exec, -1"]
    if CFG["fallback"]:
        out += [f"v_mov_b32 v1, {f32(2.0 ** CFG['thr'])}", f"v_cmp_nle_f32 vcc, {v(CHK)}, v1", f"s_lshl_b32 s{sT0}, s{sW}, 2", f"s_add_u32 s{sT0}, s{sT0}, {FLAG}",
                "s_or_b32 s3, vcc_lo, vcc_hi", f"v_mov_b32 v2, s{sT0}", "v_mov_b32 v3, s3", "ds_write_b32 v2, v3", f"v_mov_b32 v2, {FLAG}", "s_waitcnt lgkmcnt(0)", "s_barrier",
                "ds_read_b128 v[4:7], v2", "s_waitcnt lgkmcnt(0)", "v_or_b32 v4, v4, v5", "v_or3_b32 v4, v4, v6, v7", "s_nop 0", "v_readfirstlane_b32 s3, v4", "s_nop 3",
                "s_cmp_eq_u32 s3, 0", "s_cbranch_scc1 L_end", "L_fast_end:", "s_waitcnt vmcnt(0)", "s_barrier"]
        old.CFG["stamps"] = 0
        sched.CRIT_WIN = old.CFG["cw"]; sched.BACKPACK = bool(old.CFG["bp"]); sched.DS_LAT = 84; sched.DS_COV = 0; sched.DS_FINE = False; sched.NOISE[:] = [old.CFG["noise"], old.CFG["seed"]]
        out += old.program(True, "s")
    else:
        out += ["L_fast_end:"]
    out += ["L_end:", "s_endpgm", '.section .rodata,"a"', ".p2align 6", f".amdhsa_kernel {NAME}_kernel",
            "  .amdhsa_next_free_vgpr 512", "  .amdhsa_next_free_sgpr 102", "  .amdhsa_accum_offset 256", "  .amdhsa_group_segment_fixed_size 0",
            "  .amdhsa_kernarg_size 64", "  .amdhsa_user_sgpr_count 2", "  .amdhsa_user_sgpr_kernarg_segment_ptr 1", "  .amdhsa_system_sgpr_workgroup_id_x 1",
            ".end_amdhsa_kernel"]
    open(sys.argv[1], "w").write("\n".join(out) + "\n")

if __name__ == "__main__":
    main()
```

```python
import collections

VALU_KINDS = ("V", "T", "P", "DPP")
MEM_KINDS = ("DR", "DW", "VL", "VS", "VG")
M_KINDS = ("M32", "M16", "SM")

class Op:
    _n = 0
    def __init__(self, text, kind, r=(), w=(), c=(), after=(), note="", cost=None, early=None):
        self.text = text
        self.kind = kind
        self.r = list(r)
        self.w = list(w)
        self.c = list(c)
        self.after = list(after)
        self.note = note
        self.ninst = len([l for l in text.split("\n") if l.strip()])
        if cost is None:
            cost = {"T": 8, "P": 8, "DW": 8, "VS": 8}.get(kind, 4) if self.ninst == 1 else 4 * self.ninst
        self.cost = cost
        self.early = early
        Op._n += 1; self.id = Op._n
    def __repr__(self):
        return f"<{self.kind} {self.text.splitlines()[0]}>"

def is_vreg(x):
    return x[0] in "va" and x[1:].isdigit()
def is_sreg(x):
    return (x[0] == "s" and x[1:].isdigit()) or x in ("vcc",)

def edge(p, q, reg, typ):
    ws = 0; lat = p.cost; cnt = None
    pk, qk = p.kind, q.kind
    if typ == "RAW" or typ == "RAWC":
        if pk in M_KINDS:
            big = pk == "M32"
            if qk in M_KINDS and typ == "RAWC":
                if qk == pk and p.w == q.c and p.text.split()[0] == q.text.split()[0]:
                    ws = 0; lat = 32 if big else 16
                else:
                    ws = 10 if big else 6; lat = 48 if big else 32
            else:
                ws = 12 if big else 8; lat = 56 if big else 40
        elif pk in VALU_KINDS:
            if is_vreg(reg):
                if qk in M_KINDS: ws = 2; lat = p.cost + 8
                elif qk in ("P", "DPP"): ws = 2; lat = p.cost + 8
                elif pk == "T" and qk in VALU_KINDS: ws = 1; lat = p.cost + 4
                if "readfirstlane" in q.text or "readlane" in q.text: ws = max(ws, 1)
            else:
                if qk in VALU_KINDS: ws = 2
                elif qk in ("VL", "VS", "VG"): ws = 5
                elif qk == "S":
                    ws = 2
                    if "cbranch" in q.text: lat = 36
        elif pk == "S":
            if reg == "m0" and qk in ("VL", "DR", "DW"): ws = 1
        elif pk == "DR":
            if is_vreg(reg): cnt = "lgkm"; lat = 96
        elif pk == "DW":
            if qk == "BAR": cnt = "lgkm"; lat = 64
        elif pk == "VL":
            if reg != "ord": cnt = "vm"; lat = 0
        elif pk == "VG":
            cnt = "vm"; lat = 500
        elif pk == "SL":
            cnt = "lgkm0"; lat = 100
    elif typ == "WAW":
        if pk in M_KINDS:
            big = pk == "M32"
            if qk in M_KINDS:
                if not (qk == pk and p.w == q.w): ws = 10 if big else 6
            else:
                ws = 12 if big else 8; lat = 56 if big else 40
        elif pk == "DR" and is_vreg(reg):
            if qk != "DR": cnt = "lgkm"; lat = 128
        elif pk == "VG" and is_vreg(reg):
            cnt = "vm"
    elif typ == "WAR":
        if pk in ("VS", "DW") and is_vreg(reg) and qk not in ("S",): ws = 2
        if pk == "DR" and qk == "BAR": cnt = "lgkm"; lat = 128
    elif typ == "WARC":
        if qk not in M_KINDS: ws = 7 if pk == "M32" else 3
    return ws, lat, cnt

def build_deps(ops, carry=None):
    lastw = {}; readers = collections.defaultdict(list)
    for q in ops:
        d = {}
        def add(p, reg, typ):
            if p is q: return
            ws, lat, cnt = edge(p, q, reg, typ)
            o = d.get(p.id)
            if o is None: d[p.id] = [p, ws, lat, cnt]
            else:
                o[1] = max(o[1], ws); o[2] = max(o[2], lat); o[3] = o[3] or cnt
        for x in q.r:
            if x in lastw: add(lastw[x], x, "RAW")
        for x in q.c:
            if x in lastw: add(lastw[x], x, "RAWC")
        for x in q.w:
            if x in lastw: add(lastw[x], x, "WAW")
            for (p, isc) in readers[x]: add(p, x, "WARC" if isc else "WAR")
        for p in q.after:
            if p.id not in d: d[p.id] = [p, 0, q.delay if getattr(p, "marker", False) and hasattr(q, "delay") else p.cost, None]
        q.preds = list(d.values())
        for x in q.w:
            lastw[x] = q; readers[x] = []
        for x in q.r: readers[x].append((q, False))
        for x in q.c:
            if x not in q.w: readers[x].append((q, True))

def schedule(ops, verbose=False, m_window=64):
    ids = {o.id for o in ops}
    for o in ops:
        o.after = [p for p in o.after if p.id in ids]
    build_deps(ops)
    succ = collections.defaultdict(list)
    for q in ops:
        for (p, ws, lat, cnt) in q.preds: succ[p.id].append((q, lat))
    T = 0
    for o in ops:
        if o.kind in M_KINDS:
            o.ideal = T; T += 32 if o.kind == "M32" else 16
    end = T
    for o in reversed(ops):
        a = end
        for (q, lat) in succ[o.id]: a = min(a, q.alap - lat)
        if o.kind in M_KINDS: a = min(a, o.ideal)
        if o.early: a -= o.early
        o.alap = a
    for i, o in enumerate(ops):
        o.idx = i; o.npred = len(o.preds); o.issue = None; o.pos = None
    ready = [o for o in ops if o.npred == 0]
    out = []
    t = 0; pos = 0
    last_valu_end = -100; last_m = -100; m_free = 0
    def earliest(o):
        b = t
        if o.kind not in ("S", "BAR"): b = max(b, last_m + 8)
        if o.kind in MEM_KINDS: b = max(b, last_valu_end + 8)
        if o.kind in M_KINDS: b = max(b, m_free)
        nops = 0
        for (p, ws, lat, cnt) in o.preds:
            b = max(b, p.issue + lat)
            nops = max(nops, ws - (pos - p.pos - p.ninst))
        if nops > 0: b = max(b, t + 4 * nops)
        return b
    mf_idle = 0
    while ready:
        cand = [(earliest(o), o) for o in ready]
        ms = [(e, o) for (e, o) in cand if o.kind in M_KINDS]
        fs = [(e, o) for (e, o) in cand if o.kind not in M_KINDS]
        pick = None
        mnext = None
        if ms:
            lo = min(o.idx for e, o in ms)
            emin = min(e for e, o in ms)
            mnext = min(((e, o) for (e, o) in ms if e <= emin + 8), key=lambda x: x[1].idx)
        if mnext and mnext[0] <= t:
            pick = mnext
        else:
            lim = mnext[0] if mnext else 1 << 60
            fit = [(e, o) for (e, o) in fs if e + o.cost <= lim + 0]
            if fit:
                emin = min(e for e, o in fit)
                now = [(e, o) for (e, o) in fit if e <= max(t, emin)]
                just_m = out and out[-1].kind in M_KINDS or (len(out) > 1 and out[-1].kind in ("S",) + MEM_KINDS and out[-2].kind in M_KINDS)
                if out and out[-1].kind in M_KINDS:
                    sal = [(e, o) for (e, o) in fit if o.kind == "S" and e <= t]
                    if sal: now = sal
                    else:
                        mem = [(e, o) for (e, o) in fit if o.kind in MEM_KINDS and e <= last_m + 8]
                        if mem: now = mem
                elif just_m:
                    mem = [(e, o) for (e, o) in fit if o.kind in MEM_KINDS and e <= max(t, last_m + 8)]
                    if mem: now = mem
                pick = min(now, key=lambda x: (x[1].alap, x[1].idx))
            elif mnext:
                late = [(e, o) for (e, o) in fs if e <= t and o.alap < mnext[1].alap - 64]
                if late and lim - t >= 4: pick = min(late, key=lambda x: (x[1].alap, x[1].idx))
                else: pick = mnext
            else:
                pick = min(fs, key=lambda x: (x[0], x[1].alap))
        e, o = pick
        nops = 0
        for (p, ws, lat, cnt) in o.preds:
            nops = max(nops, ws - (pos - p.pos - p.ninst))
        if nops > 0: pos += nops
        o.issue = e; o.pos = pos; pos += o.ninst
        if o.kind in M_KINDS:
            mf_idle += max(0, e - m_free)
            last_m = e; m_free = e + (32 if o.kind == "M32" else 16); t = e + 4
        else:
            t = e + o.cost
            if o.kind in VALU_KINDS: last_valu_end = t
        out.append(o); ready.remove(o)
        for (q, lat) in succ[o.id]:
            q.npred -= 1
            if q.npred == 0: ready.append(q)
    assert len(out) == len(ops)
    return out, max(t, m_free), end

def finalize(seq, loop=False, entry_drained=True, annotate=False):
    import copy
    if loop:
        a = [copy.copy(o) for o in seq]; b = [copy.copy(o) for o in seq]
        for i, o in enumerate(a + b):
            Op._n += 1; o.id = Op._n; o.after = []
        full = a + b; start = len(a)
    else:
        full = [copy.copy(o) for o in seq]
        for o in full: o.after = []
        start = 0
    build_deps(full)
    dsn = 0; vmn = 0
    for i, o in enumerate(full):
        o.i = i
        if o.kind in ("DR", "DW"): dsn += o.ninst if o.kind in ("DR", "DW") else 0
        o.dsn = dsn
        if o.kind in ("VL", "VS", "VG"): vmn += 1
        o.vmn = vmn
    waits = collections.defaultdict(dict)
    done_ds = 0; done_vm = 0
    for i, o in enumerate(full):
        nd = 0; nv = 0; prod = None; z = False
        for (p, ws, lat, cnt) in o.preds:
            if cnt == "lgkm" and p.dsn > nd: nd = p.dsn; prod = p
            if cnt == "vm": nv = max(nv, p.vmn)
            if cnt == "lgkm0" and not getattr(p, "waited", False): z = True; p.waited = True
        if z:
            waits[i]["lgkm"] = 1 << 30; done_ds = max(done_ds, full[i-1].dsn if i else 0)
        elif nd > done_ds:
            j = i
            k = i - 1
            while k > prod.i and full[k].kind not in M_KINDS and i - k < 10: k -= 1
            if k > prod.i and full[k].kind in M_KINDS and (k + 1 >= start or i < start):
                same_iter = (prod.i >= start) == (k >= start)
                if (not same_iter) or full[k].issue - prod.issue >= 110: j = k + 1
            waits[j]["lgkm"] = max(waits[j].get("lgkm", 0), nd); done_ds = nd
        if nv > done_vm:
            waits[i]["vm"] = nv; done_vm = nv
    lines = []
    pos = 0
    for i, o in enumerate(full):
        emit = []
        wt = waits.get(i)
        if wt:
            parts = []
            prev_ds = full[i-1].dsn if i else 0
            prev_vm = full[i-1].vmn if i else 0
            if "vm" in wt:
                n = prev_vm - wt["vm"]; assert n >= 0
                parts.append(f"vmcnt({min(n, 63)})")
            if "lgkm" in wt:
                n = max(0, prev_ds - wt["lgkm"])
                parts.append(f"lgkmcnt({min(n, 15)})")
            emit.append("s_waitcnt " + " ".join(parts)); pos += 1
        nops = 0
        for (p, ws, lat, cnt) in o.preds:
            nops = max(nops, ws - (pos - p.fpos - p.ninst))
        while nops > 0:
            n = min(nops, 16); emit.append(f"s_nop {n-1}"); nops -= n; pos += n
        o.fpos = pos; pos += o.ninst
        tl = [l.strip() for l in o.text.split("\n") if l.strip()]
        if annotate: tl[0] += f"    ; t={o.issue} {o.note}"
        emit += tl
        if i >= start: lines += emit
    return lines

class Item:
    def __init__(self, op=None, vm=None, lgkm=None, nop=0, raw=None):
        self.op = op; self.vm = vm; self.lgkm = lgkm; self.nop = nop; self.raw = raw
    def lines(self, annotate=False):
        if self.op is not None:
            tl = [l.strip() for l in self.op.text.split("\n") if l.strip()]
            if annotate: tl[0] += f"    ; t={self.op.issue} {self.op.note}"
            return tl
        if self.raw is not None: return [self.raw]
        if self.nop: return [f"s_nop {self.nop-1}"]
        parts = []
        if self.vm is not None: parts.append(f"vmcnt({self.vm})")
        if self.lgkm is not None: parts.append(f"lgkmcnt({self.lgkm})")
        return ["s_waitcnt " + " ".join(parts)]
    def states(self):
        if self.op is not None: return self.op.ninst
        if self.raw is not None: return 0 if self.raw.rstrip().endswith(":") or self.raw.startswith(".") else 1
        if self.nop: return self.nop
        return 1

def finalize_items(seq, loop=False):
    import copy
    def clone(s):
        r = []
        for o in s:
            c = copy.copy(o); Op._n += 1; c.id = Op._n; c.after = []; c.orig = o; r.append(c)
        return r
    if loop:
        full = clone(seq) + clone(seq); start = len(seq)
    else:
        full = clone(seq); start = 0
    build_deps(full)
    dsn = 0; vmn = 0
    for i, o in enumerate(full):
        o.i = i
        if o.kind in ("DR", "DW"): dsn += 1
        o.dsn = dsn
        if o.kind in ("VL", "VS", "VG"): vmn += 1
        o.vmn = vmn
    waits = collections.defaultdict(dict)
    done_ds = 0; done_vm = 0
    for i, o in enumerate(full):
        nd = 0; nv = 0; prod = None
        for (p, ws, lat, cnt) in o.preds:
            if cnt == "lgkm" and p.dsn > nd: nd = p.dsn; prod = p
            if cnt == "vm": nv = max(nv, p.vmn)
        if nd > done_ds:
            j = i; k = i - 1
            while k > prod.i and full[k].kind not in M_KINDS and i - k < 10: k -= 1
            if k > prod.i and full[k].kind in M_KINDS and (k + 1 > start or i < start):
                same_iter = (prod.i >= start) == (k >= start)
                if (not same_iter) or full[k].issue - prod.issue >= 110: j = k + 1
            waits[j]["lgkm"] = max(waits[j].get("lgkm", 0), nd); done_ds = nd
        if nv > done_vm:
            waits[i]["vm"] = nv; done_vm = nv
    items = []
    pos = 0
    for i, o in enumerate(full):
        emit = []
        wt = waits.get(i)
        if wt:
            prev_ds = full[i-1].dsn if i else 0
            prev_vm = full[i-1].vmn if i else 0
            it = Item()
            if "vm" in wt: it.vm = min(prev_vm - wt["vm"], 63)
            if "lgkm" in wt: it.lgkm = min(max(0, prev_ds - wt["lgkm"]), 15)
            emit.append(it); pos += 1
        nops = 0
        for (p, ws, lat, cnt) in o.preds:
            nops = max(nops, ws - (pos - p.fpos - p.ninst))
        while nops > 0:
            n = min(nops, 16); emit.append(Item(nop=n)); nops -= n; pos += n
        o.fpos = pos; pos += o.ninst
        emit.append(Item(op=o.orig))
        if i >= start: items += emit
    return items

def verify(trace):
    import copy
    ops = []
    pos = 0; dsn = 0; vmn = 0; done_ds = 0; done_vm = 0
    for it in trace:
        if it.op is not None:
            c = copy.copy(it.op); Op._n += 1; c.id = Op._n; c.after = []
            c.fpos = pos; c.done_ds = done_ds; c.done_vm = done_vm
            if c.kind in ("DR", "DW"): dsn += 1
            if c.kind in ("VL", "VS", "VG"): vmn += 1
            c.dsn = dsn; c.vmn = vmn
            ops.append(c)
        elif it.raw is None and not it.nop:
            if it.vm is not None: done_vm = max(done_vm, vmn - it.vm)
            if it.lgkm is not None: done_ds = max(done_ds, dsn - it.lgkm)
        pos += it.states()
    build_deps(ops)
    bad = 0
    for o in ops:
        for (p, ws, lat, cnt) in o.preds:
            if o.fpos - p.fpos - p.ninst < ws:
                print("HAZARD", p, "->", o, "need", ws, "have", o.fpos - p.fpos - p.ninst); bad += 1
            if cnt == "lgkm" and p.dsn > o.done_ds:
                print("LGKM", p, "->", o); bad += 1
            if cnt == "vm" and p.vmn > o.done_vm:
                print("VM", p, "->", o); bad += 1
    return bad

DS_LAT = 84
DS_COV = 0
DS_FINE = False
CRIT_WIN = 6
VBASE = 1000
BACKPACK = True
NOISE = [0, 0]
def schedule2(ops, report=False, strict_m=True, lookahead=0, pool=None):
    ids = {o.id for o in ops}
    for o in ops: o.after = [p for p in o.after if p.id in ids]
    build_deps(ops)
    succ = collections.defaultdict(list)
    for q in ops:
        for (p, ws, lat, cnt) in q.preds: succ[p.id].append((q, lat))
    T = 0; mlist = []
    for o in ops:
        if o.kind in M_KINDS:
            o.ideal = T; T += 32 if o.kind == "M32" else 16; mlist.append(o)
    end = T
    for o in reversed(ops):
        a = end
        for (q, lat) in succ[o.id]: a = min(a, q.alap - lat)
        if o.kind in M_KINDS: a = min(a, o.ideal)
        if o.early: a -= o.early
        o.alap = a
    if BACKPACK:
        import heapq
        nsucc = {o.id: len(succ[o.id]) for o in ops}
        lat_ = {}
        used = collections.defaultdict(int)
        def dl(o):
            a = end
            for (q, lat) in succ[o.id]: a = min(a, lat_[q.id] - lat)
            if o.kind in M_KINDS: a = min(a, o.ideal)
            if o.early: a -= o.early
            return a
        heap = [(-dl(o), -i, o) for i, o in enumerate(ops) if nsucc[o.id] == 0]
        heapq.heapify(heap); pos_ = {o.id: i for i, o in enumerate(ops)}
        while heap:
            d, _, o = heapq.heappop(heap); d = -d
            if o.kind not in M_KINDS and o.kind != "S":
                g = d // 16; c = min(o.cost, 8)
                while used[g] + c > 8: g -= 1
                used[g] += c; d = min(d, g * 16 + 16 - used[g])
            lat_[o.id] = d
            for (p, ws, lat, cnt) in o.preds:
                nsucc[p.id] -= 1
                if nsucc[p.id] == 0: heapq.heappush(heap, (-dl(p), -pos_[p.id], p))
        for o in ops: o.alap = lat_[o.id]
    if NOISE[0]:
        import random
        rnd = random.Random(NOISE[1]); tab = [rnd.uniform(-NOISE[0], NOISE[0]) for _ in range(4096)]
        for i, o in enumerate(ops):
            if hasattr(o, "grp"): o.alap += tab[o.grp % 4096]
            elif hasattr(o, "bi"): o.alap += tab[o.bi % 4096]
    for i, o in enumerate(ops):
        o.idx = i; o.npred = len(o.preds); o.issue = None; o.pos = None
    ready = [o for o in ops if o.npred == 0]
    items = []
    vusers = collections.defaultdict(list)
    for o in ops:
        o.vq = sorted({int(x[1:]) // 4 for x in o.r + o.w + o.c if x[0] == "v" and x[1:].isdigit() and int(x[1:]) >= VBASE})
        for q in o.vq: vusers[q].append(o)
    vorder = sorted(vusers, key=lambda q: (vusers[q][0].idx, q)); vnext = [0]; vmap = {}; vpos = {q: i for i, q in enumerate(vorder)}
    vleft = {q: len(u) for q, u in vusers.items()}
    phold = {p_: None for p_ in (pool or [])}
    def valloc(o):
        newq = [q for q in o.vq if q not in vmap]
        if not newq: return (0, 0, {})
        last = max(vpos[q] for q in newq)
        if last - vnext[0] > 16: return None
        skipped = sum(1 for q in vorder[vnext[0]:last + 1] if q not in vmap)
        if skipped > sum(1 for h in phold.values() if h is None or vleft[h] == 0): return None
        best = {}; eb = 0; nb = 0
        for q in newq:
            opts = []
            for p_, h in phold.items():
                if p_ in best.values() or (h is not None and vleft[h] > 0): continue
                e_ = 0; n_ = 0
                for u in (vusers[h] if h is not None else []):
                    for typ, has in (("WAW", u.w), ("WAR", u.r), ("WARC", u.c)):
                        if any(x[0] == "v" and x[1:].isdigit() and int(x[1:]) // 4 == h for x in has):
                            ws, lat, cnt = edge(u, o, "v0", typ)
                            if typ == "WAW" and u.kind in M_KINDS and o.kind in M_KINDS: ws = 0
                            e_ = max(e_, u.issue + lat); n_ = max(n_, ws - (st["pos"] - u.pos - u.ninst))
                opts.append((max(e_, st["t"] + 4 * max(n_, 0)), p_, e_, n_))
            if not opts: return None
            base = max(st["t"], min(x[0] for x in opts))
            c = min((x for x in opts if x[0] <= base), key=lambda x: x[1])
            best[q] = c[1]; eb = max(eb, c[2]); nb = max(nb, c[3])
        return (eb, nb, best)
    st = dict(t=0, pos=0, lve=-100, lm=-100, lmv=-100, ldr=-100, ltr=-100, mfree=0)
    ds = []
    cov = [0]
    vm = []; vcov = [0]
    def need(o):
        nd = 0; nv = 0
        for (p, ws, lat, cnt) in o.preds:
            if cnt == "lgkm": nd = max(nd, p.dsn)
            if cnt == "vm": nv = max(nv, p.vmn)
        return nd, nv
    def earliest(o):
        t = st["t"]
        nd, nv = need(o)
        w = 1 if (nd > cov[0] or nv > vcov[0]) else 0
        b = max(t + 4 * w, getattr(o, "nb", 0))
        if o.kind not in ("S", "BAR"): b = max(b, st["lm"] + 8)
        if o.kind in VALU_KINDS: b = max(b, st["lmv"])
        if o.kind in MEM_KINDS: b = max(b, st["lve"] + 8)
        if o.kind in M_KINDS: b = max(b, st["mfree"])
        if DS_FINE:
            if o.kind == "DW": b = max(b, st["ldr"] + 12)
            if o.note == "tr": b = max(b, st["ltr"] + 8)
        if getattr(o, "gapafter", False) and st["lm"] < st.get("lvs", -1): b = max(b, st["mfree"] + 8)
        nops = 0
        for (p, ws, lat, cnt) in o.preds:
            if cnt == "lgkm":
                if p.dsn > cov[0]: b = max(b, p.issue + DS_LAT + 4)
            else: b = max(b, p.issue + lat)
            if cnt == "vm": b = max(b, getattr(p, "arrive", 0))
            nops = max(nops, ws - (st["pos"] + w - p.pos - p.ninst))
        if o.vq:
            va = valloc(o)
            if va is None: return 1 << 50
            b = max(b, va[0]); nops = max(nops, va[1])
        if nops > 0: b = max(b, t + 4 * (w + nops))
        return b
    def emit_wait(nd=None, nv=None):
        it = Item()
        if nd is not None: it.lgkm = min(len(ds) - nd, 15); cov[0] = max(cov[0], len(ds) - it.lgkm)
        if nv is not None: it.vm = min(len(vm) - nv, 63); vcov[0] = max(vcov[0], len(vm) - it.vm)
        items.append(it); st["pos"] += 1; st["t"] += 4
    def issue(e, o):
        nd, nv = need(o)
        if nd > cov[0] or nv > vcov[0]:
            emit_wait(nd if nd > cov[0] else None, nv if nv > vcov[0] else None)
        nops = 0
        for (p, ws, lat, cnt) in o.preds: nops = max(nops, ws - (st["pos"] - p.pos - p.ninst))
        assert e < (1 << 49), "allocation deadlock"
        if o.vq:
            va = valloc(o); nops = max(nops, va[1])
            for q, p_ in va[2].items(): vmap[q] = p_; phold[p_] = q
            while vnext[0] < len(vorder) and vorder[vnext[0]] in vmap: vnext[0] += 1
            for q in o.vq: vleft[q] -= 1
        if nops > 0: items.append(Item(nop=nops)); st["pos"] += nops
        o.issue = e; o.pos = st["pos"]; st["pos"] += o.ninst
        if o.kind in M_KINDS:
            st["lm"] = e; st["mfree"] = e + (32 if o.kind == "M32" else 16); st["t"] = e + 4
            st["lmv"] = e + (12 if o.kind == "SM" else 8)
        else:
            st["t"] = e + o.cost
            if o.kind in VALU_KINDS or getattr(o, "vlike", False): st["lve"] = st["t"]
            if o.kind == "VS" and hasattr(o, "blk"): st["mfree"] = max(st["mfree"], e + o.blk)
            elif o.kind == "VS":
                st["mfree"] = max(st["mfree"], max(e, st.get("vsfree", 0)) + 20); st["vsfree"] = max(e, st.get("vsfree", 0)) + 20; st["lvs"] = e
            if o.kind == "BAR": st["t"] = e + 24
        if o.kind == "DR": st["ldr"] = e
        if o.note == "tr": st["ltr"] = e
        if o.kind in ("DR", "DW"): ds.append(o); o.dsn = len(ds)
        if o.kind in ("VL", "VS", "VG"): vm.append(o); o.vmn = len(vm)
        items.append(Item(op=o)); ready.remove(o)
        for (q, lat) in succ[o.id]:
            q.npred -= 1
            if q.npred == 0: ready.append(q)
    mi = 0
    last_kind = None
    while ready:
        t = st["t"]
        while mi < len(mlist) and mlist[mi].issue is not None: mi += 1
        if items and items[-1].op is not None:
            gl = [o for o in ready if getattr(o, "glue", False) and not getattr(o, "soft", False) and any(p is items[-1].op for p in o.after[:o.glue])]
            if gl:
                if getattr(gl[0], "slot", False):
                    st["t"] -= 4
                    c_ = [o for o in ready if o.kind == "V" and earliest(o) <= st["t"] and need(o)[0] <= cov[0]]
                    if c_:
                        o = min(c_, key=lambda x: (x.alap, x.idx)); issue(st["t"], o); st["lve"] = -100
                    else: st["t"] += 4
                issue(earliest(gl[0]), gl[0]); last_kind = gl[0].kind; continue
        if last_kind in M_KINDS:
            k = cov[0]
            while k < len(ds) and ds[k].issue + DS_LAT <= t: k += 1
            if DS_COV > DS_LAT:
                soon = {id(m) for m in mlist[mi:mi + 2]}
                while k > cov[0] and ds[k - 1].issue + DS_COV > t and not any(q.issue is None and (id(q) in soon or (q.kind not in M_KINDS and ds[k - 1].kind == "DR" and set(q.r) & set(ds[k - 1].w))) for (q, lat) in succ[ds[k - 1].id]): k -= 1
            bar = [o for o in ready if o.kind == "BAR" and earliest(o) <= t + 4]
            if bar:
                issue(earliest(bar[0]), bar[0]); last_kind = "W"; continue
            sal = [o for o in ready if o.kind == "S" and o.ninst == 1 and earliest(o) <= t]
            useful = k > cov[0] and any(x.kind == "DR" for x in ds[cov[0]:k])
            urgent = min((x.alap for x in ds[cov[0]:k] if x.kind == "DR"), default=1 << 60) + DS_LAT
            if useful and (not sal or urgent <= min(o.alap for o in sal)):
                emit_wait(k); last_kind = "W"; continue
            if sal:
                o = min(sal, key=lambda x: (x.alap, x.idx)); issue(t, o); last_kind = "W"; continue
        if last_kind in M_KINDS + ("W",):
            gl = [o for o in ready if getattr(o, "soft", False) and earliest(o) <= max(t, st["lm"] + 8)]
            if gl:
                o = min(gl, key=lambda x: x.idx); issue(earliest(o), o); last_kind = o.kind; continue
        cand = [(earliest(o), o) for o in ready]
        cand = [(e, o) for (e, o) in cand if e < (1 << 49)]
        ms = [(e, o) for (e, o) in cand if o.kind in M_KINDS]
        fs = [(e, o) for (e, o) in cand if o.kind not in M_KINDS]
        mnext = None
        if ms:
            if strict_m:
                win = set(x.id for x in mlist[mi:mi + 1 + lookahead])
                ms2 = [(e, o) for (e, o) in ms if o.id in win]
            else: ms2 = ms
            if ms2:
                emin = min(e for e, o in ms2)
                mnext = min(((e, o) for (e, o) in ms2 if e <= emin + 8), key=lambda x: x[1].idx)
        def needs_wait(o):
            nd, nv = need(o); return nd > cov[0] or nv > vcov[0]
        if mnext and (mnext[0] <= t or (mnext[0] <= t + 4 and needs_wait(mnext[1]))): pick = mnext
        else:
            lim = mnext[0] if mnext else 1 << 60
            if mnext and needs_wait(mnext[1]): lim -= 4
            crit = {}
            for dist, m in enumerate(mlist[mi:mi + CRIT_WIN]):
                stack = [m]
                while stack:
                    x = stack.pop()
                    for (p, ws, lat, cnt) in x.preds:
                        if p.issue is None and p.id not in crit and p.kind not in M_KINDS:
                            crit[p.id] = dist; stack.append(p)
            if vorder and vnext[0] < len(vorder):
                for u in vusers[vorder[vnext[0]]][:1]:
                    if u.kind not in M_KINDS and u.id not in crit: crit[u.id] = 1
                nfree = sum(1 for h in phold.values() if h is None or vleft[h] == 0)
                if nfree <= 1:
                    held = sorted((h for h in phold.values() if h is not None and vleft[h] > 0 and all(u.kind not in M_KINDS or u.issue is not None for u in vusers[h])), key=lambda h: vleft[h])
                    for h in held[:1]:
                        stack = [u for u in vusers[h] if u.issue is None]
                        while stack:
                            x = stack.pop(); crit[x.id] = min(crit.get(x.id, 99), 1)
                            stack += [p for (p, ws, lat, cnt) in x.preds if p.issue is None and p.kind not in M_KINDS and crit.get(p.id, 99) > 1]
            def key(x): return (crit.get(x[1].id, CRIT_WIN), x[1].alap, x[1].idx)
            fit = [(e, o) for (e, o) in fs if e + min(o.cost, 8) <= lim]
            urg = [(e, o) for (e, o) in fit if getattr(o, "urgent", False) and e <= t + 8]
            if urg: fit = urg
            elif not mnext and t >= st["mfree"] - 4:
                c0 = [(e, o) for (e, o) in fs if crit.get(o.id, 99) == 0 and e <= t + 12]
                if c0: fit = c0
            nons = [(e, o) for (e, o) in fit if not (o.kind == "S" and o.ninst == 1)]
            if mnext and any(e <= max(t, st["lm"] + 8) for (e, o) in nons): fit = nons
            if fit:
                base = max(t, st["lm"] + 8)
                now = [(e, o) for (e, o) in fit if e <= base]
                if not now:
                    emin = min(e for e, o in fit); now = [(e, o) for (e, o) in fit if e <= emin]
                nl = [(e, o) for (e, o) in now if not getattr(o, "lazy", False) or o.id in crit]
                if not nl and last_kind in M_KINDS + ("W",) and any(not getattr(o, "lazy", False) and o.kind in VALU_KINDS and e <= base + 4 for (e, o) in fit):
                    nl = [(e, o) for (e, o) in fit if not getattr(o, "lazy", False) and o.kind in VALU_KINDS and e <= base + 4]
                if nl: now = nl
                mem = [(e, o) for (e, o) in now if o.kind in MEM_KINDS]
                if mem and last_kind in M_KINDS + ("W",): now = mem
                pick = min(now, key=key)
            elif mnext:
                room = (lim - t) // 4
                want = 0
                for (e, o) in fs:
                    for (p, ws, lat, cnt) in o.preds: want = max(want, ws - (st["pos"] + 1 - p.pos - p.ninst))
                k = min(room, want)
                if k > 0 and last_kind != "N":
                    items.append(Item(nop=k)); st["pos"] += k; st["t"] += 4 * k; last_kind = "N"; continue
                pick = mnext
            elif fs: pick = min(fs, key=lambda x: (x[0], key(x)))
            else: pick = min(ms, key=lambda x: x[1].idx)
        issue(*pick); last_kind = pick[1].kind
    total = max(st["t"], st["mfree"])
    if report:
        seq = sorted(mlist, key=lambda o: o.issue)
        line = []
        for i in range(0, len(seq), 16):
            j = min(i + 16, len(seq) - 1)
            line.append(f"{seq[i].note}:{seq[j].issue - seq[i].issue - 16 * (j - i)}")
        print(" ".join(line))
    schedule2.vmap = vmap
    return items, total, end

def bind(ops, vmap):
    import re, copy
    def ph(n): return vmap[n // 4] + n % 4 if n >= VBASE else n
    def rr(x): return f"v{ph(int(x[1:]))}" if x[0] == "v" and x[1:].isdigit() else x
    m = {}; out = []
    for o in ops:
        c = copy.copy(o); Op._n += 1; c.id = Op._n; m[o.id] = c
        c.text = re.sub(r"v\[(\d+):(\d+)\]", lambda k: f"v[{ph(int(k.group(1)))}:{ph(int(k.group(2)))}]", o.text)
        c.text = re.sub(r"\bv(\d+)\b", lambda k: f"v{ph(int(k.group(1)))}", c.text)
        c.r = [rr(x) for x in o.r]; c.w = [rr(x) for x in o.w]; c.c = [rr(x) for x in o.c]
        out.append(c)
    for c in out: c.after = [m[p.id] for p in c.after if p.id in m]
    return out

def schedule_block(ops, pool, **kw):
    items, t, e = schedule2(ops, pool=pool, **kw)
    seq = [it.op for it in items if it.op is not None]
    return schedule2(bind(seq, schedule2.vmap), **kw)

def alloc_loop(make_body, pool, n=4, lookahead=0):
    allops = []; bodies = []
    for k in range(n):
        b = make_body()
        for i, o in enumerate(b): o.it = k; o.bi = i; o.after0 = list(o.after)
        if k:
            pins = [o for o in bodies[-1] if getattr(o, "pin", False)]
            for o in b: o.after = list(o.after) + pins
        bodies.append(b); allops += b
    items, total, end = schedule2(allops, lookahead=lookahead, pool=pool)
    vmap = dict(schedule2.vmap)
    f = lambda k: min(o.issue for o in bodies[k])
    print("   phase1 period", f(n - 1) - f(n - 2))
    seq = [it.op for it in items if it.op is not None and it.op.it == n - 2]
    for o in seq: o.after = o.after0
    return lambda: bind(seq, vmap)

def fix_items(pre, items):
    import copy
    trace = pre + items
    ops = []
    for n, it in enumerate(trace):
        if it.op is not None:
            c = copy.copy(it.op); Op._n += 1; c.id = Op._n; c.after = []; c.n = n; ops.append(c)
    build_deps(ops)
    byn = {c.n: c for c in ops}
    out = []
    pos = 0; dsn = 0; vmn = 0; done_ds = 0; done_vm = 0
    for n, it in enumerate(trace):
        emit = []
        if it.op is not None:
            c = byn[n]
            nd = max((p.dsn for (p, ws, lat, cnt) in c.preds if cnt == "lgkm"), default=0)
            nv = max((p.vmn for (p, ws, lat, cnt) in c.preds if cnt == "vm"), default=0)
            if n >= len(pre) and (nd > done_ds or nv > done_vm):
                w = Item()
                if nd > done_ds: w.lgkm = min(dsn - nd, 15); done_ds = dsn - w.lgkm
                if nv > done_vm: w.vm = min(vmn - nv, 63); done_vm = vmn - w.vm
                emit.append(w); pos += 1
            nops = max((ws - (pos - p.fpos - p.ninst) for (p, ws, lat, cnt) in c.preds), default=0)
            if n >= len(pre) and nops > 0: emit.append(Item(nop=nops)); pos += nops
            c.fpos = pos
            if c.kind in ("DR", "DW"): dsn += 1
            if c.kind in ("VL", "VS", "VG"): vmn += 1
            c.dsn = dsn; c.vmn = vmn
        elif it.raw is None and not it.nop:
            if it.vm is not None: done_vm = max(done_vm, vmn - it.vm)
            if it.lgkm is not None: done_ds = max(done_ds, dsn - it.lgkm)
        pos += it.states()
        emit.append(it)
        if n >= len(pre): out += emit
    return out


def schedule_loop(make_body, n=4, report=False, lookahead=0):
    allops = []; bodies = []
    for k in range(n):
        b = make_body()
        for i, o in enumerate(b): o.it = k; o.bi = i
        if k:
            pins = [o for o in bodies[-1] if getattr(o, "pin", False)]
            for o in b: o.after = list(o.after) + pins
        bodies.append(b); allops += b
    items, total, end = schedule2(allops, lookahead=lookahead)
    first = {}
    for n_, it in enumerate(items):
        if it.op is not None and it.op.it not in first: first[it.op.it] = n_
    k = n - 2
    def start(j):
        x = first[j]
        while x > 0 and items[x - 1].op is None: x -= 1
        return x
    win = items[start(k):start(k + 1)]
    idx = sorted(it.op.bi for it in win if it.op is not None)
    assert idx == list(range(len(bodies[0]))), "window is not a steady state"
    period = items[first[k + 1]].op.issue - items[first[k]].op.issue
    left = [it.op for it in win if it.op is not None and it.op.it == k - 1]
    assert all(it.op.it in (k - 1, k) for it in win if it.op is not None)
    posn = {it.op.bi: (n_, it.op.it - k) for n_, it in enumerate(win) if it.op is not None}
    L = len(win)
    def when(o): return (o.it - posn[o.bi][1]) * L + posn[o.bi][0]
    for o in allops:
        for (p, ws, lat, cnt) in o.preds:
            assert when(p) < when(o), ("order violated", p, o)
    if report:
        seq = [it.op for it in win if it.op is not None and it.op.kind in M_KINDS]
        line = []
        for i in range(0, len(seq), 16):
            j = min(i + 16, len(seq) - 1)
            line.append(f"{seq[i].note}:{seq[j].issue - seq[i].issue - sum(32 if o.kind == 'M32' else 16 for o in seq[i:j])}")
        print(" ".join(line)); print("leftover ops:", len(left), collections.Counter(o.note for o in left))
    t0 = items[first[k]].op.issue
    import copy
    for it in win:
        if it.op is not None: it.op = copy.copy(it.op); it.op.issue -= t0
    left2 = []
    for o in sorted(left, key=lambda o: o.bi):
        c = copy.copy(o); Op._n += 1; c.id = Op._n; c.after = []; left2.append(c)
    return win, left2, period, end // n
```

```python
import os, sys, zlib, math, struct, collections, copy, itertools
ARGV = sys.argv[:]; sys.argv = sys.argv[:2]
import gen5 as old
sys.argv = ARGV
import sched
from sched import Op, Item, schedule2, schedule_loop, alloc_loop, fix_items, verify, bind
from gen5 import v, a, vs, as_, srd, f32, lane_expr, lane_id, select, SRDTXT
from gen5 import sE, sO, sWQ, sWK, sWV, sWR, sC, sW, sP, sH, sB0, sCnt, sStC, sStP, sSo, sLn, sEn, sStr, sT0, sT1, sT2, sT3, sTog, sM, sBits, sRb, sRd
from gen5 import BBATCH, NB, UB, BLK, RG, TILE, BUFSZ, KSTEP, WQ, WK, WV, WR, FT, NAME

CFG = dict(lsp=145, tE1=5700, tE2=6100, u0s=8, lp=2, lpk=2, lp2=1, eh=7, cw=24, cd=40, zh=4, bp=0, noise=0, seed=1, annotate=0, stamps=0, nostore=0, nodma=0, ldnt=1, stpol=1,
           fallback=1, pf=4, tw=1, hop=3, base=768, lo=12, ptr=1, qtr=0, zl=0, slot=0, thr=40, ga=3, gb=3, mq=2, mk=3, m0=3, seam=3, fl=1, sep=0, efl=1, sync=1, u0=2, d0=12, dgap=20, dm=0)
for a_ in sys.argv[2:]:
    k_, v_ = a_.split("="); CFG[k_] = int(v_)
STPOL = ["", " nt", " sc1", " sc0 sc1", " sc0 nt", " sc1 nt", " sc0 sc1 nt"][CFG["stpol"]]; LDPOL = ["", " nt", " sc1 nt", " sc0 sc1 nt", " sc1", " sc0 nt"][CFG["ldnt"]]
FLG0 = 4 * BUFSZ; FOFF = 65280
TAB0 = FLG0 + 1024; US = 1728; TABSZ = 8 * US; ZOFF = 1072; VOFF = 1136; CST = 272
SCR0 = TAB0 + 4 * TABSZ; SCRSZ = 3 * CST
RR0 = SCR0 + 4 * SCRSZ
FLAG = RR0 + 4 * 512; DUMP = FLAG + 16
LDS_TOTAL = 163840
assert DUMP + 512 <= LDS_TOTAL and TAB0 % 128 == 0 and TABSZ % 64 == 0 and SCR0 % 16 == 0
K0 = 0; V0 = 48; QF = 96; PBUF = (104, 120); RES = (136, 152); OBLK = 168; ONES = 184; POOL0 = 188; NPOOL = 12; VR = 236; KRS = 238
aE, aDMA, aST, aKr, aVr, aQa, aPw, aPr, aCw, IDX, SEL0, SEL1, INV, CHK = range(242, 256)
sBias = 96; sD = 98; sMsk = 14; sSel = 13; sC2 = 12; sFm = 58; sFp = 59
POOL = [POOL0 + 4 * i for i in range(NPOOL)]
if CFG.get('xq'): POOL += [300 + 4 * i for i in range(CFG['xq'])]; NPOOL = len(POOL)
MK = ("M16", "SM", "M32")

class Prog:
    def __init__(self):
        self.ops = []; self.free = collections.deque(POOL); self.lastm = None; self.nm = 0; self.hook = None; self.fin = {}; self.queue = collections.deque(); self.vq0 = Prog.vq
    vq = 1000
    stpol = STPOL; fl = CFG["fl"]
    def alloc(self):
        self.free.popleft(); Prog.vq += 4; return Prog.vq
    def release(self, q): self.free.append(0)
    def add(self, *o, **k):
        op = Op(*o, **k); self.ops.append(op)
        if CFG.get("gn", 1):
            q = [int(x[1:]) // 4 for x in op.r + op.w if x[0] == "v" and x[1:].isdigit() and int(x[1:]) >= 1000]
            op.grp = (max(q) - self.vq0 // 4) if q else 1000 + zlib.crc32(op.note.encode()) % 1000 if op.note else 2000 + len(self.ops)
        return op
    def _m(self, op):
        self.lastm = op; self.nm += 1
        if self.hook: self.hook(self)
        elif self.queue:
            f = self.queue.popleft()
            if f:
                o = f(); o.after = [op] + list(o.after); o.glue = 1; o.soft = True; o.urgent = False
        return op
    def mfma(self, d, A, B, first=False, note=""):
        def t(x): return (v if x[0] == "v" else a)(x[1], 4)
        def r(x): return (vs if x[0] == "v" else as_)(x[1], 4)
        ct, c = ("0", []) if first else (v(d, 4), vs(d, 4))
        op = self.add(f"v_mfma_f32_16x16x32_bf16 {v(d, 4)}, {t(A)}, {t(B)}, {ct}", "M16", r=r(A) + r(B), w=vs(d, 4), c=c, note=note)
        op.mf = (d, A, B, ct)
        return self._m(op)
    def smf(self, d, A, B, abid=0, note=""):
        op = self.add(f"v_smfmac_f32_16x16x64_bf16 {v(d, 4)}, {v(A, 4)}, {v(B, 8)}, {v(IDX)}" + (" abid:1" if abid else ""), "SM", r=vs(A, 4) + vs(B, 8) + [v(IDX)], w=vs(d, 4), c=vs(d, 4), note=note)
        op.mf = (d, ("v", A), ("v", B), "x")
        return self._m(op)
    def m32(self, d, A, B, note=""):
        op = self.add(f"v_mfma_f32_32x32x16_bf16 {v(d, 16)}, {v(A, 4)}, {v(B, 4)}, 0", "M32", r=vs(A, 2) + vs(B, 4), w=vs(d, 16), note=note)
        op.mf = (d, ("v", A), ("v", B), "x")
        return self._m(op)
    def share(self):
        chains = []
        for o in self.ops:
            if o.kind not in MK: continue
            if o.kind == "M16" and chains and chains[-1][-1].kind == "M16" and chains[-1][-1].mf[0] == o.mf[0] and o.mf[3] != "0": chains[-1].append(o)
            else: chains.append([o])
        def opts(c):
            st = [(o.mf[1], o.mf[2]) for o in c]
            if len(st) == 1: return [(0, 0, st)]
            return [(i, j, [st[i]] + [x for k, x in enumerate(st) if k not in (i, j)] + [st[j]]) for i, j in itertools.permutations(range(len(st)), 2)]
        def gain(x, y): return int(x[0] == y[0]) + int(x[1] == y[1])
        allo = [opts(c) for c in chains]
        best = [[0.0 - 1e-3 * (i != 0) for (i, j, q) in allo[0]]]; back = [[None] * len(allo[0])]
        for n in range(1, len(chains)):
            b = []; k_ = []
            for (i, j, q) in allo[n]:
                sc = [best[-1][m] + gain(pq[-1], q[0]) for m, (_, _, pq) in enumerate(allo[n - 1])]
                m = max(range(len(sc)), key=lambda m: sc[m]); b.append(sc[m] - 1e-3 * (i != 0) - 1e-3 * (j != len(q) - 1)); k_.append(m)
            best.append(b); back.append(k_)
        m = max(range(len(best[-1])), key=lambda m: best[-1][m]); tot = best[-1][m]
        for n in range(len(chains) - 1, -1, -1):
            for o, (A, B) in zip(chains[n], allo[n][m][2]):
                if o.kind != "M16": continue
                d, _, _, ct = o.mf
                t = lambda x: (v if x[0] == "v" else a)(x[1], 4)
                r = lambda x: (vs if x[0] == "v" else as_)(x[1], 4)
                o.text = f"v_mfma_f32_16x16x32_bf16 {v(d, 4)}, {t(A)}, {t(B)}, {ct}"; o.r = r(A) + r(B); o.mf = (d, A, B, ct)
            m = back[n][m]
        return round(tot), len(chains)
    def dsr(self, dst, n, addr, off, pseudo=(), note="", ins=None):
        ins = ins or {4: "ds_read_b128", 2: "ds_read_b64", 1: "ds_read_b32"}[n]
        assert 0 <= off < 65536
        return self.add(f"{ins} {v(dst, n)}, {v(addr)} offset:{off}", "DR", r=[v(addr)] + list(pseudo), w=vs(dst, n), note=note)
    def dsw(self, addr, src, n, off, pw=(), pr=(), note="", ins=None):
        ins = ins or {4: "ds_write_b128", 2: "ds_write_b64", 1: "ds_write_b32"}[n]
        assert 0 <= off < 65536
        return self.add(f"{ins} {v(addr)}, {v(src, n)} offset:{off}", "DW", r=[v(addr)] + vs(src, n) + list(pr), w=list(pw), note=note, cost={4: 28, 2: 12, 1: 8}[n])
    def valu(self, text, r, w, kind="V", **k): return self.add(text, kind, r=r, w=w, **k)
    def op2(self, ins, d, x, y, note="", kind="V"):
        return self.valu(f"{ins} {v(d)}, {v(x)}, {v(y)}", [v(x), v(y)], [v(d)], kind=kind, note=note)
    def cvt(self, d, x, y, note=""): return self.op2("v_cvt_pk_bf16_f32", d, x, y, note)
    def exp(self, x, note=""): return self.valu(f"v_exp_f32 {v(x)}, {v(x)}", [v(x)], [v(x)], kind="T", note=note)
    def mov(self, d, val, note=""): return self.valu(f"v_mov_b32 {v(d)}, {val}", [], [v(d)], note=note)
    def mov2(self, d, val="0", note=""):
        o = self.valu(f"v_mov_b64 {v(d, 2)}, {val}", [], vs(d, 2), note=note); self.hold(o, CFG.get("zh", 6)); return o
    def init(self, d, n, bias=False, note=""):
        for i in range(0, n, 2): self.mov2(d + i, f"s[{sBias}:{sBias+1}]" if bias else "0", note)
    def hold(self, o, k):
        ms = [x for x in self.ops if x.kind in MK]
        if len(ms) > k: o.after = list(o.after) + [ms[-1 - k]]
    def salu(self, text, r=(), w=(), **k): return self.add(text, "S", r=list(r), w=list(w), **k)

class ESet:
    def __init__(self, P, t, pseudo, note, fixed=None, tag=None):
        self.fixed = fixed; self.fr = []
        for ks in range(4):
            q = P.alloc() if fixed is None else fixed[ks]
            o = P.dsr(q, 4, aE, t * TILE + ks * KSTEP, pseudo, note); self.fr.append(q)
            o.tag = (tag, ks); P.hold(o, CFG["eh"])
    def __getitem__(self, ks): return self.fr[ks]
def eload(P, t, pseudo, note="e", fixed=None, tag=None): return ESet(P, t, pseudo, note, fixed, tag)
def efree(P, e):
    if e.fixed is None:
        for q in e.fr: P.release(q)

def chain(P, W, mt, fr, e_is_A, d, note):
    for n_, ks in enumerate([3, 2, 1, 0] if mt & 1 else [0, 1, 2, 3]):
        w = ("a", W + (mt * 4 + ks) * 4)
        A, B = (("v", fr[ks]), w) if e_is_A else (w, ("v", fr[ks]))
        P.mfma(d, A, B, first=(n_ == 0), note=note)
def pchain(P, W, mt, fr, e_is_A, dst, note, dst1=None):
    d = P.alloc(); chain(P, W, mt, fr, e_is_A, d, note)
    if (CFG["qtr"] & 1 and W == WQ) or (CFG["qtr"] & 2 and W == WK) or (CFG["qtr"] & 4 and W == WV):
        for x, y in ((dst, d), (dst + 1 if dst1 is None else dst1, d + 2)):
            P.valu(f"v_perm_b32 {v(x)}, {v(y + 1)}, {v(y)}, s{sSel}", [v(y), v(y + 1)], [v(x)], note=note + "c")
    else:
        P.cvt(dst, d, d + 1, note + "c"); P.cvt(dst + 1 if dst1 is None else dst1, d + 2, d + 3, note + "c")
    P.release(d)
def kch(P, t, mt, fr): pchain(P, WK, mt, fr, False, K0 + 8 * t + 2 * mt, f"K{t}")
def qch(P, mt, fr, tau, qf=QF): pchain(P, WQ, mt, fr, False, qf + 2 * mt, f"Q{tau}")
def vch(P, t, mt, fr): pchain(P, WV, mt, fr, True, V0 + 16 * (t >> 1) + 4 * mt + 2 * (t & 1), f"V{t}")
def rch(P, mt, fr, tau): chain(P, WR, mt, fr, False, RES[tau & 1] + 4 * mt, f"R{tau}")
def MTO(k): return [3, 2, 1, 0] if k & 1 else [0, 1, 2, 3]

def sc(P, tau, gs, QF=QF):
    pb = PBUF[tau & 1]; n = f"X{tau}"
    for g in gs:
        d = P.alloc()
        if g < 6:
            for ks in range(2): P.mfma(d, ("v", K0 + 8 * g + 4 * ks), ("v", QF + 4 * ks), first=(ks == 0), note=f"S{tau}")
            dst = pb + 4 * (g >> 1) + 2 * (g & 1)
            if CFG["ptr"]:
                for k in range(2):
                    P.exp(d + 2 * k, n)
                    P.valu(f"v_exp_f32 {v(dst + k)}, {v(d + 2 * k + 1)}", [v(d + 2 * k + 1)], [v(dst + k)], kind="T", note=n)
                for k in range(2):
                    P.valu(f"v_mov_b32_sdwa {v(dst + k)}, {v(d + 2 * k)} dst_sel:WORD_0 dst_unused:UNUSED_PRESERVE src0_sel:WORD_1", [v(d + 2 * k), v(dst + k)], [v(dst + k)], note=n)
            else:
                for i in range(4): P.exp(d + i, n)
                P.cvt(dst, d, d + 1, n); P.cvt(dst + 1, d + 2, d + 3, n)
        else:
            P.init(d, 4, not CFG["ptr"], n)
            P.smf(d, KRS, QF, note=f"S{tau}")
            for i in (0, 2): P.op2("v_add_f32", d + i, d + i, d + i + 1, n); P.exp(d + i, n)
            for i, sel in enumerate((SEL0, SEL1)):
                P.valu(f"v_perm_b32 {v(pb + 12 + i)}, {v(d + 2)}, {v(d)}, {v(sel)}", [v(d), v(d + 2), v(sel)], [v(pb + 12 + i)], note=n)
        P.release(d)
def lsum(P, tau):
    pb = PBUF[tau & 1]; n = f"L{tau}"
    d = P.alloc(); P.init(d, 2, False, n)
    P.smf(d, ONES, pb, note=n); P.smf(d, ONES, pb + 8, abid=1, note=n)
    P.op2("v_add_f32", d, d, d + 1, n)
    P.valu(f"v_rcp_f32 {v(INV)}, {v(d)}", [v(d)], [v(INV)], kind="T", note=n, early=CFG.get("fe", 100))
    P.valu(f"v_max3_f32 {v(CHK)}, {v(CHK)}, {v(d)}, {v(INV)}", [v(CHK), v(d), v(INV)], [v(CHK)], note=n)
    P.release(d)

def pack_half(P, r, half, note):
    b = r + 8 * half
    for k in range(4): P.cvt(b + k, b + 2 * k, b + 2 * k + 1, note)
    return [P.valu(f"v_pk_max_i16 {v(b+k)}, {v(b+k)}, 0", [v(b + k)], [v(b + k)], note=note) for k in range(4)]
def shuffle(P, r, note):
    x = []
    for (d, far, own, m) in ((r + 4, r + 8, r, 0), (r + 8, r, r + 8, 1)):
        P.hold(P.salu(f"s_not_b64 vcc, vcc" if m else f"s_mov_b64 vcc, s[{sMsk}:{sMsk+1}]", r=["vcc"] if m else [], w=["vcc"], note=note), 0)
        for k in range(4):
            x.append(P.valu(f"v_cndmask_b32_dpp {v(d + k)}, {v(far + k)}, {v(own + k)}, vcc quad_perm:[1,0,3,2] row_mask:0xf bank_mask:0xf", [v(far + k), v(own + k), "vcc"], [v(d + k)], kind="DPP", note=note))
    return x
def stores(P, r, sreg, vaddr, note, after=(), full=False, sreg2=None):
    o = None
    if full:
        for half in range(2):
            def f(half=half, aft=None):
                b = r + 4 + 4 * half; x, off = sreg, half * 256
                return P.add(f"buffer_store_dwordx4 {v(b, 4)}, {v(vaddr)}, {srd(sO)}, s{x} offen offset:{off}{P.stpol}", "VS", r=vs(b, 4) + [v(vaddr), f"s{x}"], note=note, cost=12)
            if half and CFG["sep"] and note != "D3" and P.fl == 1:
                def hook(P_):
                    x = f(); x.after = [P_.lastm]; x.glue = 1; x.urgent = True; x.blk = 24; P_.hook = None
                assert P.hook is None; P.hook = hook
            else:
                p = o; o = f(); o.after = list(after) if p is None else [p]; o.urgent = True
                if half or (len(after) == 1 and after[0].kind == "M32"): o.glue = 1
                if CFG["sep"] and note != "D3" and P.fl == 1: o.blk = 28
                else: o.cost = (24, 4)[half]
        return o
    for half in range(2):
        b = r + 8 * half
        o = P.add(f"buffer_store_dwordx4 {v(b, 4)}, {v(vaddr)}, {srd(sO)}, s{sreg} offen offset:{half * ([64, 64, 2048, 1024][CFG.get('fake', 0)] if vaddr == aST else 64)}{P.stpol if CFG.get('mixp') is None or half != CFG['mixp'] else ['', ' sc0'][CFG.get('mixq', 0)]}", "VS", r=vs(b, 4) + [v(vaddr), f"s{sreg}"], note=note, cost=(24, 4)[half],
                  after=list(after) if o is None else [o])
        o.urgent = True
        if half or (len(after) == 1 and after[0].kind == "M32"): o.glue = 1
        if half and CFG["slot"] and note != "D3": o.slot = True
    return o
def pv(P, tau, mts):
    pb = PBUF[tau & 1]; r = RES[tau & 1]
    for mt in mts:
        d = OBLK + 4 * mt
        for kp in range(3): P.mfma(d, ("v", V0 + 16 * kp + 4 * mt), ("v", pb + 4 * kp), note=f"PV{tau}")
        for i in range(4):
            x = r + 4 * mt + i
            P.valu(f"v_fmac_f32 {v(x)}, {v(d+i)}, {v(INV)}", [v(x), v(d + i), v(INV)], [v(x)], note=f"D{tau}")
        if mt & 1: P.fin.setdefault(tau, []).extend(pack_half(P, r, mt >> 1, f"D{tau}"))
        if mt == 3 and P.fl: P.fin[tau] = shuffle(P, r, f"D{tau}")
def m32st(P, tau, prev=None, sbase=None, pre=None):
    o = None
    if prev is not None:
        st = (sT0, sT1)[prev & 1]
        s_ = P.salu(f"s_add_u32 s{st}, s{sbase}, {FT[prev] * 4096}", r=[f"s{sbase}"], w=[f"s{st}"])
    aft = P.fin.pop(prev) + [s_] if prev is not None else []
    if pre: aft += pre(P)
    if tau is not None:
        hk = P.hook; P.hook = None
        o = P.m32(OBLK, VR, PBUF[tau & 1] + 12, note=f"PV{tau}"); o.after = list(aft); aft = [o]
        P.hook = hk
    if prev is not None: o = stores(P, RES[prev & 1], st, aST, f"D{prev}", aft, P.fl)
    return o

class Rem:
    def __init__(self, P): self.P = P
    def ld(self):
        P = self.P; self.a = P.alloc(); P.hold(P.dsr(self.a, 4, aQa, 0, ["L:Qtab"], "Srem"), 8)
    def s(self, par):
        P = self.P
        if par == 0:
            for t in range(3): P.init(OBLK + 4 * t, 4, False, "Xrem")
        for t in range(par, 6, 2): P.smf(OBLK + 2 * t, self.a, K0 + 8 * t, note="Srem")
        if par: P.release(self.a)
    def soft(self):
        P = self.P; n = "Xrem"; l = OBLK + 12
        for t in range(6):
            x = OBLK + 2 * t; P.op2("v_add_f32", x, x, x + 1, n); P.exp(x, n)
        P.op2("v_add_f32", l, OBLK, OBLK + 2, n)
        for t in range(2, 6): P.op2("v_add_f32", l, l, OBLK + 2 * t, n)
        for rot in (8, 4):
            P.valu(f"v_add_f32_dpp {v(l)}, {v(l)}, {v(l)} row_ror:{rot} row_mask:0xf bank_mask:0xf", [v(l)], [v(l)], kind="DPP", note=n)
        P.dsw(aCw, l, 1, 256, pw=["L:Qtab", "L:Ktab"], note=n)
        for kp in range(3):
            x = OBLK + 4 * kp; P.cvt(x + 1, x, x + 2, n)
            P.dsw(aPw, x + 1, 1, kp * CST, pw=["L:Ps"], note=n, ins="ds_write_b16")
            P.dsw(aPw, x + 1, 1, kp * CST + 4, pw=["L:Ps"], note=n, ins="ds_write_b16_d16_hi")
    def ldp(self):
        P = self.P; self.b = [P.alloc() for _ in range(3)]
        for kp in range(3): P.hold(P.dsr(self.b[kp], 4, aPr, kp * CST, ["L:Ps"], "PVrem"), 4)
    def pv(self, halves=(0, 1)):
        P = self.P; n = "PVrem"
        for s_ in halves:
            d = P.alloc()
            P.init(d, 4, False, n)
            for kp in ((0, 1, 2), (2, 1, 0))[s_]: P.smf(d, self.b[kp], V0 + 16 * kp + 8 * s_, note=n)
            for i in (0, 2): P.op2("v_add_f32", d + i, d + i, d + i + 1, n)
            for i in (0, 2): P.dsw(aCw, d + i, 1, 128 * s_ + 32 * i, pw=["L:Qtab", "L:Ktab"], note=n)
            P.release(d)
        if 1 in halves:
            for q in self.b: P.release(q)

def dma_setup(P, i, pr):
    o = [P.salu(f"s_add_u32 m0, s{sLn}, {2 * i * TILE}", r=[f"s{sLn}"] + pr, w=["m0"])]
    if i == 0: o.append(P.salu(f"s_mov_b32 s{sD}, s{sEn}", r=[f"s{sEn}"] + pr, w=[f"s{sD}"]))
    else: o.append(P.salu(f"s_add_u32 s{sD}, s{sD}, s{sSo}", r=[f"s{sD}", f"s{sSo}"] + pr, w=[f"s{sD}"]))
    for k in range(1, 4): o.append(P.salu(f"s_add_u32 s{sD+k}, s{sD+k-1}, s{sStr}", r=[f"s{sD+k-1}", f"s{sStr}"] + pr, w=[f"s{sD+k}"]))
    for x in o: x.early = 20000
    return o
def dma(P, k, pr, after, cost):
    o = P.add(f"buffer_load_dwordx4 {v(aDMA)}, {srd(sE)}, s{sD+k} offen offset:{k * BLK}{LDPOL} lds", "VL", r=[v(aDMA), "m0", f"s{sD+k}"] + pr, w=["dma"], note="dma", after=after, cost=cost)
    o.early = 20000; o.urgent = True; o.glue = 1
    return o
def dma_spread(P, i, ks, pr, gap=1):
    ks = list(ks)
    if ks[0] == 0:
        su = dma_setup(P, i, pr); del P.ops[-5:]; n_ = P.ops.index(P.lastm); P.ops[n_:n_] = su; P.lastm.after = list(P.lastm.after) + su
    n0 = P.nm
    def hook(P_):
        if (P_.nm - n0) % gap == 0:
            dma(P_, ks.pop(0), pr, [P_.lastm], 8)
            if not ks: P_.hook = None
    assert P.hook is None
    P.hook = hook; hook(P)

def remops(P):
    P.hold(P.dsr(KRS, 4, aKr, 0, ["L:Ktab"], "KR"), 12)
    P.hold(P.add(f"ds_read2_b32 {v(VR, 2)}, {v(aVr)} offset0:0 offset1:8", "DR", r=[v(aVr), "L:Vtab"], w=vs(VR, 2), note="VR"), 12)

def signal(P):
    q = P.alloc()
    P.hold(P.valu(f"v_mov_b32 {v(q)}, s{sCnt}", [f"s{sCnt}"], [v(q)], note="sig"), 2)
    P.salu(f"s_mov_b32 m0, s{sFm}", w=["m0"], note="sig")
    P.add(f"ds_write_addtid_b32 {v(q)} offset:{FOFF}", "DW", r=[v(q), "m0", "dma"], w=["Bs"], note="sig", cost=8).early = 500
    P.release(q)
def check(P, lab=""):
    q = P.alloc()
    P.salu(f"s_mov_b32 m0, s{sFp}", w=["m0"], note="chk0")
    o = P.add(f"ds_read_addtid_b32 {v(q)} offset:{FOFF}", "DR", r=["m0", "Bs"], w=[v(q)], note="chk"); o.delay = CFG["cd"]; o.urgent = True
    P.valu(f"v_cmp_lt_u32 vcc, s{sCnt}, {v(q)}", [f"s{sCnt}", v(q)], ["vcc"], note="chk").urgent = True
    o = P.add(f"s_cbranch_vccnz L_spin{lab}\nL_back{lab}:", "S", r=["vcc", v(q), f"s{sCnt}", "m0"], w=["B"], note="chk", cost=4); o.ninst = 1; o.vlike = True
    P.release(q)

def run(P, order, pseudo=lambda t, n: ["B", "Bs"], fixed={}):
    toks = order.split(); E = {}; R = Rem(P); lastW = None; dirn = {}; late = False
    def tile(w): return int(w[1]) if w[0] in "KV" else FT[int(w[1])]
    for n, w in enumerate(toks):
        h, _, arg = w.partition(":")
        if w[0] in "KVQR":
            t = tile(w)
            if h not in dirn:
                dirn[h] = (1 - dirn[lastW]) if lastW and lastW[0] == h[0] else 0
            lastW = h
            for c in (arg or "0123"):
                mt = MTO(dirn[h])[int(c)]
                if h[0] == "K": kch(P, t, mt, E[t])
                elif h[0] == "V": vch(P, t, mt, E[t])
                elif h[0] == "Q": qch(P, mt, E[t], int(h[1]))
                else: rch(P, mt, E[t], int(h[1]))
            used = False
            for x in toks[n + 1:]:
                if x == f"e{t}": break
                if x[0] in "KVQR" and tile(x) == t: used = True
            if not used: efree(P, E.pop(t))
        elif w[0] == "e":
            t = int(w[1]); k = toks[:n].count(w)
            nxt = toks.index("cut") if "cut" in toks else -1
            across = n < nxt and w not in toks[n + 1:nxt] and any(x[0] in "KVQR" and tile(x) == t for x in itertools.takewhile(lambda y: y != w, toks[nxt:]))
            E[t] = eload(P, t, pseudo(t, k), tag="e4" if across else None, fixed=fixed.get(n))
        elif h == "sig":
            if CFG["sync"]:
                P.salu(f"s_sub_u32 s{sCnt}, s{sCnt}, 1", r=[f"s{sCnt}"], w=[f"s{sCnt}"]); signal(P)
        elif h == "rl": R.ld()
        elif h == "r0": R.s(0)
        elif h == "r1": R.s(1); R.soft()
        elif h == "pl": R.ldp()
        elif h == "pr": R.pv([int(c) for c in (arg or "01")])
        elif h == "ko": remops(P)
        elif h == "cut": P.cut = len(P.ops); late = True
        elif w[0] == "s": sc(P, int(h[1]), [int(c) for c in arg])
        elif w[0] == "p": pv(P, int(h[1]), [int(c) for c in (arg or "0123")])
        elif w[0] == "l": lsum(P, int(h[1]))
        elif w[0] == "m":
            tau = int(h[1]); prev = (tau - 1) % 6
            nd = toks[n + 1] if n + 1 < len(toks) and toks[n + 1][0] == "d" else None
            pre = step if tau == 4 else ((lambda P_: dma_setup(P_, int(nd[1]), ["B"])) if nd and nd[3] == "0" else None)
            o = m32st(P, tau, prev, sStP if prev >= 4 else sStC, pre)
            if tau == 4: P.seam = o
            if nd:
                for c in nd[3:]: o = dma(P, int(c), ["B"], [o], 4)
        elif w[0] == "d":
            if toks[n - 1][0] != "m": dma_spread(P, int(h[1]), [int(c) for c in arg], ["B"])
        else: raise ValueError(w)
    assert not E, E

ORDER = open(os.environ.get("ORDER") or os.path.join(os.path.dirname(os.path.abspath(__file__)), "ord", "prod.txt")).read()

def body(P):
    if CFG["sync"]:
        o = P.add("s_nop 0", "S", cost=24 if CFG["seam"] == 3 else 0); o.marker = True
        check(P)
    else: P.add("s_barrier", "BAR", r=["dma"], w=["B"])
    run(P, ORDER)
    assert P.hook is None and sum(o.kind == "VL" for o in P.ops) == 12

def step(P):
    n0 = len(P.ops)
    P.valu(f"v_add_u32 {v(aE)}, s{sTog}, {v(aE)}", [v(aE), f"s{sTog}"], [v(aE)])
    P.salu(f"s_sub_u32 s{sLn}, s{sLn}, s{sTog}", r=[f"s{sLn}", f"s{sTog}"], w=[f"s{sLn}"])
    P.salu(f"s_sub_u32 s{sTog}, 0, s{sTog}", r=[f"s{sTog}"], w=[f"s{sTog}"])
    for x in (aKr, aVr, aQa, aCw):
        P.valu(f"v_add_u32 {v(x)}, {US}, {v(x)}", [v(x)], [v(x)])
    P.salu(f"s_mov_b32 s{sStP}, s{sStC}", r=[f"s{sStC}"], w=[f"s{sStP}"])
    P.salu(f"s_add_u32 s{sStC}, s{sStC}, {UB}", r=[f"s{sStC}"], w=[f"s{sStC}"])
    if not CFG["sync"]: P.salu(f"s_sub_u32 s{sCnt}, s{sCnt}, 1", r=[f"s{sCnt}"], w=[f"s{sCnt}"])
    P.salu(f"s_add_u32 s{sEn}, s{sEn}, {UB}", r=[f"s{sEn}"], w=[f"s{sEn}"])
    P.salu(f"s_bfe_i32 s{sM}, s{sBits}, 0x10000", r=[f"s{sBits}"], w=[f"s{sM}"])
    P.salu(f"s_lshr_b32 s{sBits}, s{sBits}, 1", r=[f"s{sBits}"], w=[f"s{sBits}"])
    P.salu(f"s_and_b32 s{sStr}, s{sM}, {UB - 1024}", r=[f"s{sM}"], w=[f"s{sStr}"])
    P.salu(f"s_lshl3_add_u32 s{sSo}, s{sStr}, 8192", r=[f"s{sStr}"], w=[f"s{sSo}"])
    P.salu(f"s_sub_u32 s{sStr}, s{sStr}, {BLK - 1024}", r=[f"s{sStr}"], w=[f"s{sStr}"])
    P.salu(f"s_and_b32 s{sT2}, s{sM}, s{sRd}", r=[f"s{sM}", f"s{sRd}"], w=[f"s{sT2}"])
    P.salu(f"s_sub_u32 s{sEn}, s{sEn}, s{sT2}", r=[f"s{sEn}", f"s{sT2}"], w=[f"s{sEn}"])
    for o in P.ops[n0:]: o.pin = True
    return P.ops[n0:]

def xor_in(P, dst, L, t, terms):
    for (off, w, sh) in terms:
        P.valu(f"v_bfe_u32 {v(t)}, {v(L)}, {off}, {w}", [v(L)], [v(t)])
        P.valu(f"v_lshlrev_b32 {v(t)}, {sh}, {v(t)}", [v(t)], [v(t)])
        P.valu(f"v_xor_b32 {v(dst)}, {v(t)}, {v(dst)}", [v(t), v(dst)], [v(dst)])
def lanemask(fn):
    m = 0
    for l in range(64):
        if fn(l): m |= 1 << l
    return m
def selc(P, dst, t, ctrue, cfalse, fn):
    P.mov(dst, cfalse); P.mov(t, ctrue); select(P, dst, t, dst, fn)

class Lanes:
    def __init__(self, P, L, regs, sregs):
        self.P = P; self.L = L; self.regs = list(regs); self.F = {}; self.sregs = collections.deque(sregs); self.mul = {}
    def field(self, off, w):
        if (off, w) not in self.F:
            r = self.F[(off, w)] = self.regs.pop(0)
            if off == 0 and w == 6: self.regs.insert(0, r); self.F[(off, w)] = self.L
            elif off == 0: self.P.valu(f"v_and_b32 {v(r)}, {(1 << w) - 1}, {v(self.L)}", [v(self.L)], [v(r)])
            elif off + w == 6: self.P.valu(f"v_lshrrev_b32 {v(r)}, {off}, {v(self.L)}", [v(self.L)], [v(r)])
            else: self.P.valu(f"v_bfe_u32 {v(r)}, {v(self.L)}, {off}, {w}", [v(self.L)], [v(r)])
        return self.F[(off, w)]
    def __call__(self, dst, terms, const=0, sconst=None, xor=()):
        P = self.P; base = None
        terms = sorted(terms, key=lambda x: x[2] & (x[2] - 1) != 0)
        if sconst is not None and not const: base = f"s{sconst}"
        elif sconst is not None or const:
            self.sregs.rotate(-1); x = self.sregs[0]; base = f"s{x}"
            if sconst is not None: P.salu(f"s_add_u32 s{x}, s{sconst}, {const}", r=[f"s{sconst}"], w=[base])
            else: P.salu(f"s_mov_b32 s{x}, {const}", w=[base])
        if not terms or terms[0][2] & (terms[0][2] - 1):
            P.valu(f"v_mov_b32 {v(dst)}, {base or 0}", [base] if base else [], [v(dst)]); base = v(dst)
        for (off, w, mult) in terms:
            f = self.field(off, w)
            if mult & (mult - 1) == 0:
                sh = int(math.log2(mult))
                if base is None: P.valu(f"v_lshlrev_b32 {v(dst)}, {sh}, {v(f)}", [v(f)], [v(dst)])
                else: P.valu(f"v_lshl_add_u32 {v(dst)}, {v(f)}, {sh}, {base}", [v(f), base], [v(dst)])
            else:
                if mult not in self.mul:
                    x = self.mul[mult] = self.sregs.pop(); P.salu(f"s_mov_b32 s{x}, {mult}", w=[f"s{x}"])
                P.valu(f"v_mad_u32_u24 {v(dst)}, {v(f)}, s{self.mul[mult]}, {base}", [v(f), base, f"s{self.mul[mult]}"], [v(dst)])
            base = v(dst)
        for (off, w, sh) in xor:
            if (off, w, sh) not in self.F:
                f = self.field(off, w); r = self.F[(off, w, sh)] = self.regs.pop(0)
                P.valu(f"v_lshlrev_b32 {v(r)}, {sh}, {v(f)}", [v(f)], [v(r)])
            P.valu(f"v_xor_b32 {v(dst)}, {v(self.F[(off, w, sh)])}, {v(dst)}", [v(self.F[(off, w, sh)]), v(dst)], [v(dst)])

SC = sc
DS = dma_spread
def unit0b(P, e4regs):
    E = 1 << 20
    tk_ = ORDER.split(); LATE = [int(c) for w in tk_[tk_.index("cut"):] if w.startswith("s1:") for c in w[3:]]
    LATED = [(int(w[1]), int(c)) for w in tk_[tk_.index("cut"):] if w[0] == "d" for c in w[3:]]
    def dma_spread(P, i, ks, pr, gap):
        ks = [k for k in ks if (i, k) not in LATED]
        if ks: DS(P, i, ks, pr, gap)
    def sc(P, tau, gs, _=None):
        SC(P, tau, [g for g in gs if tau == 0 or g not in LATE], Q1 if tau == 0 else QF)
    SV = 3 * BUFSZ - 16384; SQ = TILE; SK = TAB0
    assert SK + BUFSZ + 16384 <= SCR0 and SV % 128 == 0 and SQ % 128 == 0 and BUFSZ % 128 == 0 and SV >= 2 * BUFSZ + 2 * TILE and SQ + 16384 <= 5 * TILE
    ER = V0; KP = (RES[0], K0 + 24); QP = (RES[0] + 8, K0 + 32); VP = (K0 + 16, K0 + 8); Q1 = RES[1]
    WQR = PBUF[0]
    L, t, vK0, vK1, vQ0, vQ1, vWr, vLin = range(OBLK, OBLK + 8)
    aT = [OBLK + 8 + i for i in range(4)]; aV = [OBLK + 14, OBLK + 15]; vV, aVw = OBLK + 12, OBLK + 13
    Y = [RES[1] + 8 + i for i in range(4)]; y0, y1 = Y[:2]; aTabW = [RES[1] + 12, RES[1] + 13]; aZw = RES[1] + 14; aRw = RES[1] + 15
    sTab, sX, sV = sT0, sT1, sD
    T = lambda k, d: CFG.get(k, d)
    o = P.salu("s_waitcnt lgkmcnt(0)", w=["srd"], early=E); o.nb = T("knb", 120); o.cost = T("kw", 450); o.urgent = True
    nld = [0]
    def timed(o, arr, nb=0, cost=20):
        nld[0] += 1
        o.r = o.r + ["srd"]; o.nb = nb; o.arrive = arr; o.urgent = True; o.early = E; o.cost = cost
        return o
    def V(text, r, w): return P.valu(text, r, w, early=E)
    def S(text, r, w):
        o = P.salu(text, r=r, w=w, early=E); o.urgent = True; return o
    n0 = len(P.ops)
    V(f"v_and_b32 {v(L)}, 63, v0", [], [v(L)])
    V(f"v_lshlrev_b32 {v(vLin)}, 4, {v(L)}", [v(L)], [v(vLin)])
    S(f"s_lshl_b32 s{sT2}, s{sW}, 13", [f"s{sW}"], [f"s{sT2}"])
    S(f"s_add_u32 s{sM}, s{sT2}, 4096", [f"s{sT2}"], [f"s{sM}"])
    if CFG["tw"]:
        S(f"s_lshl_b32 s6, s2, 7\ns_and_b32 s6, s6, 0x7c00", [], ["s6"])
        V(f"v_lshrrev_b32 {v(t)}, 5, v0", [], [v(t)])
        V(f"v_lshlrev_b32 {v(t)}, 7, {v(t)}", [v(t)], [v(t)])
    P.ops.append(P.ops.pop(n0 - 1)); P.ops[-1].after = P.ops[n0 - 1:-1]
    if CFG["tw"]:
        for i, x in enumerate((sWQ, sWK, sWV, sWR)):
            timed(P.add(f"buffer_load_dword {v(QF + 1 + i)}, {v(t)}, {srd(x)}, s6 offen", "VG", r=[v(t), "s6"], w=[v(QF + 1 + i), "ord"], note="touch"), 0, 0, 30)
    def wdma(srdn, lds, pw, vo, arr, pr=[]):
        def f(n_):
            j4, j = divmod(n_, 4); so = (sT2, sM)[j4]
            if j == 0: S(f"s_add_u32 m0, s{lds[0]}, {lds[1] + 4096 * j4}", [f"s{lds[0]}"], ["m0"])
            return timed(P.add(f"buffer_load_dwordx4 {v(vo[j & 1])}, {srd(srdn)}, s{so} offen offset:{j*1024} lds", "VL", r=[v(vo[j & 1]), "m0", f"s{so}"] + pr, w=[pw, "ord"], note="wdma"), arr, 0, 8)
        return [lambda n_=n_: f(n_) for n_ in range(8)]
    def edma(js, src, pw, arr, sb=sT3, pr=[], lo=0):
        def f(n_, j):
            so = sD + 1 + n_ % 2
            if n_ % 2 == 0: S(f"s_add_u32 m0, s{sLn}, {lo + j * RG}", [f"s{sLn}"], ["m0"])
            S(f"s_add_u32 s{so}, s{sb}, {src(j) - (n_ % 2) * RG}", [f"s{sb}"], [f"s{so}"])
            return timed(P.add(f"buffer_load_dwordx4 {v(aDMA)}, {srd(sE)}, s{so} offen offset:{(n_ % 2) * RG}{LDPOL} lds", "VL", r=[v(aDMA), "m0", f"s{so}"] + pr, w=[pw, "ord"], note="dma"), arr, 0, 8)
        return [lambda n_=n_, j=j: f(n_, j) for n_, j in enumerate(js)]
    def mix(x, y, first, per):
        x = list(x); y = list(y); r = []
        for n_ in range(1000):
            if y and n_ >= first and (n_ - first) % per == 0: r += [y.pop(0), y.pop(0)]
            if not x and not y: return r
            r.append(x.pop(0) if x else None)
    def edma1(js, src, pw, arr, cost):
        for j in js:
            S(f"s_add_u32 m0, s{sLn}, {j * RG}", [f"s{sLn}"], ["m0"])
            S(f"s_add_u32 s{sSo}, s{sT3}, {src(j)}", [f"s{sT3}"], [f"s{sSo}"])
            timed(P.add(f"buffer_load_dwordx4 {v(aDMA)}, {srd(sE)}, s{sSo} offen{LDPOL} lds", "VL", r=[v(aDMA), "m0", f"s{sSo}"], w=[pw, "ord"], note="dma"), arr, 0, cost)
    tQ, tE0, tK, tR, tV, tE1, tE2, tO = T("tQ", 1600), T("tE0", 2400), T("tK", 2800), T("tR", 4350), T("tV", 4000), T("tE1b", 5000), T("tE2b", 6000), T("tO", 6000)
    EF = T("ef", -1)
    for j in range(8):
        if j == EF: edma1([10, 11], lambda j: j * 2048, "dE5", tE0, 20)
        so = (sT2, sM)[j >> 2]
        timed(P.add(f"buffer_load_dwordx4 {v(WQR + 4 * j, 4)}, {v(vLin)}, {srd(sWQ)}, s{so} offen offset:{(j & 3) * 1024}", "VG", r=[v(vLin), f"s{so}"], w=vs(WQR + 4 * j, 4) + ["ord"], note="gl"), tQ + 50 * j, 0, 25)
    first = P.ops[-1]; n1 = len(P.ops)
    V(f"v_and_b32 {v(aDMA)}, 48, {v(vLin)}", [v(vLin)], [v(aDMA)])
    V(f"v_and_b32 {v(t)}, 48, {v(L)}", [v(L)], [v(t)])
    V(f"v_lshl_add_u32 {v(aDMA)}, {v(t)}, 2, {v(aDMA)}", [v(t), v(aDMA)], [v(aDMA)])
    V(f"v_and_b32 {v(t)}, 12, {v(L)}", [v(L)], [v(t)])
    V(f"v_lshl_add_u32 {v(aDMA)}, {v(t)}, 6, {v(aDMA)}", [v(t), v(aDMA)], [v(aDMA)])
    if CFG.get("fake") == 6: V(f"v_mov_b32 {v(aDMA)}, {v(vLin)}", [v(vLin)], [v(aDMA)])
    S(f"s_lshl_b32 s{sT3}, s{sH}, 10\ns_add_u32 s{sT3}, s{sT3}, s{sB0}", [f"s{sH}", f"s{sB0}"], [f"s{sT3}"])
    S(f"s_mul_i32 s{sLn}, s{sP}, {BUFSZ}\ns_mul_i32 s{sX}, s{sH}, {BLK}\ns_add_u32 s{sLn}, s{sLn}, s{sX}", [f"s{sP}", f"s{sH}"], [f"s{sLn}", f"s{sX}"])
    S("s_waitcnt lgkmcnt(0)", [], ["srd"]).nb = T("le", 950) - 40
    for o in P.ops[n1:]: o.after = list(o.after) + [first]
    if EF < 0: edma1([10, 11], lambda j: j * 2048, "dE5", tE0, 20)
    edma1([0, 1], lambda j: j * 2048, "dE0", tE0, 20)
    for o in P.ops[n1:]:
        if o.kind == "VL": o.nb = T("le", 950) + (T("le2", 0) if "dE0" in o.w else 0)
    n1 = len(P.ops)
    LE = Lanes(P, L, list(range(V0 + 32, V0 + 48)) + list(range(K0 + 16, K0 + 24)), range(6, 12))
    V(f"v_and_b32 {v(t)}, 16, {v(L)}", [v(L)], [v(t)])
    V(f"v_mov_b32 {v(vV)}, {v(t)}", [v(t)], [v(vV)])
    V(f"v_lshlrev_b32 {v(t)}, 1, {v(t)}", [v(t)], [v(t)])
    V(f"v_xor_b32 {v(vK0)}, {v(vLin)}, {v(t)}", [v(vLin), v(t)], [v(vK0)])
    V(f"v_xor_b32 {v(vK1)}, 64, {v(vK0)}", [v(vK0)], [v(vK1)])
    S(f"s_mul_i32 s{sV}, s{sP}, {BUFSZ}\ns_lshl_b32 s{sX}, s{sH}, 13\ns_add_u32 s{sV}, s{sV}, s{sX}", [f"s{sH}", f"s{sP}"], [f"s{sV}", f"s{sX}"])
    S(f"s_add_u32 s{sX}, s{sV}, {SQ}", [f"s{sV}"], [f"s{sX}"])
    V(f"v_add_u32 {v(vQ0)}, s{sX}, {v(vK0)}", [v(vK0), f"s{sX}"], [v(vQ0)])
    V(f"v_add_u32 {v(vQ1)}, s{sX}, {v(vK1)}", [v(vK1), f"s{sX}"], [v(vQ1)])
    LE(vWr, [(3, 3, 256), (0, 3, 16)])
    P.valu(f"v_xor_b32 {v(vWr)}, {v(vWr)}, {v(vV)}", [v(vWr), v(vV)], [v(vWr)])
    P.valu(f"v_xor_b32 {v(vV)}, {v(vLin)}, {v(vV)}", [v(vLin), v(vV)], [v(vV)])
    P.salu(f"s_mul_i32 s{sX}, s{sH}, {BUFSZ}", r=[f"s{sH}"], w=[f"s{sX}"])
    LE(aT[0], [(4, 2, 1024), (2, 2, 128), (3, 1, 32), (4, 1, 64), (0, 2, 8)], const=SQ, sconst=sX)
    for mt in range(1, 4): P.valu(f"v_xor_b32 {v(aT[mt])}, {mt * 32}, {v(aT[0])}", [v(aT[0])], [v(aT[mt])])
    P.salu(f"s_mul_i32 s{sX}, s{sP}, {BUFSZ}", r=[f"s{sP}"], w=[f"s{sX}"])
    LE(aE, [(2, 2, BLK), (0, 2, 64), (4, 2, 16)], sconst=sX)
    P.salu(f"s_mul_i32 s{sRb}, s{sH}, {UB}\ns_add_u32 s{sRb}, s{sRb}, s{sB0}\ns_add_u32 s{sRb}, s{sRb}, {96 * 256}\ns_mul_i32 s{sRd}, s{sH}, {4096 - 4 * UB}\ns_add_u32 s{sRd}, s{sRd}, {8 * UB - 96 * 256}",
           r=[f"s{sH}", f"s{sB0}"], w=[f"s{sRb}", f"s{sRd}"])
    P.salu(f"s_mul_i32 s{sX}, s{sW}, {SCRSZ}\ns_add_u32 s{sX}, s{sX}, {SCR0}", r=[f"s{sW}"], w=[f"s{sX}"])
    LE(aPw, [(4, 2, 64), (1, 1, 32), (2, 2, 8), (0, 1, 2)], sconst=sX)
    LE(aPr, [(2, 2, 64), (0, 1, 32), (4, 1, 16)], sconst=sX)
    LE(aZw, [], const=256, sconst=sX)
    select(P, aPr, aPr, aZw, lambda l: ((l >> 1) & 1) == (l >> 5))
    P.mov(VR, 0)
    LE(aZw, [(0, 2, CST), (2, 2, 4)], const=256, sconst=sX)
    P.dsw(aZw, VR, 1, 0, pw=["L:Ps"])
    P.salu(f"s_lshl_b32 s{sX}, s{sW}, 8", r=[f"s{sW}"], w=[f"s{sX}"])
    LE(aZw, [(0, 6, 4)], const=FLG0, sconst=sX)
    P.salu(f"s_add_u32 s{sFm}, s{sX}, {FLG0 - FOFF}\ns_xor_b32 s{sFp}, s{sX}, 256\ns_add_u32 s{sFp}, s{sFp}, {FLG0 - FOFF}", r=[f"s{sX}"], w=[f"s{sFm}", f"s{sFp}"])
    P.dsw(aZw, aZw, 1, 0, pw=["dF"], pr=["L:Ps"])
    for o in P.ops[n1:]: o.after = list(o.after) + [first]
    def bar(r, w):
        o = P.add("s_barrier", "BAR", r=r, w=w + ["barorder"], early=E); o.urgent = True; return o
    def trload(W, base, vpat, pseudo, rev=0):
        def f(mt, ks, jh):
            o = W + (mt * 4 + ks) * 4 + 2 * jh
            addr = aV[mt >> 1] if vpat else aT[mt]
            if W == WK and ks == 0 and jh == 0: V(f"v_add_u32 {v(addr)}, {SK - SQ}, {v(addr)}", [v(addr)], [v(addr)])
            off = base + ks * 4096 + jh * 512 + ((mt & 1) * 8 if vpat else 0)
            return P.add(f"ds_read_b64_tr_b16 {a(o, 2)}, {v(addr)} offset:{off}", "DR", r=[v(addr)] + pseudo, w=as_(o, 2), note="tr", early=E)
        return [lambda mt=mt, ks=ks, jh=jh: f(mt, ks, jh) for mt in MTO(rev) for ks in range(4) for jh in range(2)]
    def qbar(r, w): return [lambda: bar(r, w)]
    gate = []
    for j in range(8):
        for i in range(4):
            x = WQR + 4 * j + i; y = Y[i]
            V(f"v_and_b32 {v(y)}, 0xffff0000, {v(x)}", [v(x)], [v(y)])
            V(f"v_lshlrev_b32 {v(x)}, 16, {v(x)}", [v(x)], [v(x)])
            V(f"v_mul_f32 {v(y)}, s{sC2}, {v(y)}", [v(y)], [v(y)])
            V(f"v_mul_f32 {v(x)}, s{sC2}, {v(x)}", [v(x)], [v(x)])
            P.cvt(x, x, y).early = E
        o = P.dsw((vQ0, vQ1)[j & 1], WQR + 4 * j, 4, j * 1024, pw=["dz"]); o.early = E; o.urgent = True; gate.append(o)
    for j, f in enumerate(wdma(sWK, (sV, SK), "dK", (vK0, vK1), tK)): f().after = [gate[j // T("kg", 1)]]
    SP = T("sp", 2)
    rl = edma(range(2), lambda j: j * 2 * UB, "dR0", tR, sb=sRb, lo=2 * BUFSZ) + edma(range(2, 4), lambda j: j * 2 * UB, "dR", tR, sb=sRb, lo=2 * BUFSZ)
    tq = trload(WQ, 0, False, ["B0", "L:q"])
    if SP:
        if SP == 3:
            for f in rl[:2]: f().after = [gate[7]]
            rl = rl[2:]
        bar(["dz", "dE5", "ord"], ["B0"])
        e5 = eload(P, 5, ["B0"], fixed=e4regs)
        for o in P.ops[-4:]: o.urgent = True
    else:
        for f in rl: f().after = [gate[T("rg", 7)]]
        bar(["dz", "dE0", "ord"], ["B0", "B1"])
        e5 = eload(P, 5, ["B1"], fixed=e4regs); e0 = eload(P, 0, ["B1"])
        for o in P.ops[-8:]: o.urgent = True
    lead = [f() for f in tq[:T("lead", 24 if SP else 20)]]
    for o in lead: o.urgent = True
    n1 = len(P.ops)
    for x in [pb + 14 + i for pb in PBUF for i in range(2)]: P.mov(x, 0)
    P.salu(f"s_mul_i32 s{sX}, s{sH}, {BUFSZ}", r=[f"s{sH}"], w=[f"s{sX}"])
    LE(aV[0], [(4, 2, 1024), (2, 2, 128), (3, 1, 16), (0, 2, 32)], const=SV, sconst=sX)
    P.valu(f"v_xor_b32 {v(aV[1])}, 16, {v(aV[0])}", [v(aV[0])], [v(aV[1])])
    P.salu(f"s_lshl_b32 s{sX}, s{sH}, 7", r=[f"s{sH}"], w=[f"s{sX}"])
    LE(aST, [(1, 3, 512), (0, 1, 16), (4, 2, 32)], sconst=sX)
    P.salu(f"s_mul_i32 s{sTab}, s{sW}, {TABSZ}\ns_add_u32 s{sTab}, s{sTab}, {TAB0}", r=[f"s{sW}"], w=[f"s{sTab}"])
    LE(aVr, [(3, 2, 128), (2, 1, 64), (0, 2, 8), (5, 1, 4)], const=VOFF, sconst=sTab)
    LE(aKr, [(3, 1, 256), (1, 1, 128), (0, 1, 64), (4, 2, 16)], sconst=sTab, xor=[(3, 1, 5), (1, 1, 4)])
    LE(aQa, [(2, 2, 128), (0, 1, 64), (4, 2, 16)], const=512, sconst=sTab, xor=[(2, 2, 4)])
    LE(aZw, [], const=ZOFF, sconst=sTab)
    select(P, aQa, aQa, aZw, lambda l: (l & 2) == 0)
    LE(aCw, [(4, 2, CST), (0, 4, 4)], sconst=sTab)
    LE(aZw, [(0, 3, US), (3, 2, 4)], const=ZOFF, sconst=sTab)
    LE(aTabW[0], [(2, 2, US), (0, 2, 128), (5, 1, 16), (4, 1, 8)], sconst=sTab, xor=[(0, 2, 4)])
    P.valu(f"v_xor_b32 {v(aTabW[1])}, 32, {v(aTabW[0])}", [v(aTabW[0])], [v(aTabW[1])])
    LE(aVw, [(4, 2, US), (0, 4, 8)], const=VOFF, sconst=sTab)
    P.salu(f"s_lshl_b32 s{sX}, s{sW}, 9", r=[f"s{sW}"], w=[f"s{sX}"])
    LE(aRw, [(0, 4, 16)], const=RR0, sconst=sX)
    P.mov(t, DUMP); select(P, aRw, aRw, t, lambda l: (l >> 4) == ((l >> 2) & 3))
    selc(P, ONES, t, "0x3f803f80", 0, lambda l: (l & 2) == 0)
    for i in range(1, 4): P.valu(f"v_mov_b32 {v(ONES + i)}, {v(ONES)}", [v(ONES)], [v(ONES + i)])
    selc(P, IDX, t, "0xeeeeeeee", "0x44444444", lambda l: l & 1)
    P.mov(t, "0xe4eeeeee"); select(P, IDX, t, IDX, lambda l: (l & 1) and l >= 32)
    selc(P, SEL0, t, "0x07060302", "0x0c0c0c0c", lambda l: not (l & 16))
    selc(P, SEL1, t, "0x07060302", "0x0c0c0c0c", lambda l: (l & 16))
    P.mov(CHK, 0)
    P.salu(f"s_lshl_b32 s{sEn}, s{sH}, 12\ns_add_u32 s{sEn}, s{sEn}, s{sB0}\ns_add_u32 s{sEn}, s{sEn}, {UB}", r=[f"s{sH}", f"s{sB0}"], w=[f"s{sEn}"])
    P.salu(f"s_mov_b32 s{sStr}, {1024 - BLK}", w=[f"s{sStr}"])
    for o in P.ops[n1:]: o.after = list(o.after) + ([first] if not T("al", 1) else lead)
    G = T("lg", 96)
    tk = trload(WK, 0, False, ["B2", "L:k"])
    wv = wdma(sWV, (sV, SV), "dV", (vV, vV), tV)
    if SP:
        P.queue.extend(tq[len(lead):] + rl)
        for mt in range(4):
            qch(P, mt, e5, 0, Q1)
        assert not P.queue
        bar(["dE0", "dK"] if SP == 1 else ["dE0"], ["B1"] + (["B2"] if SP == 1 else [])).after = [[o for o in P.ops if o.kind in MK][-T("b1", 3)]]
        e0 = eload(P, 0, ["B1"])
        for o in P.ops[-4:]: o.urgent = True
        if SP == 1:
            for f in tk[:6]: f().urgent = True
            P.queue.extend(mix(tk[6:], wv, T("m1", 10), T("m2", 7)))
        elif SP == 2: P.queue.extend([None] * 2 + qbar(["dK"], ["B2"]) + mix(tk, wv, T("m1", 32), T("m2", 1)))
        else: P.queue.extend([None] * T("w0", 2) + wv[:T("wn", 4)] + qbar(["dK"], ["B2"]) + tk[:15 - T("w0", 2) - T("wn", 4)])
        for mt in MTO(1): qch(P, mt, e0, 1)
        if SP == 3:
            assert not P.queue
            k0_ = 15 - T("w0", 2) - T("wn", 4); ld = [f() for f in tk[k0_:T("kl", 14)]]
            for o in ld: o.urgent = True
            P.queue.extend(tk[max(k0_, T("kl", 14)):] + wv[T("wn", 4):])
    else:
        P.queue.extend(tq[len(lead):] + qbar(["dK"], ["B2"]) + mix(tk, wv, T("m1", 10), T("m2", 11)))
        for mt in range(4):
            for x in ((0, 1), (1, 0))[mt & 1]:
                if x == 0: qch(P, mt, e5, 0, Q1)
                else: qch(P, mt, e0, 1)
    [o for o in P.ops if o.kind == "M16"][0].after = lead
    for mt in range(4):
        for x in ((0, 1), (1, 0))[mt & 1]:
            if x == 0: kch(P, 5, mt, e5)
            else: kch(P, 0, mt, e0)
    efree(P, e0)
    assert not P.queue
    if T("b3", 0) == 0: sc(P, 0, [0, 5]); sc(P, 1, [5, 0], Q1)
    bar(["dR0" if SP == 3 else "dR"], ["L:k", "L:q", "B3"]).after = [P.lastm]
    er = [[ER + 16 * z + 4 * ks for ks in range(4)] for z in range(2)]
    def erd(z, ks, b_):
        o = P.dsr(er[z][ks], 4, aE, 2 * BUFSZ + z * TILE + ks * KSTEP, [b_, "L:r"], "Erem"); o.early = E; o.urgent = z == 0; return o
    for z in range(1 if SP == 3 else 2):
        for ks in range(4): erd(z, ks, "B3")
    if T("b3", 0): sc(P, 0, [0, 5]); sc(P, 1, [5, 0], Q1)
    el = edma(range(2, 6), lambda j: j * 2048, "dE1", tE1, pr=["B3"]) + edma(range(6, 10), lambda j: j * 2048, "dE2", tE2, pr=["B3"])
    tv = trload(WV, 0, True, ["B4", "L:v"], 1)
    if SP == 3:
        x = mix([], el[:4], 0, T("q34", 14)); x += [None] * (T("b3b", 20) - len(x)) + qbar(["dR"], ["B3b"]) + [lambda ks=ks: erd(1, ks, "B3b") for ks in range(4)] + mix([], el[4:], 2, 3)
        P.queue.extend(x + [None] * (T("b4", 40) - len(x)) + qbar(["dV", "dF"], ["L:r", "B4"]) + tv)
    elif T("e34", 10):
        x = mix([], el[:4], T("e12", 0), T("q34", 14)); P.queue.extend(x + [None] * (37 - len(x)) + qbar(["dV", "dF"], ["L:r", "B4"]) + tv + mix([], el[4:], T("e34", 10), 6))
    else: P.queue.extend(mix([], el, 0, T("q34", 14)) + [None] * T("qv", 14) + qbar(["dV", "dF"], ["L:r", "B4"]) + tv)
    P.dsw(aZw, VR, 1, 0, pw=["L:Qtab"], pr=["B3"])
    def dsw2(addr, src, off, pw):
        if T("w64", 1): P.dsw(addr, src, 2, off, pw=[pw], pr=["B3"]).lazy = T("lz", 0); return
        for i in range(2):
            o = P.dsw(addr, src + i, 1, off + 4 * i, pw=[pw], pr=["B3"]); o.lazy = T("lz", 0)
    mrr = lanemask(lambda l: (l >> 4) == ((l >> 2) & 3))
    def srr(z):
        d = P.alloc()
        for ks in range(2): P.mfma(d, ("v", KP[z] + 4 * ks), ("v", QP[z] + 4 * ks), first=(ks == 0), note="Srr")
        for i in range(4): P.exp(d + i)
        P.op2("v_add_f32", y0, d, d + 1); P.op2("v_add_f32", y1, d + 2, d + 3)
        P.cvt(d, d, d + 1); P.cvt(d + 1, d + 2, d + 3); P.op2("v_add_f32", d + 2, y0, y1)
        for i in range(3):
            o = P.dsw(aRw, d + i, 1, z * 256 + 4 * i, pw=["L:rr"], pr=["B4"]); o.cost = 8; o.early = 6000
        P.release(d)
    for z in range(2):
        for k_, (W, X, off, pw, nt) in enumerate(((WK, KP[z], 0, "L:Ktab", "Krem"), (WQ, QP[z], 512, "L:Qtab", "Qrem"))[::(1, -1)[z]]):
            for n_, mt in enumerate(MTO(z + (W == WQ))):
                if z == 1 and k_ == (SP == 3) and n_ == 1: srr(0)
                b = X + 4 * (mt >> 1) + (mt & 1)
                pchain(P, W, mt, er[z], False, b, nt, dst1=b + 2)
            for ks in range(2):
                for hf in range(2): dsw2(aTabW[ks], X + 4 * ks + 2 * hf, z * 4 * US + off + hf * 64, pw)
            if z == 0 and k_ == 0: P.dsr(KRS, 4, aKr, 0, ["L:Ktab"], "KR")
    for z in (1, 0):
        for n_, mt in enumerate(MTO(z)):
            pchain(P, WV, mt, er[z], True, VP[z] + 2 * mt, "Vrem")
            dsw2(aVw, VP[z] + 2 * mt, z * 4 * US + mt * 128, "L:Vtab")
            if z == 1 and n_ == 1: srr(1)
    sc(P, 0, [6]); sc(P, 1, [6], Q1)
    e0 = eload(P, 0, ["B1"])
    for mt in MTO(1): vch(P, 5, mt, e5)
    P.add(f"ds_read2_b32 {v(VR, 2)}, {v(aVr)} offset0:0 offset1:8", "DR", r=[v(aVr), "L:Vtab"], w=vs(VR, 2), note="VR")
    for mt in range(2): vch(P, 0, mt, e0)
    bar(["dE1"], ["L:v", "B5"]).after = [[o for o in P.ops if o.kind in MK][-T("b5", 6)]]
    e1 = eload(P, 1, ["B5"], fixed=e4regs)
    S(f"s_lshl_b32 s{sM}, s{sH}, 14\ns_lshl_b32 s{sX}, s{sP}, 7\ns_add_u32 s{sM}, s{sM}, s{sX}", [f"s{sH}", f"s{sP}"], [f"s{sM}", f"s{sX}"])
    def fr(j):
        so = sD + 1 + j % 2
        if j % 4 == 0: S(f"s_add_u32 m0, s{sV}, {SV + j * 1024}", [f"s{sV}"], ["m0"])
        S(f"s_add_u32 s{so}, s{sM}, {j * 2048 - (j % 4) * 1024}", [f"s{sM}"], [f"s{so}"])
        return timed(P.add(f"buffer_load_dwordx4 {v(vWr)}, {srd(sWR)}, s{so} offen offset:{(j % 4) * 1024} lds", "VL", r=[v(vWr), "m0", f"s{so}", "B5"], w=["dO", "ord"], note="wdma"), tO, 0, 8)
    assert not P.queue
    P.queue.extend(mix([], [lambda j=j: fr(j) for j in range(8)], 0, T("qo", 8)))
    P.salu(f"s_mul_i32 s{sSo}, s{sH}, {TILE - BLK}\ns_add_u32 s{sLn}, s{sLn}, s{sSo}\ns_add_u32 s{sLn}, s{sLn}, {2*BUFSZ}\ns_mov_b32 s{sSo}, 8192", r=[f"s{sLn}", f"s{sH}"], w=[f"s{sLn}", f"s{sSo}"])
    for mt in range(2, 4): vch(P, 0, mt, e0)
    efree(P, e0)
    g_ = T("u0g", 1)
    def kv(t_, e, hooks):
        for mt in range(4): kch(P, t_, mt, e); hooks.get(mt, lambda: 0)()
        for mt in range(4):
            vch(P, t_, mt, e)
            if mt == 0: sc(P, 0, [t_]); sc(P, 1, [t_], Q1)
            hooks.get(4 + mt, lambda: 0)()
        efree(P, e)
    X = {}; R = Rem(P)
    def h2(): X[2] = eload(P, 2, ["B5"])
    def h4():
        bar(["dE2", "dO"], ["B6"]).after = [P.lastm]; X[4] = eload(P, 4, ["B6"], fixed=e4regs)
        x = trload(WR, 0, True, ["B6", "L:w"])
        P.queue.extend([None] * 4 + x[:26] + [None] * 8 + x[26:])
    def h3(): X[3] = eload(P, 3, ["B6"])
    def h5(): X[5] = eload(P, 5, ["B1"], fixed=[RES[1] + 4 * i for i in range(4)]); R.s(1); R.soft()
    def D(j, pr): return lambda: dma_spread(P, j // 4, [j % 4], [pr], 1)
    def h8(): bar([], ["L:w", "B8", "B"]).after = [P.lastm]
    if T("dl0", 1):
        kv(1, e1, {6: h2})
        kv(2, X[2], {5: h4, 7: D(0, "B5")})
        kv(4, X[4], {1: D(1, "B5"), 3: D(2, "B5"), 5: D(3, "B5"), 6: h3})
    else:
        kv(1, e1, {6: h2, 7: D(0, "B5")})
        kv(2, X[2], {1: D(1, "B5"), 3: D(2, "B5"), 4: D(3, "B5"), 5: h4})
        kv(4, X[4], {6: h3})
    kv(3, X[3], {0: h8, 1: D(4, "B8"), 2: R.ld, 3: D(5, "B8"), 4: lambda: R.s(0), 5: h5, 6: D(6, "B8")})
    lsum(P, 0)
    e0 = eload(P, 0, ["B1"])
    for mt in range(4):
        rch(P, mt, X[5], 0)
        if mt & 1 == 0: D(7 + mt // 2, "B8")()
    for n_, mt in enumerate(MTO(1)):
        rch(P, mt, e0, 1)
        if n_ == 1: m32st(P, 0)
        else: D(9 + (n_ + 1) // 2, "B8")()
    efree(P, e0)
    assert P.hook is None and not P.queue
    P.share()
    for o in P.ops:
        if o.note in ("X0", "X1") and o.kind == "V": o.early = T("xe", 4000)
    seen = set()
    for o in P.ops:
        for x in o.r:
            assert x in seen or not (x[0] == "a" and x[1:].isdigit() or x[0] == "B"), (x, o)
        seen.update(o.w)

def epilogue(P):
    if CFG.get("epol") is not None: P.stpol = ["", " nt", " sc1", " sc0 sc1"][CFG["epol"]]
    assert CFG["fl"]; P.fl = 2
    check(P, "e")
    for o in P.ops: o.urgent = False
    L, aCr, aSr, aVa, aRr, aLr = aKr, aQa, aPw, aPr, aCw, aDMA
    RA = K0; VA = K0 + 32; PR = QF
    fq = P.alloc()
    lane_id(P, L)
    LE = Lanes(P, L, [aVr, fq, fq + 1, fq + 2, fq + 3], range(6, 12))
    P.salu(f"s_mul_i32 s{sT2}, s{sW}, {TABSZ}", r=[f"s{sW}"], w=[f"s{sT2}"])
    LE(aLr, [(2, 2, US), (0, 2, CST)], const=TAB0, sconst=sT2)
    P.valu(f"v_lshl_add_u32 {v(aCr)}, {v(LE.field(4, 2))}, 4, {v(aLr)}", [v(LE.field(4, 2)), v(aLr)], [v(aCr)])
    LE(aVa, [(4, 2, US), (0, 4, 8)], const=TAB0 + VOFF, sconst=sT2)
    P.salu(f"s_lshl_b32 s{sT3}, s{sW}, 9", r=[f"s{sW}"], w=[f"s{sT3}"])
    LE(aRr, [(0, 4, 16)], const=RR0, sconst=sT3)
    P.salu(f"s_mov_b32 s{sM}, {UB - 1024}", w=[f"s{sM}"])
    P.valu(f"v_mad_u32_u24 {v(aSr)}, {v(LE.field(2, 2))}, s{sM}, {v(aST)}", [v(LE.field(2, 2)), f"s{sM}", v(aST)], [v(aSr)])
    P.release(fq)
    mrr = lanemask(lambda l: (l >> 4) == ((l >> 2) & 3))
    def rem_ld():
        for mt in range(4):
            for z in range(2): P.dsr(VA + 4 * mt + 2 * z, 2, aVa, z * 4 * US + mt * 128, ["L:Vtab"], "ctx")
        for z in range(2): P.dsr(PR + 4 * z, 2, aRr, z * 256, ["L:rr"], "ctx")
        P.mov2(PR + 2)
        P.salu(f"s_mov_b32 vcc_lo, 0x{mrr & 0xffffffff:x}", w=["vcc"]); P.salu(f"s_mov_b32 vcc_hi, 0x{mrr >> 32:x}", r=["vcc"], w=["vcc"])
        for x in (PR, PR + 1, PR + 4, PR + 5): P.valu(f"v_cndmask_b32 {v(x)}, 0, {v(x)}, vcc", [v(x), "vcc"], [v(x)])
    IV = (SEL0 + SEL0 % 2, KRS + 2)
    def rem_mm(z, c):
        ls = P.alloc()
        for mt in range(4): P.hold(P.dsr(c[mt], 4, aCr, z * 4 * US + 64 * mt, ["L:Qtab"], "ctx"), 10)
        P.hold(P.dsr(ls, 4, aLr, z * 4 * US + 256, ["L:Qtab"], "lsum"), 10); P.dsr(PR + 6 + z, 1, aRr, z * 256 + 8, ["L:rr"], "lsum")
        P.op2("v_add_f32", ls, ls, ls + 1); P.op2("v_add_f32", ls + 2, ls + 2, ls + 3); P.op2("v_add_f32", ls, ls, PR + 6 + z); P.op2("v_add_f32", ls, ls, ls + 2)
        P.valu(f"v_rcp_f32 {v(IV[z])}, {v(ls)}", [v(ls)], [v(IV[z])], kind="T")
        P.valu(f"v_max3_f32 {v(CHK)}, {v(CHK)}, {v(ls)}, {v(IV[z])}", [v(CHK), v(ls), v(IV[z])], [v(CHK)])
        P.release(ls)
        for mt in range(4): P.mfma(c[mt], ("v", VA + 4 * mt), ("v", PR + 2 * z), note="PVrr")
    def final(r, c, inv, pk, prev):
        n0 = len(P.ops)
        for mt in range(4):
            if pk:
                for i in (0, 2):
                    x = r + 4 * mt + i
                    o = P.valu(f"v_pk_fma_f32 {v(x, 2)}, {v(c[mt] + i, 2)}, {v(inv, 2)}, {v(x, 2)} op_sel_hi:[1,0,1]", vs(x, 2) + vs(c[mt] + i, 2) + [v(inv)], vs(x, 2))
                    o.after = [P.lastm]; o.delay = 32
            else:
                for i in range(4):
                    x = r + 4 * mt + i
                    P.valu(f"v_fmac_f32 {v(x)}, {v(c[mt] + i)}, {v(inv)}", [v(x), v(c[mt] + i), v(inv)], [v(x)])
            if mt & 1: pack_half(P, r, mt >> 1, "Dend")
        x = shuffle(P, r, "Dend")
        for o in x[4:]: o.early = prev
        return x
    def rem_st(z, x):
        P.salu(f"s_add_u32 s{sD + z}, s{sB0}, {96 * 256 + 4 * z * UB}", r=[f"s{sB0}"], w=[f"s{sD + z}"])
        stores(P, RA + 16 * z, sD + z, aSr, "Drem", x, True)
    toks = EPI.split(); E = {}; C = {0: [PBUF[0] + 4 * i for i in range(4)]}; NPK = CFG.get("npk", 2)
    for w in toks:
        h, _, arg = w.partition(":")
        if w[0] == "e": E[int(w[1])] = ESet(P, int(w[1]), ["B"], "Erem")
        elif w[0] == "s": sc(P, 5, [int(c) for c in arg])
        elif w[0] == "l": lsum(P, int(w[1]))
        elif h == "p4": pv(P, 4, [int(c) for c in (arg or "0123")])
        elif h == "p5":
            for mt in (arg or "0123"):
                for kp in range(3): P.mfma(OBLK + 4 * int(mt), ("v", V0 + 16 * kp + 4 * int(mt)), ("v", PBUF[1] + 4 * kp), note="PV5")
        elif w == "m5": m32st(P, 5, 4, sStP)
        elif w == "rl": rem_ld()
        elif w[0] == "R":
            z = int(w[1])
            for c in (arg or "0123"): chain(P, WR, MTO(z)[int(c)], E[z], False, RA + 16 * z + 4 * MTO(z)[int(c)], "Rrem")
            if (arg or "3")[-1] == "3": efree(P, E[z])
        elif w[0] == "c":
            z = int(w[1])
            if z: C[1] = [P.alloc() for _ in range(4)]
            rem_mm(z, C[z])
        else: raise ValueError(w)
    P.lastm.marker = True
    rem_st(0, final(RA, C[0], IV[0], NPK >= 3, 600))
    rem_st(1, final(RA + 16, C[1], IV[1], NPK >= 2, 300))
    for q in C[1]: P.release(q)
    P.fin[5] = final(RES[1], [OBLK + 4 * i for i in range(4)], INV, NPK >= 1, 0)
    m32st(P, None, 5, sStP)
EPI = os.environ.get("EPI", "s5:6012 e0 s5:345 l4 p4 R0:012 rl e1 R0:3 R1:0 c0 R1:1 m5 R1:23 l5 p5:01 c1 p5:23")

def program():
    tag = "f"
    sched.CRIT_WIN = CFG["cw"]; sched.BACKPACK = bool(CFG["bp"]); sched.DS_LAT = CFG.get("dl", 84); sched.DS_COV = CFG.get("dc", 200); sched.DS_FINE = True; sched.NOISE[:] = [CFG["noise"], CFG["seed"]]
    old.CFG["stamps"] = CFG["stamps"]
    init = [f"s_mov_b32 s{sCnt}, {5 if CFG.get('lst') or CFG.get('sst') or CFG.get('per') else 8}", f"s_mov_b32 s{sBits}, 64", f"s_mov_b32 s{sStC}, s{sB0}", f"s_mov_b32 s{sStP}, 0x7ff00000", f"s_mov_b32 s{sTog}, {2*BUFSZ}",
            f"s_mov_b32 s{sBias}, {f32(math.log2(1 + 2 ** -8.5))}", f"s_mov_b32 s{sBias+1}, 0", f"s_mov_b32 s{sSel}, 0x07060302", f"s_mov_b32 s{sC2}, {f32(0.125 * math.log2(math.e) * (1 + 2 ** -8 * math.log(2)) ** bin(CFG['qtr'] & 3).count('1'))}", f"s_mov_b32 s{sMsk}, 0x55555555", f"s_mov_b32 s{sMsk+1}, 0x55555555"]
    drain = [Item(nop=8), Item(lgkm=0)]
    rep = bool(CFG.get("report"))
    def mk():
        P = Prog(); body(P); assert len(P.free) == NPOOL
        mk.shr = P.share()
        for i_, o in enumerate(P.ops): o.late = i_ >= P.cut
        for o in P.ops:
            if o.kind in ("VL", "DW"): o.pin = True
        if CFG["seam"]:
            P.seam.pin = True; P.ops[0].urgent = True; P.ops[0].early = 20000; P.ops[0].glue = 99
            for o in P.ops[1:]: o.after = list(o.after) + [P.ops[0]]
        else: [o for o in P.ops if o.kind in MK][-1 - CFG.get("cutm", 8)].pin = True
        return P.ops
    P2 = Prog(); body(P2)
    pre3 = []
    br = [Item(raw=f"s_cmp_lg_u32 s{sCnt}, 0"), Item(raw=f"s_cbranch_scc1 L_loop{tag}")]
    i2, left, t2, e2 = schedule_loop(alloc_loop(mk, POOL), report=rep)
    if CFG.get("looponly"):
        print("LOOP", t2, mk.shr[0], len(left)); sys.exit(0)
    k_ = max(it.op.it for it in i2 if it.op is not None)
    if CFG["seam"] == 2:
        assert i2[-1].op.kind == "VS" and i2[-2].op.kind == "VS"
        assert i2[0].op.marker if CFG["sync"] else (i2[0].vm is not None and i2[0].lgkm is None and i2[1].op.kind == "BAR")
        s2 = i2.pop(); s2.op.it = k_ - 1; wt = i2.pop(0); i2.insert(0, s2)
        c = copy.copy(s2.op); Op._n += 1; c.id = Op._n; c.after = []; pre3 = [Item(op=c)]
        m = max(n for n, it in enumerate(i2) if it.op is not None and it.op.kind == "M32")
        assert m == len(i2) - 2
        i2.insert(m + 1, br.pop(0))
        n = m - CFG.get("wb", 12)
        while not (i2[n].op is not None and i2[n].op.kind == "M16" and i2[n + 1].op is not None and i2[n + 1].op.kind != "S"): n -= 1
        if not CFG["sync"]: i2.insert(n + 1, Item(vm=wt.vm - 2))
    if CFG["seam"] == 3:
        assert i2[-1].op.kind == "VS" and i2[-2].op.kind == "VS" and i2[-3].op.kind == "M32" and i2[0].op.marker
        i2.pop(0); i2.insert(len(i2) - 2, br.pop(0))
    i2 = fix_items(i2 + br, i2)
    cur = [(n, it.op) for n, it in enumerate(i2) if it.op is not None and it.op.it == k_]
    X = max(n for n, o in cur if not o.late) + 1
    assert all(it.op is None or it.op.it == k_ for it in i2[X:])
    e4regs = [None] * 4
    for n, o in cur:
        tg = getattr(o, "tag", None)
        if tg and tg[0] == "e4": e4regs[tg[1]] = int(o.w[0][1:])
    rest = [q for q in POOL if q not in e4regs]
    head = []
    for n, o in cur:
        if n < X and o.late:
            c = copy.copy(o); Op._n += 1; c.id = Op._n; c.after = []; c.early = None; c.r = c.r + ["B"]; head.append(c)
    P1 = Prog(); P1.free = collections.deque([0] * len(rest)); unit0b(P1, e4regs)
    ia, _, _ = schedule2(P1.ops, strict_m=True, pool=rest)
    i1, t1, e1 = schedule2(bind([it.op for it in ia if it.op is not None], schedule2.vmap) + head, strict_m=True, report=rep)
    nv = 0
    for it in i2[X:]:
        if it.op is not None and it.op.kind in ("VL", "VS"): nv += 1
        if it.vm is not None: it.vm = min(it.vm, nv)
    import io, contextlib
    for drain in [[]] + [[Item(nop=k)] * (k > 0) + [Item(lgkm=0)] for k in range(9)]:
        with contextlib.redirect_stdout(io.StringIO()):
            if verify(i1[-200:] + drain + [Item(raw="s_branch")] + i2[X:]) == 0: break
    i1 = i1 + drain + [Item(raw=f"s_branch L_entry{tag}")]
    print("   entry at window item", X, "of", len(i2), "model t", i2[X].op.issue if i2[X].op else None, "head ops", len(head), file=sys.stderr)
    print("   shared turns / chains:", mk.shr, file=sys.stderr)
    P3 = Prog(); epilogue(P3); P3.share()
    busy = {int(x[1:]) // 4 * 4 for o in left for x in o.r + o.w + o.c if x[0] == "v" and x[1:].isdigit()}
    pool3 = [q for q in POOL if q not in busy] + [q for q in POOL if q in busy]
    ia, _, _ = schedule2(P3.ops, strict_m=True, pool=POOL)
    vm_ = {k: pool3[POOL.index(p_)] for k, p_ in schedule2.vmap.items()}
    i3, t3, e3 = schedule2(left + bind([it.op for it in ia if it.op is not None], vm_), strict_m=True, report=rep); i3 = fix_items(i2 + br, pre3 + old.stamp_q() + i3)
    kinds = collections.Counter(o.kind for o in P2.ops)
    print(f"[{tag}] model: prologue {t1} (mfma {e1})  loop {t2} (mfma {e2})  epilogue {t3} (mfma {e3})  {dict(kinds)}", file=sys.stderr)
    bad = verify(i1 + i2[X:] + br + i2 + br + i3)
    i2 = i2[:X] + [Item(raw=f'L_entry{tag}:')] + old.stamp_q() + i2[X:]
    print("verify problems:", bad, file=sys.stderr)
    def filt(items):
        r = []
        for it in items:
            if it.op is not None:
                if CFG["nostore"] and it.op.kind == "VS": it = Item(nop=1)
                elif CFG["nodma"] and it.op.kind == "VL": it = Item(nop=1)
                elif CFG.get("drop"):
                    o = it.op; d = CFG["drop"]; x = o.text
                    if (d & 1 and x.startswith("v_exp")) : it = Item(nop=2)
                    elif (d & 2 and o.note.endswith("c") and o.kind == "V") or (d & 4 and o.note[:1] == "X" and o.kind == "V") or (d & 8 and x.startswith("v_fmac")) \
                        or (d & 16 and o.note[:1] == "D" and x.startswith(("v_cvt", "v_pk_max"))) or (d & 32 and o.kind == "DPP") or (d & 64 and o.note == "e"): it = Item(nop=1)
                    elif d & 128 and o.kind == "SM" and o.note[0] == "L": it = Item(nop=3)
            r.append(it)
        return r
    an = CFG["annotate"]
    tail_code = []
    if CFG.get("lst"):
        r = []; nm = 0; mt_ = []
        for it in i2:
            r.append(it)
            if it.op is not None and it.op.kind in MK:
                k, rem_ = divmod(nm - CFG.get("lst0", 0), CFG["lst"])
                if rem_ == 0 and k == 14: r.append(Item(raw="s_mov_b32 s90, s88"))
                if rem_ == 0 and 0 <= k < 15:
                    r.append(Item(raw=f"s_memtime s[{60+2*k}:{61+2*k}]")); mt_.append((it.op.issue, it.op.note))
                nm += 1
        i2 = r
        print("model stamps:", [x[0] - mt_[0][0] for x in mt_], [x[1] for x in mt_], file=sys.stderr)
    if CFG.get("per"):
        i2 = i2 + [Item(raw="s_mov_b32 s90, s88"), Item(raw="s_memtime s[88:89]")]
    if CFG.get("sst"):
        T = lambda k: Item(raw=f"s_memtime s[{60+2*k}:{61+2*k}]")
        ms = [n for n, it in enumerate(i2) if it.op is not None and it.op.kind in MK]
        ins = {ms[-4]: T(20 - 8), ms[-2]: T(21 - 8), len(i2) - 1: T(22 - 8), 0: T(4), 1: T(5), ms[0]: T(6), ms[1]: T(7), ms[2]: T(8), ms[4]: T(9), ms[8]: T(10), ms[12]: T(11)}
        r = [T(3)]
        for n, it in enumerate(i2):
            r.append(it)
            if n in ins: r.append(ins[n])
            if n == ms[200]: r += [Item(raw=f"s_mov_b32 s{60+2*k}, s{84+2*k}") for k in range(3)]
        i2 = r
    if CFG.get("pst"):
        nb = [n for n, it in enumerate(i1) if it.op is not None and it.op.kind == "BAR"]
        if CFG["pst"] == 1:
            marks = []
            for b_ in nb:
                x = b_
                while i1[x - 1].op is None: x -= 1
                marks += [x, b_ + 1]
            marks = marks[:14] + [len(i1) - 1]
        else:
            ms = [n + 1 for n, it in enumerate(i1) if it.op is not None and it.op.kind in MK]
            marks = ms[CFG.get("pst0", 0)::CFG["pst"]][:15]
        print("pst model:", [(i1[n].op or i1[n - 1].op or i1[n - 2].op).issue for n in marks[:-1]], file=sys.stderr)
        r = []
        for n, it in enumerate(i1):
            if n in marks:
                k = marks.index(n) + 1; r.append(Item(raw=f"s_memtime s[{60+2*k}:{61+2*k}]"))
            r.append(it)
        i1 = r
    if CFG.get("gl"):
        r = []; nm = 0; gn = CFG.get("gn2", 1)
        for it in i1:
            r.append(it)
            if it.op is not None and it.op.kind in MK:
                if CFG["gp"] <= nm < CFG["gp"] + gn: r += [Item(nop=16)] * (CFG["gl"] // gn // 64) + ([Item(nop=CFG["gl"] // gn % 64 // 4 + 2)] if gn > 1 else [])
                nm += 1
        i1 = r
    nvm = [n for n, it in enumerate(i1) if it.op is not None and it.op.kind in ("VL", "VG")][7 + 4 * CFG["tw"] + 2 * (CFG.get("ef", -1) >= 0)] + 1 if CFG["u0"] == 2 else 0
    i1 = i1[:nvm] + [Item(raw=x) for x in program.pre2 + init] + i1[nvm:]
    out = []
    for it in i1: out += it.lines(an)
    if CFG["sync"]:
        for lab, its in (("", i2), ("e", i3)):
            rd, cp = [[it.op.text for it in its if it.op is not None and it.op.note == "chk" and it.op.kind == k][0] for k in ("DR", "V")]
            out += [f"L_spin{lab}:", rd, "s_waitcnt lgkmcnt(0)", cp, "s_nop 1", f"s_cbranch_vccnz L_spin{lab}", f"s_branch L_back{lab}"]
    out += tail_code
    out += [".p2align 6", f"L_loop{tag}:"]
    for it in filt(i2) + br + filt(i3): out += it.lines(an)
    return out

def layout(out):
    import subprocess, re
    CL = "bin/"
    def isins(l): return l and not l.startswith((".", ";")) and not l.rstrip().endswith(":")
    k0 = out.index(f"{NAME}_kernel:"); k1 = out.index("L_fast_end:"); lp = out.index("L_loopf:")
    hop = ["s_mov_b64 exec, 0"] + [x for w in range(3) for x in (f"s_cmp_eq_u32 s{sW}, {w}", f"s_cbranch_scc1 L_h{w}")] + ["s_branch L_h3", "L_ret:", "s_mov_b64 exec, -1"]
    nb = [n for n, l in enumerate(out) if l.startswith("s_barrier")][0]
    if CFG["hop"] == 1:
        while out[nb - 1].startswith(("s_waitcnt", "s_memtime")): nb -= 1
    elif CFG["hop"] == 5: nb = [n for n, l in enumerate(out) if l.startswith("s_waitcnt vmcnt")][0]
    else: nb = [n for n, l in enumerate(out) if l.startswith("buffer_load")][8 + 4 * CFG["tw"] + (CFG["hop"] - 2) * 2 + 2 * (CFG.get("ef", -1) >= 0)]
    assert out[lp - 1] == ".p2align 6"
    TWO = CFG.get("hop2", 0)
    if TWO:
        n2 = [n for n, l in enumerate(out) if l.startswith("s_barrier")][TWO - 1]
        while out[n2 - 1].startswith(("s_waitcnt", "s_memtime")): n2 -= 1
        hopb = ["s_mov_b64 exec, 0"] + [x for w in range(3) for x in (f"s_cmp_eq_u32 s{sW}, {w}", f"s_cbranch_scc1 L_h{w + 2}")] + ["s_branch L_h5", "L_ret2:", "s_mov_b64 exec, -1"]
        hop = ["s_mov_b64 exec, 0"] + [x for w in range(2) for x in (f"s_cmp_eq_u32 s{sW}, {w}", f"s_cbranch_scc1 L_h{w}")] + ["L_ret:", "s_mov_b64 exec, -1"]
        out = out[:nb] + hop + out[nb:n2] + hopb + out[n2:lp - 1] + out[lp:]
    else: out = out[:nb] + hop + out[nb:lp - 1] + out[lp:]
    src = [l for l in out[:out.index("L_fast_end:") + 1]] + ["L_end:", "s_endpgm"] + [f"L_h{w}:" for w in range(6)]
    open("lay.s", "w").write("\n".join(src) + "\n")
    tmp = f"lay_{os.getpid()}"
    open(tmp + ".s", "w").write("\n".join(src) + "\n")
    subprocess.run([CL + "clang", "-x", "assembler", "-target", "amdgcn-amd-amdhsa", "-mcpu=gfx950", "-c", tmp + ".s", "-o", tmp + ".o"], check=True)
    d = subprocess.run([CL + "llvm-objdump", "-d", tmp + ".o"], capture_output=True, text=True).stdout
    os.remove(tmp + ".s"); os.remove(tmp + ".o")
    sz = [4 * len(m.group(1).split()) for m in re.finditer(r"// [0-9A-F]{12}: (.*)", d)]
    it = iter(sz); size = [next(it) if isins(l) and n > k0 else 0 for n, l in enumerate(src)]
    lp = out.index("L_loopf:"); en = out.index("L_entryf:"); k1 = out.index("L_fast_end:")
    def load(n):
        c = 0
        for l in out[n + 1:n + 12]:
            if "mfma" in l.split()[0]: break
            if isins(l): c += 2 if l.startswith(("buffer", "ds_", "s_nop 2")) else 1
        return max(c - 1, 0)
    def stubs(lo, hi, addr):
        r = []; nxt = (addr // 4096 + 1) * 4096; cand = []; cost = 0
        for n in range(lo, hi):
            addr += size[n]
            if nxt <= addr <= nxt + 60 and size[n]: cand.append((0 if "mfma" in out[n].split()[0] and "32x32" not in out[n] else 9, load(n), n))
            if addr > nxt + 60:
                c = min(cand); r.append(c[2]); cost += min(c[1], 3) if c[2] < out.index("s_cbranch_scc1 L_loopf") else 0; addr += 4; nxt += 4096; cand = []
        return r, addr, cost
    s0, end0, _ = stubs(k0, lp, CFG["base"])
    rel = sum(size[lp:en])
    best = None
    for off in range(16, 4096, 4):
        if off % 64 != CFG["lo"] if "lo" in CFG else off % 16: continue
        eo = (off + rel + 4) % 4096
        if not 0 <= eo < CFG.get("ew", 256): continue
        s1, _, c = stubs(lp, k1, off)
        nl = sum(x < out.index("s_cbranch_scc1 L_loopf") for x in s1)
        if best is None or (nl, c, off % 64 != 0, eo) < best[0]: best = ((nl, c, off % 64 != 0, eo), off, s1)
    _, off, s1 = best
    order = s0 + s1[1:2] + ["hole"] + s1[:1] + s1[2:]
    print("   layout: unit0 ends at", end0, "loop offset", off, "stubs", len(order), "in-loop", best[0], file=sys.stderr)
    def stub(x):
        j = order.index(x)
        if TWO:
            assert len(order) == 6; return [f"L_h{j}:", "s_cbranch_execz " + ("L_ret" if j < 2 else "L_ret2")]
        return [f"L_h{j}:", "s_cbranch_execz " + (f"L_h{j + 4}" if j + 4 < len(order) else "L_ret")]
    r = []
    for n, l in enumerate(out):
        if n == lp: r += [".p2align 12", f".fill {off // 4 - 1}, 4, 0xbf800000"] + stub("hole")
        r.append(l)
        if n in order: r += stub(n)
    return r

def main():
    out = []
    for l in open("/code/" + NAME + ".s.ref").read().split("\n"):
        if l.startswith("; @launch"): break
        if l.startswith(";"): out.append(l)
    out.append(f"; @launch grid=(256,1,1) block=(256,1,1) lds={LDS_TOTAL}")
    out += """; GENERATED by gen/gen6.py (own generator + list scheduler gen/sched.py) - do not edit by hand
; One workgroup (4 waves, 512 registers each) per CU; wave = (batch stream p, head h); 8 batches per stream.
; Weights of the head live in the 256 AGPRs as 16x16x32 MFMA fragments (Wq pre-multiplied by 0.125*log2(e)).
; e is streamed through an LDS double buffer (LDS-DMA); K^T,Q^T,V -> S^T -> P -> ctx^T chain stays in registers.
; Rows 96..99 of the 8 batches are projected together (two packed 16-row tiles, tables in LDS); every product with
; those 4 rows and the softmax row sums use the sparse MFMA (two output rows per dot product, one half each).
; The two waves of a stream hand the e buffers over with LDS flags (signal early, check late, spin if not there yet).
; The never-taken s_cbranch_execz lines only serve to pull the first line behind each 4 KB code boundary into the I-cache.
; Softmax guard: the fast path evaluates exp2(s) without a shift and tracks max(l, 1/l) of EVERY row sum l.
; If any row sum of the workgroup leaves [2^-40, 2^40] (so a shift could matter), the workgroup recomputes all
; of its batches in the second copy of the program (after L_fast_end), which subtracts the true row maximum.""".split("\n")
    out += ['.amdgcn_target "amdgcn-amd-amdhsa--gfx950"', ".text", f".globl {NAME}_kernel", ".p2align 8", f".type {NAME}_kernel,@function", f"{NAME}_kernel:"]
    if CFG["stamps"]: out += ["s_memtime s[60:61]", "s_memrealtime s[62:63]"]
    if CFG.get("pst"): out += ["s_memtime s[60:61]"]
    if CFG.get("tot"): out += ["s_memtime s[60:61]", "s_memrealtime s[62:63]", "s_load_dwordx2 s[92:93], s[0:1], 56"]
    out += ["s_cmp_ge_u32 s2, 256", "s_cbranch_scc1 L_end"]
    if CFG["u0"] == 2: out += [f"s_load_dwordx2 s[{r_}:{r_+1}], s[0:1], {o_}" for r_, o_ in ((sWQ, 8), (sWK, 16), (sWV, 24), (sWR, 32))]
    else: out += ["s_load_dwordx8 s[4:11], s[0:1], 0", "s_load_dwordx4 s[12:15], s[0:1], 32"]
    if CFG["pf"] == 1:
        out += ["s_getpc_b64 s[58:59]", "L_pc:", "v_lshlrev_b32 v2, 7, v0", "v_min_u32 v2, L_fast_end-L_pc-4, v2", f"global_load_dword v{QF}, v2, s[58:59]"]
    elif CFG["pf"] == 2:
        out += ["s_getpc_b64 s[58:59]", "L_pc:", "s_lshl_b32 s3, s2, 9", "s_and_b32 s3, s3, 0x7000", "v_lshrrev_b32 v2, 3, v0", "v_lshl_add_u32 v2, v2, 7, s3",
                "v_min_u32 v2, L_fast_end-L_pc-4, v2", f"global_load_dword v{QF}, v2, s[58:59]"]
    elif CFG["pf"] == 3:
        out += ["s_getpc_b64 s[58:59]", "L_pc:", "s_lshl_b32 s3, s2, 7", "s_and_b32 s3, s3, 0x7c00", "v_lshrrev_b32 v2, 5, v0", "v_lshl_add_u32 v2, v2, 7, s3",
                "v_min_u32 v2, L_fast_end-L_pc-4, v2", f"global_load_dword v{QF}, v2, s[58:59]"]
    elif CFG["pf"] == 4:
        out += ["s_getpc_b64 s[58:59]", "L_pc:", "s_lshl_b32 s3, s2, 8", "s_and_b32 s3, s3, 0x7800", "v_lshrrev_b32 v2, 4, v0", "v_lshl_add_u32 v2, v2, 7, s3",
                "v_min_u32 v2, L_fast_end-L_pc-4, v2", f"global_load_dword v{QF}, v2, s[58:59]"]
    pre = f"""
v_lshrrev_b32 v1, 6, v0
s_mov_b32 s{sWQ+3}, 0x20000
v_readfirstlane_b32 s{sW}, v1
s_mov_b32 s{sWQ+2}, 32768
s_mov_b64 s[{sWK+2}:{sWK+3}], s[{sWQ+2}:{sWQ+3}]
s_mov_b64 s[{sWV+2}:{sWV+3}], s[{sWQ+2}:{sWQ+3}]
s_mov_b64 s[{sWR+2}:{sWR+3}], s[{sWQ+2}:{sWQ+3}]
"""
    XM = [f"s_lshl1_add_u32 s{sB0}, s2, s{sP}",
          f"s_and_b32 s{sB0}, s2, 7\ns_lshl_b32 s{sB0}, s{sB0}, 5\ns_lshr_b32 s{sC}, s2, 3\ns_add_u32 s{sB0}, s{sB0}, s{sC}\ns_lshl1_add_u32 s{sB0}, s{sB0}, s{sP}",
          f"s_lshl_b32 s{sB0}, s{sP}, 8\ns_add_u32 s{sB0}, s{sB0}, s2"][CFG.get("xm", 0)]
    pre2 = f"""
s_load_dwordx2 s[{sE}:{sE+1}], s[0:1], 0
s_load_dwordx2 s[{sO}:{sO+1}], s[0:1], 40
s_mov_b32 s{sE+2}, {NB * BBATCH}
s_mov_b32 s{sE+3}, s{sWQ+3}
s_lshr_b32 s{sP}, s{sW}, 1
s_and_b32 s{sH}, s{sW}, 1
{XM}
s_mul_i32 s{sB0}, s{sB0}, {BBATCH}
s_mov_b32 s{sC}, {f32(0.125 * math.log2(math.e))}
s_mov_b64 s[{sO+2}:{sO+3}], s[{sE+2}:{sE+3}]
"""
    out += [l for l in pre.split("\n") if l]
    program.pre2 = [l for l in pre2.split("\n") if l]
    out += program()
    if CFG["stamps"]:
        for it in [Item(vm=0)] + old.stamp_q() + old.stamp_dump(): out += it.lines()
    if CFG.get("lst") or CFG.get("sst") or CFG.get("pst") or CFG.get("per"):
        out += ["s_load_dwordx2 s[92:93], s[0:1], 56", "s_waitcnt lgkmcnt(0)", "s_mov_b32 s94, 0x100000", "s_mov_b32 s95, 0x20000",
                "s_lshl_b32 s3, s2, 2", f"s_add_u32 s3, s3, s{sW}", "s_lshl_b32 s3, s3, 8", "v_mov_b32 v2, 0", "s_mov_b64 exec, 1"]
        for n in range(16):
            out += [f"v_mov_b32 v{4+2*n}, s{60+2*n}", f"v_mov_b32 v{5+2*n}, s{60+2*n}", f"buffer_store_dwordx2 v[{4+2*n}:{5+2*n}], v2, s[92:95], s3 offen offset:{8*n}"]
        out += ["s_mov_b64 exec, -1"]
    if CFG.get("tot"):
        out += ["s_memtime s[64:65]", "s_memrealtime s[66:67]", "s_mov_b32 s94, 0x100000", "s_mov_b32 s95, 0x20000", "s_lshl_b32 s3, s2, 2", f"s_add_u32 s3, s3, s{sW}", "s_lshl_b32 s3, s3, 8",
                f"v_mov_b32 v{POOL0+4}, 0", "s_waitcnt lgkmcnt(0)", "s_mov_b64 exec, 1"] + [f"v_mov_b32 v{POOL0+i}, s{60+2*i}" for i in range(4)]
        out += [f"buffer_store_dwordx4 v[{POOL0}:{POOL0+3}], v{POOL0+4}, s[92:95], s3 offen", "s_mov_b64 exec, -1"]
    if CFG["fallback"]:
        out += [f"v_mov_b32 v1, {f32(2.0 ** CFG['thr'])}", f"v_cmp_nle_f32 vcc, {v(CHK)}, v1", f"s_lshl_b32 s{sT0}, s{sW}, 2", f"s_add_u32 s{sT0}, s{sT0}, {FLAG}",
                "s_or_b32 s3, vcc_lo, vcc_hi", f"v_mov_b32 v2, s{sT0}", "v_mov_b32 v3, s3", "ds_write_b32 v2, v3", f"v_mov_b32 v2, {FLAG}", "s_waitcnt lgkmcnt(0)", "s_barrier",
                "ds_read_b128 v[4:7], v2", "s_waitcnt lgkmcnt(0)", "v_or_b32 v4, v4, v5", "v_or3_b32 v4, v4, v6, v7", "s_nop 0", "v_readfirstlane_b32 s3, v4", "s_nop 3",
                "s_cmp_eq_u32 s3, 0", "s_cbranch_scc0 L_fast_end", "s_endpgm", "L_fast_end:", "s_waitcnt vmcnt(0)", "s_barrier"]
        old.CFG["stamps"] = 0
        sched.CRIT_WIN = old.CFG["cw"]; sched.BACKPACK = bool(old.CFG["bp"]); sched.DS_LAT = 84; sched.DS_COV = 0; sched.DS_FINE = False; sched.NOISE[:] = [old.CFG["noise"], old.CFG["seed"]]
        out += old.program(True, "s")
    else:
        out += ["L_fast_end:"]
    out += ["L_end:", "s_endpgm", '.section .rodata,"a"', ".p2align 6", f".amdhsa_kernel {NAME}_kernel",
            "  .amdhsa_next_free_vgpr 512", "  .amdhsa_next_free_sgpr 102", "  .amdhsa_accum_offset 256", "  .amdhsa_group_segment_fixed_size 0",
            "  .amdhsa_kernarg_size 64", "  .amdhsa_user_sgpr_count 2", "  .amdhsa_user_sgpr_kernarg_segment_ptr 1", "  .amdhsa_system_sgpr_workgroup_id_x 1",
            ".end_amdhsa_kernel"]
    if CFG["hop"]: out = layout(out)
    open(sys.argv[1], "w").write("\n".join(out) + "\n")

if __name__ == "__main__":
    main()
```

```python
def gen(name, body, reps, loops, threads=256, nvgpr=512, accum=256, lds=65536, init="", flops_per_body=0, grid=256):
    s = []
    s.append(f"; @launch grid=({grid},1,1) block=({threads},1,1) lds={lds}")
    s.append(f"; units={reps*loops}")
    s.append('.amdgcn_target "amdgcn-amd-amdhsa--gfx950"')
    s.append(".text\n.globl mb_kernel\n.p2align 8\n.type mb_kernel,@function\nmb_kernel:")
    s.append("  s_load_dwordx2 s[4:5], s[0:1], 0")
    s.append("  s_load_dwordx2 s[6:7], s[0:1], 8")
    s.append("  s_waitcnt lgkmcnt(0)")
    s.append("  s_mov_b32 s8, s4\n  s_mov_b32 s9, s5\n  s_mov_b32 s10, 0x100000\n  s_mov_b32 s11, 0x20000")
    s.append("  s_mov_b32 s12, s6\n  s_mov_b32 s13, s7\n  s_mov_b32 s14, 0x4000000\n  s_mov_b32 s15, 0x20000")
    s.append("  v_mov_b32 v255, v0")
    s.append("  v_lshlrev_b32 v254, 4, v0")
    s.append("  s_lshl_b32 s21, s2, 18")
    for r in range(0, 248, 4):
        s.append(f"  buffer_load_dwordx4 v[{r}:{r+3}], v254, s[12:15], s21 offen")
        s.append(f"  s_add_u32 s21, s21, 4096")
    s.append("  s_waitcnt vmcnt(0)")
    if nvgpr > 256:
        for r in range(0, 248):
            s.append(f"  v_accvgpr_write_b32 a{r}, v{(r*7+3)%248}")
    s.append("""  v_and_b32 v253, 63, v255
  v_lshlrev_b32 v253, 4, v253
  v_lshrrev_b32 v252, 6, v255
  v_lshlrev_b32 v252, 14, v252
  v_add_u32 v253, v253, v252""")
    for i in range(16):
        s.append(f"  ds_write_b128 v253, v[{128+4*i}:{131+4*i}] offset:{i*1024}")
    s.append("  s_waitcnt lgkmcnt(0)")
    s.append(init)
    s.append("  s_barrier")
    s.append(f"  s_mov_b32 s20, {loops}")
    s.append("  s_memtime s[16:17]\n  s_memrealtime s[24:25]")
    s.append("  s_waitcnt lgkmcnt(0)")
    s.append(".p2align 6\nL_loop:")
    for r in range(reps):
        s.append(body(r))
    s.append("  s_sub_u32 s20, s20, 1")
    s.append("  s_cmp_lg_u32 s20, 0")
    s.append("  s_cbranch_scc1 L_loop")
    s.append("  s_memtime s[18:19]\n  s_memrealtime s[26:27]")
    s.append("  s_waitcnt lgkmcnt(0)")
    s.append("  s_sub_u32 s18, s18, s16\n  s_sub_u32 s26, s26, s24")
    s.append("  v_mov_b32 v2, s18\n  v_mov_b32 v3, s26")
    s.append("  v_lshrrev_b32 v4, 6, v255")
    s.append(f"  s_mul_i32 s3, s2, {threads//64}")
    s.append("  v_add_u32 v4, s3, v4")
    s.append("  v_lshlrev_b32 v4, 3, v4")
    s.append("  v_and_b32 v5, 63, v255")
    s.append("  v_cmp_eq_u32 vcc, 0, v5")
    s.append("  s_and_saveexec_b64 s[22:23], vcc")
    s.append("  buffer_store_dwordx2 v[2:3], v4, s[8:11], 0 offen")
    s.append("  s_endpgm")
    s.append('.section .rodata,"a"\n.p2align 6\n.amdhsa_kernel mb_kernel')
    s.append(f"  .amdhsa_next_free_vgpr {nvgpr}\n  .amdhsa_next_free_sgpr 102\n  .amdhsa_accum_offset {accum}")
    s.append("  .amdhsa_group_segment_fixed_size 0\n  .amdhsa_kernarg_size 64\n  .amdhsa_user_sgpr_count 2\n  .amdhsa_user_sgpr_kernarg_segment_ptr 1\n  .amdhsa_system_sgpr_workgroup_id_x 1\n.end_amdhsa_kernel")
    open(name, "w").write("\n".join(s) + "\n")
```

```python
import sys
sys.path.insert(0, "../mb")
from mb_gen2 import gen
files = []
def add(n, ao, bo, do, av="a"):
    def body(i):
        d = ((i // 4) % 14) * 4 + do
        c = "0" if i % 4 == 0 else f"v[{d}:{d+3}]"
        A = ((i*4) % 240 if av == "a" else 64 + (i*4) % 60) + ao; B = 128 + (i*4) % 60 + bo
        return f"  v_mfma_f32_16x16x32_bf16 v[{d}:{d+3}], {av}[{A}:{A+3}], v[{B}:{B+3}], {c}\n  v_cvt_pk_bf16_f32 v{192+i%24}, v{216+i%30}, v{217+i%30}"
    gen("../build/" + n, body, 128, 36); files.append("../build/" + n)
for av in "av":
    for (ao, bo, do) in [(0,0,0),(0,2,0),(0,0,2),(0,2,2)]: add(f"n_{av}{ao}{bo}{do}.s", ao, bo, do, av)
print(" ".join(files))
```
